```python
import torch

def _softmax(x, axis=-1):
    return torch.softmax(x, dim=axis)
def _gelu(x):
    return torch.nn.functional.gelu(x, approximate="tanh")
def _silu(x):
    return torch.nn.functional.silu(x)
def _sigmoid(x):
    return torch.sigmoid(x)
def _layernorm(x, axis=-1, eps=1e-5):
    m = x.mean(dim=axis, keepdim=True)
    v = x.var(dim=axis, keepdim=True, unbiased=False)
    return (x - m) / torch.sqrt(v + eps)
def _scatter_add(tgt, idx, src, axis=0):
    return tgt.clone().index_add_(axis, idx, src)
def _segment_sum(src, seg, n):
    out = torch.zeros((n,) + src.shape[1:], dtype=src.dtype)
    return out.index_add_(0, seg, src)
def _pad(x, pw):
    flat = tuple(v for pair in reversed(pw) for v in pair)
    return torch.nn.functional.pad(x, flat)

kernel_name = 'parallel_sum__sliding_block_cached__glu_gated_swiglu__decode'

def setup_inputs():

    _w = (lambda a: (lambda t: t.to(torch.bfloat16) if t.is_floating_point() else t)(torch.as_tensor(a)))
    def _A_setup():
        B, Sq, D = 1, 1, 640
        Hq, Hkv, Sk, Dh = 32, 32, 32768, 192
        assert Hq % Hkv == 0, (Hq, Hkv)
        return {
            "x": _w((lambda *s: torch.randn(*s, dtype=torch.bfloat16) * 0.05)(B, Sq, D)),
            "k_cache": _w((lambda *s: torch.randn(*s, dtype=torch.bfloat16) * 1.6)(B, Hkv, Sk, Dh)),
            "v_cache": _w((lambda *s: torch.randn(*s, dtype=torch.bfloat16) * 0.8)(B, Hkv, Sk, Dh)),
            "wq": _w((lambda *s: torch.randn(*s, dtype=torch.bfloat16) * 1.6)(D, Hq * Dh) * (D ** -0.5)),
            "wo": _w((lambda *s: torch.randn(*s, dtype=torch.bfloat16) * 0.8)(Hq * Dh, D) * ((Hq * Dh) ** -0.5)),
        }
    _A_in = _A_setup()

    def _B_setup():
        B, S, D, F = 1, 1, 640, 1536
        return {
            "x": _w((lambda *s: torch.randn(*s, dtype=torch.bfloat16) * 0.05)(B, S, D)),
            "w1": _w((lambda *s: torch.randn(*s, dtype=torch.bfloat16) * 0.4)(D, F) * (2.0 / D) ** 0.5),
            "w3": _w((lambda *s: torch.randn(*s, dtype=torch.bfloat16) * 0.4)(D, F) * (2.0 / D) ** 0.5),
            "w2": _w((lambda *s: torch.randn(*s, dtype=torch.bfloat16) * 0.4)(F, D) * (2.0 / F) ** 0.5),
        }
    _B_in = _B_setup()

    return {
        "A_x": _A_in["x"],
        "A_k_cache": _A_in["k_cache"],
        "A_v_cache": _A_in["v_cache"],
        "A_wq": _A_in["wq"],
        "A_wo": _A_in["wo"],
        "B_x": _B_in["x"],
        "B_w1": _B_in["w1"],
        "B_w3": _B_in["w3"],
        "B_w2": _B_in["w2"],
    }

def reference(A_x, A_k_cache, A_v_cache, A_wq, A_wo, B_x, B_w1, B_w3, B_w2):
    def _A_ref(x, k_cache, v_cache, wq, wo):
        B, Sq, D = x.shape
        Hq, Dh = 32, 192
        Hkv, Sk = k_cache.shape[1], k_cache.shape[2]
        W = min(4096, max(256, Sk // 4))
        rep = Hq // Hkv
        q = (lambda x, *d: x.permute(*d))((x @ wq).reshape(B, Sq, Hq, Dh), 0, 2, 1, 3)
        k = (lambda x, n, axis: torch.repeat_interleave(x, n, dim=axis))(k_cache[:, :, Sk - W:, :], rep, axis=1)
        v = (lambda x, n, axis: torch.repeat_interleave(x, n, dim=axis))(v_cache[:, :, Sk - W:, :], rep, axis=1)
        scores = torch.einsum("bhqd,bhkd->bhqk", q, k) * (Dh ** -0.5)
        p = _softmax(scores, axis=-1)
        o = torch.einsum("bhqk,bhkd->bhqd", p, v)
        return (lambda x, *d: x.permute(*d))(o, 0, 2, 1, 3).reshape(B, Sq, Hq * Dh) @ wo

    def _B_ref(x, w1, w3, w2):
        gate = torch.einsum("bsd,df->bsf", x, w1)
        up = torch.einsum("bsd,df->bsf", x, w3)
        h = _silu(gate) * up
        out = torch.einsum("bsf,fd->bsd", h, w2)
        return out

    x = A_x
    xn = _layernorm(x, axis=-1)
    return x + _A_ref(xn, A_k_cache, A_v_cache, A_wq, A_wo) + _B_ref(xn, B_w1, B_w3, B_w2)
```

```python
import re

TRANS = ("v_exp_f32", "v_log_f32", "v_rcp_f32", "v_rsq_f32", "v_sqrt_f32", "v_sin_f32", "v_cos_f32")

def regs_of(tok):
    tok = tok.strip()
    tok = tok.lstrip('-')
    m = re.match(r"abs\((.*)\)", tok)
    if m: tok = m.group(1)
    m = re.fullmatch(r"([vs])(\d+)", tok)
    if m: return [(m.group(1), int(m.group(2)))]
    m = re.fullmatch(r"([vs])\[(\d+):(\d+)\]", tok)
    if m: return [(m.group(1), i) for i in range(int(m.group(2)), int(m.group(3)) + 1)]
    if tok == "vcc": return [("s", 106), ("s", 107)]
    if tok == "vcc_lo": return [("s", 106)]
    if tok == "vcc_hi": return [("s", 107)]
    return []

class Asm:
    def __init__(self):
        self.lines = []
        self.hist = []

    def raw(self, s):
        self.lines.append(s)

    def label(self, name):
        self._pad_all()
        self.lines.append(f"{name}:")

    def _pad_all(self):
        need = 0
        for age, h in enumerate(reversed(self.hist[-6:])):
            if h.get("valu"):
                req = 5 if h["sw"] else (3 if h["dot"] else 2)
                need = max(need, req - age)
            if h.get("wstore"):
                need = max(need, 2 - age)
        if need > 0:
            self._nop(need)
        self.hist = []

    def _nop(self, n):
        self.lines.append(f"    s_nop {n-1}")
        for _ in range(n):
            self.hist.append({})

    def __call__(self, s):
        s = s.strip()
        if not s or s.startswith(";"):
            self.lines.append("    " + s); return
        body = s.split(";")[0].strip()
        parts = body.split(None, 1)
        op = parts[0]
        rest = parts[1] if len(parts) > 1 else ""
        ops = [o.strip() for o in re.split(r",(?![^\[]*\])", rest)] if rest else []
        mods = ""
        if ops:
            sp = ops[-1].split(None, 1)
            ops[-1] = sp[0]
            mods = sp[1] if len(sp) > 1 else ""
        is_valu = op.startswith("v_")
        is_vmem = op.startswith("buffer_") or op.startswith("global_")
        is_dpp = "_dpp" in op or "quad_perm" in mods or "row_" in mods
        is_dot = op.startswith("v_dot")
        is_trans = any(op.startswith(t) for t in TRANS)
        is_perml = op.startswith("v_permlane")
        is_rdl = op.startswith("v_readlane") or op.startswith("v_readfirstlane")
        is_branch = op.startswith("s_cbranch") or op.startswith("s_branch") or op in ("s_endpgm", "s_setpc_b64")
        writes = []; reads = []
        if is_valu:
            if is_perml:
                writes = regs_of(ops[0]) + regs_of(ops[1]); reads = list(writes)
            elif op.startswith("v_cmp"):
                writes = regs_of(ops[0]); reads = sum((regs_of(o) for o in ops[1:]), [])
            else:
                writes = regs_of(ops[0]); reads = sum((regs_of(o) for o in ops[1:]), [])
                if op.startswith("v_fmac") or op.startswith("v_dot2c") or op.startswith("v_pk_fmac"):
                    reads += regs_of(ops[0])
                if op.startswith("v_cndmask") and len(ops) == 3:
                    reads += regs_of("vcc")
        elif is_vmem:
            reads = sum((regs_of(o) for o in ops), [])
        need = 0
        for age, h in enumerate(reversed(self.hist[-6:])):
            if h.get("valu"):
                wv = h["vw"]; ws = h["sw"]
                rv = set(r for r in reads if r[0] == "v"); rs = set(r for r in reads if r[0] == "s")
                wr = set(writes)
                if is_valu:
                    if is_dpp and ops and (set(regs_of(ops[1])) & wv): need = max(need, 2 - age)
                    if is_rdl and (rv & wv): need = max(need, 1 - age)
                    if is_perml and (rv & wv): need = max(need, 2 - age)
                    if rs & ws: need = max(need, (4 if is_rdl else 2) - age)
                    if h["trans"] and not is_trans and (rv & wv): need = max(need, 1 - age)
                    if h["dot"]:
                        if op == h["op"]:
                            srcab = set(regs_of(ops[1]) + regs_of(ops[2]))
                            if srcab & wv: need = max(need, 3 - age)
                        elif (rv | wr) & wv: need = max(need, 3 - age)
                if is_vmem:
                    if rs & ws: need = max(need, 5 - age)
                    if h["dot"] and (rv & wv): need = max(need, 3 - age)
                if op.startswith("ds_") and h["dot"]:
                    dr = set(sum((regs_of(o) for o in ops), []))
                    if dr & wv: need = max(need, 3 - age)
            if h.get("wstore") and is_valu:
                if set(writes) & h["wstore"]: need = max(need, 2 - age)
        if need > 0:
            self._nop(need)
        if is_branch:
            self._pad_all()
        self.lines.append("    " + s)
        e = {}
        if is_valu:
            e = dict(valu=True, vw=set(r for r in writes if r[0] == "v"), sw=set(r for r in writes if r[0] == "s"),
                     trans=is_trans, dot=is_dot, op=op)
        if is_vmem and ("store_dwordx4" in op or "store_dwordx3" in op):
            e = dict(wstore=set(regs_of(ops[0])))
        if op == "s_nop":
            n = int(ops[0]) + 1
            for _ in range(n): self.hist.append({})
        else:
            self.hist.append(e)
        if is_branch:
            self.hist = []

    def text(self):
        return "\n".join(self.lines) + "\n"
```

```python
import sys, argparse
from asmlib import Asm
KN = "parallel_sum__sliding_block_cached__glu_gated_swiglu__decode_kernel"

QP_OFF, MB1_OFF, MB2_OFF = 0, 0x80000, 0x100000
STAMP_OFF = 64 << 20
L_P1 = 0
L_QB = 28160
L_HB = 28672
L_FLAG = 28928
L_OP = 29184
L_ML = 35584
L_RED = 35840
L_FIN = 52480
LDS_SIZE = 53760
OOB = 0x40000000
LOG2E = 0x3fb8aa3b
SCALE = 0x3d93cd3a
SPIN_MAX = 1 << 20

K_, V_, WS_, WQ_, WO_, W1_, W3_, W2_, X_, OUT_, DBG_ = [f"s[{i}:{i+3}]" for i in range(8, 52, 4)]

class VM:
    def __init__(self, a):
        self.a = a; self.n = 0; self.done = 0
    def issue(self, s):
        self.a(s); self.n += 1; return self.n - 1
    def wait_id(self, i):
        if i < self.done: return
        self.a(f"s_waitcnt vmcnt({self.n - 1 - i})"); self.done = i + 1
    def throttle(self, T):
        if self.n - self.done > T - 1:
            self.a(f"s_waitcnt vmcnt({T-1})"); self.done = self.n - (T - 1)
    def reset(self):
        self.n = 0; self.done = 0

def gen(fname, T=3, TC=5, stamps=False, budget=2, CW=7):
    a = Asm()
    R = a.raw
    R(f"; @launch grid=(256,1,1) block=(512,1,1) lds={LDS_SIZE}")
    R('.amdgcn_target "amdgcn-amd-amdhsa--gfx950"')
    R(".text"); R(f".globl {KN}"); R(".p2align 8"); R(f".type {KN},@function"); R(f"{KN}:")
    nst = [0]
    def stamp(i):
        if stamps:
            a(f"s_memrealtime s[{88+2*i}:{89+2*i}]")
    a("s_cmp_ge_u32 s2, 256")
    a("s_cbranch_scc1 L_end")
    stamp(0)
    a("s_load_dwordx16 s[64:79], s[0:1], 0")
    a("s_load_dwordx8 s[80:87], s[0:1], 64")
    a("v_lshrrev_b32 v10, 6, v0")
    a("v_and_b32 v11, 63, v0")
    a("v_readfirstlane_b32 s3, v10")
    a("s_and_b32 s4, s2, 31")
    a("s_lshr_b32 s5, s2, 5")
    a("s_lshr_b32 s6, s5, 1")
    a("s_and_b32 s7, s5, 1")
    a("v_lshrrev_b32 v12, 3, v11")
    a("v_mul_u32_u24 v12, 384, v12")
    a("v_and_b32 v13, 7, v11")
    a("v_lshl_add_u32 v1, v13, 4, v12")
    a("v_mul_u32_u24 v14, 2731, v0")
    a("v_lshrrev_b32 v14, 16, v14")
    a("v_mul_u32_u24 v15, 24, v14")
    a("v_sub_u32 v15, v0, v15")
    a("v_mov_b32 v19, %d" % OOB)
    a("v_cmp_gt_u32 vcc, 480, v0")
    a("v_mul_u32_u24 v2, 49152, v14")
    a("v_lshl_add_u32 v2, v15, 4, v2")
    a("v_cndmask_b32 v2, v19, v2, vcc")
    a("s_mov_b64 s[60:61], vcc")
    a("v_and_b32 v16, 7, v15")
    a("v_mul_u32_u24 v3, 12288, v14")
    a("v_lshl_add_u32 v3, v16, 4, v3")
    a("v_cmp_gt_u32 vcc, 8, v15")
    a("s_and_b64 s[52:53], vcc, s[60:61]")
    a("v_cmp_gt_u32 vcc, 16, v15")
    a("s_and_b64 s[56:57], vcc, s[60:61]")
    a("s_andn2_b64 s[54:55], s[56:57], s[52:53]")
    a("v_mul_u32_u24 v6, 1280, v14")
    a("v_lshl_add_u32 v6, v15, 5, v6")
    a("v_lshlrev_b32 v17, 3, v14")
    a("v_lshlrev_b32 v18, 4, v11")
    a("v_mul_u32_u24 v14, 1639, v0")
    a("v_lshrrev_b32 v14, 16, v14")
    a("v_mul_u32_u24 v15, 40, v14")
    a("v_sub_u32 v15, v0, v15")
    a("v_mul_u32_u24 v4, 5120, v14")
    a("v_lshl_add_u32 v4, v15, 4, v4")
    a("v_cndmask_b32 v4, v19, v4, s[60:61]")
    a("v_cmp_gt_u32 vcc, 320, v0")
    a("v_mul_u32_u24 v5, 2560, v14")
    a("v_lshl_add_u32 v5, v15, 4, v5")
    a("v_cndmask_b32 v5, v19, v5, vcc")
    a("v_mul_u32_u24 v7, 1280, v14")
    a("v_lshl_add_u32 v7, v15, 5, v7")
    a("v_lshlrev_b32 v8, 4, v14")
    a("v_lshlrev_b32 v9, 10, v13")
    a("v_min_u32 v16, 7, v14")
    a("v_lshlrev_b32 v16, 3, v16")
    a("s_lshl_b32 s62, s6, 6")
    a("v_add_u32 v16, s62, v16")
    a("v_lshlrev_b32 v13, 4, v13")
    a("s_waitcnt lgkmcnt(0)")
    def srd(base, ptr, size):
        a(f"s_mov_b32 s{base}, s{ptr}"); a(f"s_mov_b32 s{base+1}, s{ptr+1}")
        a(f"s_mov_b32 s{base+2}, {size}"); a(f"s_mov_b32 s{base+3}, 0x00020000")
    srd(40, 64, 1280)
    srd(20, 70, 7864320)
    vm = VM(a)
    a("s_mul_i32 s63, s5, 160")
    ix0 = vm.issue(f"buffer_load_dwordx4 v[208:211], v18, {X_}, 0 offen")
    ix1 = vm.issue(f"buffer_load_dwordx4 v[212:215], v18, {X_}, 0 offen offset:1024")
    ix2 = vm.issue(f"buffer_load_dwordx2 v[216:217], v17, {X_}, s63 offen")
    a("s_mul_i32 s63, s5, %d" % (80 * 12288))
    a("s_mul_i32 s62, s4, 384")
    a("s_add_u32 s63, s63, s62")
    iwq = []
    for i in range(4):
        iwq.append(vm.issue(f"buffer_load_dwordx4 v[{160+4*i}:{163+4*i}], v2, {WQ_}, s63 offen nt"))
        if i < 3: a("s_add_u32 s63, s63, 12288")
    srd(28, 76, 1966080); srd(32, 78, 1966080)
    a("s_mul_i32 s63, s5, %d" % (80 * 3072))
    a("s_lshl_b32 s62, s4, 7")
    a("s_add_u32 s63, s63, s62")
    a("s_cmp_lt_u32 s4, 24")
    a("s_cselect_b32 s63, s63, %d" % OOB)
    a("s_add_u32 s62, s63, 6144")
    iml = []
    for (msk, srdn) in (("s[52:53]", W1_), ("s[54:55]", W3_)):
        a(f"s_mov_b64 exec, {msk}")
        for i in range(4):
            so = "s63" if i < 2 else "s62"
            iml.append(vm.issue(f"buffer_load_dwordx4 v[{176+4*i}:{179+4*i}], v3, {srdn}, {so} offen offset:{(i&1)*3072} nt"))
    a("s_mov_b64 exec, -1")
    srd(8, 66, 402653184); srd(12, 68, 402653184); srd(16, 86, 1610612736)
    srd(24, 72, 7864320); srd(36, 80, 1966080); srd(44, 82, 1280); srd(48, 84, 256)
    a("s_mul_i32 s64, s4, 12582912")
    a("s_mul_i32 s65, s5, %d" % (512 * 384))
    a("s_mul_i32 s66, s3, %d" % (64 * 384))
    a("s_add_u32 s64, s64, s65"); a("s_add_u32 s64, s64, s66"); a("s_add_u32 s64, s64, %d" % (28672 * 384))
    for i in range(1, 8):
        a(f"s_add_u32 s{64+i}, s64, {i*3072}")
    a("s_mul_i32 s72, s4, 192"); a("s_mul_i32 s63, s6, 48"); a("s_add_u32 s72, s72, s63"); a("s_mul_i32 s72, s72, 1280")
    a("s_mul_i32 s63, s7, 640"); a("s_add_u32 s72, s72, s63")
    a("s_lshl_b32 s73, s4, 6"); a("s_lshl_b32 s62, s6, 4"); a("s_add_u32 s73, s73, s62"); a("s_mul_i32 s73, s73, 1280")
    a("s_add_u32 s73, s73, s63")
    a("s_cmp_lt_u32 s4, 24"); a("s_cselect_b32 s73, s73, %d" % OOB)
    a("s_lshl_b32 s74, s4, 13"); a("s_add_u32 s74, s74, %d" % MB1_OFF)
    a("s_mul_i32 s62, s6, 192"); a("s_add_u32 s75, s74, s62"); a("s_add_u32 s76, s75, 4096")
    a("s_lshl_b32 s62, s5, 10"); a("s_add_u32 s77, s74, s62")
    a("s_lshl_b32 s78, s4, 2"); a("s_add_u32 s78, s78, s6"); a("s_mul_i32 s78, s78, 2560")
    a("s_mul_i32 s62, s7, 1280"); a("s_add_u32 s78, s78, s62"); a("s_add_u32 s78, s78, %d" % MB2_OFF)
    a("s_mul_i32 s79, s4, %d" % (8 * 1280))

    def kload(n):
        i, j = divmod(n, 3); r = 64 + 4 * n
        return vm.issue(f"buffer_load_dwordx4 v[{r}:{r+3}], v1, {K_}, s{64+i} offen offset:{j*128} nt")
    def vload(n):
        i, j = divmod(n, 3); r = 160 + 4 * n
        return vm.issue(f"buffer_load_dwordx4 v[{r}:{r+3}], v1, {V_}, s{64+i} offen offset:{j*128} nt")

    a(f"s_cmp_eq_u32 s3, {CW}")
    a("s_cbranch_scc1 L_ctl_clear")
    kid = {}
    for n in range(3): kid[n] = kload(n)
    a(f"v_mov_b32 v20, {L_FLAG}"); a("v_mov_b32 v21, 0")
    a("ds_write_b32 v20, v21")
    a("s_branch L_phaseA")
    a.label("L_ctl_clear")
    for r in range(20, 24): a(f"v_mov_b32 v{r}, -1")
    a(f"buffer_store_dwordx4 v[20:23], v18, {WS_}, s77 offen sc1")
    a(f"buffer_store_dwordx4 v[20:23], v18, {WS_}, s78 offen sc1")
    a("s_mov_b64 exec, 0xffff")
    a(f"buffer_store_dwordx4 v[20:23], v18, {WS_}, s78 offen offset:1024 sc1")
    a("s_mov_b64 exec, -1")
    a.label("L_phaseA")
    vm.wait_id(ix2)
    def unpack(src, dlo, dhi):
        a(f"v_lshlrev_b32 v{dlo}, 16, v{src}"); a(f"v_and_b32 v{dhi}, 0xffff0000, v{src}")
    for r in range(8): unpack(208 + r, 218 + 2 * r, 219 + 2 * r)
    def wave_sum(v, sdst):
        for m in ("quad_perm:[1,0,3,2]", "quad_perm:[2,3,0,1]", "row_half_mirror", "row_mirror"):
            a(f"v_add_f32_dpp v{v}, v{v}, v{v} {m} row_mask:0xf bank_mask:0xf")
        for k in range(4): a(f"v_readlane_b32 s{sdst+k}, v{v}, {16*k}")
        a(f"v_mov_b32 v{v}, s{sdst}")
        for k in range(1, 4): a(f"v_add_f32 v{v}, s{sdst+k}, v{v}")
    a("v_add_f32 v234, v218, v219")
    for r in range(220, 234): a(f"v_add_f32 v234, v234, v{r}")
    wave_sum(234, 80)
    a("v_mul_f32 v234, 0x3acccccd, v234")
    a("v_mov_b32 v235, 0")
    for r in range(218, 226):
        a(f"v_sub_f32 v236, v{r}, v234"); a("v_fmac_f32 v235, v236, v236")
    a("s_mov_b64 exec, 0xffff")
    for r in range(226, 234):
        a(f"v_sub_f32 v236, v{r}, v234"); a("v_fmac_f32 v235, v236, v236")
    a("s_mov_b64 exec, -1")
    wave_sum(235, 80)
    a("v_mul_f32 v235, 0x3acccccd, v235")
    a("v_cvt_pk_bf16_f32 v236, v234, v235")
    a("v_lshlrev_b32 v234, 16, v236")
    a("v_and_b32 v235, 0xffff0000, v236")
    a("v_add_f32 v235, 0x3727c5ac, v235")
    a("v_cvt_pk_bf16_f32 v235, v235, v235")
    a("v_lshlrev_b32 v235, 16, v235")
    a("v_sqrt_f32 v235, v235")
    a("v_cvt_pk_bf16_f32 v235, v235, v235")
    a("v_lshlrev_b32 v235, 16, v235")
    a("v_rcp_f32 v237, v235")
    unpack(216, 218, 219); unpack(217, 220, 221)
    for r in range(218, 222): a(f"v_sub_f32 v{r}, v{r}, v234")
    a("v_cvt_pk_bf16_f32 v222, v218, v219"); a("v_cvt_pk_bf16_f32 v223, v220, v221")
    unpack(222, 218, 219); unpack(223, 220, 221)
    for r in range(218, 222):
        a(f"v_mul_f32 v224, v{r}, v237")
        a(f"v_fma_f32 v225, -v224, v235, v{r}")
        a(f"v_fma_f32 v{r}, v225, v237, v224")
    a("v_cvt_pk_bf16_f32 v222, v218, v219"); a("v_cvt_pk_bf16_f32 v223, v220, v221")
    def lohi(src, d):
        a(f"v_and_b32 v{d}, 0xffff, v{src}"); a(f"v_lshlrev_b32 v{d+1}, 16, v{src}")
        a(f"v_lshrrev_b32 v{d+2}, 16, v{src}"); a(f"v_and_b32 v{d+3}, 0xffff0000, v{src}")
    lohi(222, 224); lohi(223, 228)
    for r in range(192, 208): a(f"v_mov_b32 v{r}, 0")
    for i in range(4):
        vm.wait_id(iwq[i])
        for r in range(4):
            a(f"v_dot2c_f32_bf16 v{192+2*r}, v{160+4*i+r}, v{224+2*i}")
            a(f"v_dot2c_f32_bf16 v{193+2*r}, v{160+4*i+r}, v{225+2*i}")
    a(f"ds_write_b128 v6, v[192:195] offset:{L_P1}")
    a(f"ds_write_b128 v6, v[196:199] offset:{L_P1+16}")
    vm.wait_id(iml[-1])
    for i in range(4):
        for r in range(4):
            a(f"v_dot2c_f32_bf16 v{200+2*r}, v{176+4*i+r}, v{224+2*i}")
            a(f"v_dot2c_f32_bf16 v{201+2*r}, v{176+4*i+r}, v{225+2*i}")
    a("s_mov_b64 exec, s[56:57]")
    a(f"ds_write_b128 v6, v[200:203] offset:{L_P1+768}")
    a(f"ds_write_b128 v6, v[204:207] offset:{L_P1+784}")
    a("s_mov_b64 exec, -1")
    a("s_waitcnt lgkmcnt(0)")
    a("s_barrier")
    stamp(1)
    a(f"s_cmp_eq_u32 s3, {CW}")
    a("s_cbranch_scc1 L_ctl")

    def stream(first_k, kid, T, tag, wait_flag):
        for n in range(first_k, 24):
            vm.throttle(T); kid[n] = kload(n)
        stamp(2)
        if wait_flag:
            a(f"v_mov_b32 v20, {L_FLAG}")
            a(f"s_mov_b32 s63, {SPIN_MAX}")
            a.label(f"L_flag_{tag}")
            a("ds_read_b32 v21, v20")
            a("s_waitcnt lgkmcnt(0)")
            a("v_readfirstlane_b32 s62, v21")
            a("s_cmp_eq_u32 s62, 1")
            a(f"s_cbranch_scc1 L_flagok_{tag}")
            a("s_sleep 2")
            a("s_sub_u32 s63, s63, 1")
            a("s_cmp_lg_u32 s63, 0")
            a(f"s_cbranch_scc1 L_flag_{tag}")
            a.label(f"L_flagok_{tag}")
        stamp(3)
        for j in range(3):
            a(f"ds_read_b128 v[{20+4*j}:{23+4*j}], v13 offset:{L_QB+128*j}")
        a(f"ds_read_b64 v[56:57], v16 offset:{L_HB}")
        vid = {}; lid = {}
        def t_score(i0):
            def f():
                if i0 == 0: a("s_waitcnt lgkmcnt(0)")
                for i in (i0, i0 + 1): a(f"v_mov_b32 v{32+i}, 0")
                for j in range(3):
                    for r in range(4):
                        for i in (i0, i0 + 1):
                            a(f"v_dot2c_f32_bf16 v{32+i}, v{64+12*i+4*j+r}, v{20+4*j+r}")
                for m in ("quad_perm:[1,0,3,2]", "quad_perm:[2,3,0,1]", "row_half_mirror"):
                    for i in (i0, i0 + 1):
                        a(f"v_add_f32_dpp v{32+i}, v{32+i}, v{32+i} {m} row_mask:0xf bank_mask:0xf")
                a(f"v_cvt_pk_bf16_f32 v58, v{32+i0}, v{33+i0}")
                unpack(58, 32 + i0, 33 + i0)
                a(f"v_mul_f32 v{32+i0}, {SCALE:#x}, v{32+i0}"); a(f"v_mul_f32 v{33+i0}, {SCALE:#x}, v{33+i0}")
                a(f"v_cvt_pk_bf16_f32 v58, v{32+i0}, v{33+i0}")
                unpack(58, 32 + i0, 33 + i0)
                if i0 == 0:
                    for r in range(64, 88): a(f"v_mov_b32 v{r}, 0")
            return f
        def t_softmax():
            a("v_max3_f32 v58, v32, v33, v34"); a("v_max3_f32 v58, v58, v35, v36")
            a("v_max3_f32 v58, v58, v37, v38"); a("v_max_f32 v58, v58, v39")
            a("v_max_f32_dpp v58, v58, v58 row_ror:8 row_mask:0xf bank_mask:0xf")
            a("v_mov_b32 v59, v58"); a("v_permlane16_swap_b32 v58, v59"); a("v_max_f32 v58, v58, v59")
            a("v_mov_b32 v59, v58"); a("v_permlane32_swap_b32 v58, v59"); a("v_max_f32 v58, v58, v59")
            a(f"v_mul_f32 v60, {LOG2E:#x}, v58")
            a(f"s_mov_b32 s62, {LOG2E:#x}")
            for i in range(8): a(f"v_fma_f32 v{32+i}, v{32+i}, s62, -v60")
            for i in range(8): a(f"v_exp_f32 v{32+i}, v{32+i}")
            for i in range(0, 8, 2):
                a(f"v_cvt_pk_bf16_f32 v58, v{32+i}, v{33+i}")
                lohi(58, 40 + 2 * i)
            a("v_add_f32 v61, v41, v43")
            for i in range(2, 8): a(f"v_add_f32 v61, v61, v{41+2*i}")
            a("v_add_f32_dpp v61, v61, v61 row_ror:8 row_mask:0xf bank_mask:0xf")
            a("v_mov_b32 v59, v61"); a("v_permlane16_swap_b32 v61, v59"); a("v_add_f32 v61, v61, v59")
            a("v_mov_b32 v59, v61"); a("v_permlane32_swap_b32 v61, v59"); a("v_add_f32 v61, v61, v59")
        def t_pv(n):
            def f():
                i, j = divmod(n, 3)
                for r in range(4):
                    a(f"v_dot2c_f32_bf16 v{64+8*j+2*r}, v{160+4*n+r}, v{40+2*i}")
                    a(f"v_dot2c_f32_bf16 v{65+8*j+2*r}, v{160+4*n+r}, v{41+2*i}")
            return f
        tasks = [(lambda i0=i0: kid[3 * i0 + 5], t_score(i0)) for i0 in (0, 2, 4, 6)]
        tasks.append((lambda: -1, t_softmax))
        tasks += [(lambda n=n: vid.get(n, 10**9), t_pv(n)) for n in range(24)]
        late = [f"buffer_load_dwordx4 v[{104+4*i}:{107+4*i}], v5, {W2_}, s73 offen offset:{1280*i} nt" for i in range(2)]
        late += [f"buffer_load_dwordx4 v[{88+4*i}:{91+4*i}], v4, {WO_}, s72 offen offset:{1280*i} nt" for i in range(4)]
        done_scores = 0
        for n in range(30):
            vm.throttle(T)
            if n < 24: vid[n] = vload(n)
            else:
                assert done_scores >= 4
                vm.issue(late[n - 24])
            b = budget
            while b > 0 and tasks and tasks[0][0]() < vm.done:
                tasks.pop(0)[1](); b -= 1; done_scores += 1
        while tasks:
            req, f = tasks.pop(0)
            if req() >= 0: vm.wait_id(req())
            f()
        stamp(4)

    stream(3, kid, T, "b", True)
    a("s_branch L_tail")
    a.label("L_ctl")
    vm.reset()
    for rg in range(20):
        a(f"ds_read_b128 v[{64+4*rg}:{67+4*rg}], v18 offset:{L_P1+1280*rg}")
        a(f"ds_read_b128 v[{160+4*rg}:{163+4*rg}], v18 offset:{L_P1+1280*rg+256}")
        if rg % 4 == 3 and rg > 3: a("s_waitcnt lgkmcnt(4)")
        if rg == 3: a("s_waitcnt lgkmcnt(4)")
    a("s_waitcnt lgkmcnt(0)")
    for rg in range(1, 20):
        for r in range(4):
            a(f"v_add_f32 v{64+r}, v{64+r}, v{64+4*rg+r}")
            a(f"v_add_f32 v{160+r}, v{160+r}, v{160+4*rg+r}")
    a("s_mul_i32 s62, s5, 1280"); a("s_add_u32 s62, s62, s79")
    a(f"buffer_store_dwordx4 v[64:67], v18, {WS_}, s62 offen sc1")
    a("s_mov_b32 exec_lo, 0"); a("s_mov_b32 exec_hi, 0xffff0000")
    a(f"buffer_store_dwordx4 v[160:163], v18, {WS_}, s62 offen offset:256 sc1")
    a("s_mov_b64 exec, 1")
    a("v_mov_b32 v20, 1"); a("s_lshl_b32 s62, s4, 2"); a("v_mov_b32 v21, s62")
    a("s_waitcnt vmcnt(0)")
    a(f"buffer_atomic_add v20, v21, {DBG_}, 0 offen")
    a("s_mov_b64 exec, -1")
    a("v_and_b32 v21, 31, v11"); a("v_lshlrev_b32 v21, 2, v21")
    a(f"s_mov_b32 s63, {SPIN_MAX}")
    a.label("L_cpoll")
    a(f"buffer_load_dword v20, v21, {DBG_}, 0 offen sc1")
    a("s_waitcnt vmcnt(0)")
    a("v_cmp_ne_u32 vcc, 8, v20")
    a("s_cmp_eq_u64 vcc, 0")
    a("s_cbranch_scc1 L_cok")
    a("s_sleep 4")
    a("s_sub_u32 s63, s63, 1"); a("s_cmp_lg_u32 s63, 0")
    a("s_cbranch_scc1 L_cpoll")
    a.label("L_cok")
    stamp(5)
    a("s_mov_b32 s62, s79")
    for s in range(8):
        a(f"buffer_load_dwordx4 v[{64+4*s}:{67+4*s}], v18, {WS_}, s62 offen sc1")
        a("s_mov_b32 exec_lo, 0"); a("s_mov_b32 exec_hi, 0xffff0000")
        a(f"buffer_load_dwordx4 v[{160+4*s}:{163+4*s}], v18, {WS_}, s62 offen offset:256 sc1")
        a("s_mov_b64 exec, -1")
        if s < 7: a("s_add_u32 s62, s62, 1280")
    a("s_waitcnt vmcnt(0)")
    for s in range(1, 8):
        for r in range(4):
            a(f"v_add_f32 v{64+r}, v{64+r}, v{64+4*s+r}")
            a(f"v_add_f32 v{160+r}, v{160+r}, v{160+4*s+r}")
    a("v_cvt_pk_bf16_f32 v20, v64, v65"); a("v_cvt_pk_bf16_f32 v21, v66, v67")
    a("v_cvt_pk_bf16_f32 v22, v160, v161"); a("v_cvt_pk_bf16_f32 v23, v162, v163")
    a("v_lshlrev_b32 v24, 3, v11")
    a("s_mov_b32 exec_lo, -1"); a("s_mov_b32 exec_hi, 0xffff")
    a(f"ds_write_b64 v24, v[20:21] offset:{L_QB}")
    a("s_mov_b64 exec, -1")
    unpack(20, 64, 65); unpack(21, 66, 67); unpack(22, 160, 161); unpack(23, 162, 163)
    for r in range(4):
        a(f"v_mul_f32 v{68+r}, {LOG2E|0x80000000:#x}, v{64+r}")
    for r in range(4): a(f"v_exp_f32 v{68+r}, v{68+r}")
    for r in range(4): a(f"v_add_f32 v{68+r}, 1.0, v{68+r}")
    for r in range(4): a(f"v_rcp_f32 v{72+r}, v{68+r}")
    for r in range(4):
        a(f"v_mul_f32 v{76+r}, v{64+r}, v{72+r}")
    a("v_cvt_pk_bf16_f32 v20, v76, v77"); a("v_cvt_pk_bf16_f32 v21, v78, v79")
    unpack(20, 64, 65); unpack(21, 66, 67)
    for r in range(4): a(f"v_mul_f32 v{64+r}, v{64+r}, v{160+r}")
    a("v_cvt_pk_bf16_f32 v20, v64, v65"); a("v_cvt_pk_bf16_f32 v21, v66, v67")
    a("v_and_b32 v64, 0xffff, v20"); a("v_lshrrev_b32 v65, 16, v20")
    a("v_and_b32 v66, 0xffff, v21"); a("v_lshrrev_b32 v67, 16, v21")
    a("s_mov_b32 exec_lo, 0"); a("s_mov_b32 exec_hi, 0xffff0000")
    a(f"ds_write_b128 v18, v[64:67] offset:{L_HB-768}")
    a("s_mov_b64 exec, -1")
    a("s_waitcnt lgkmcnt(0)")
    a(f"v_mov_b32 v20, {L_FLAG}"); a("v_mov_b32 v21, 1")
    a("ds_write_b32 v20, v21")
    stream(0, {}, TC, "c", False)

    a.label("L_tail")
    for x in range(12):
        a(f"v_permlane32_swap_b32 v{64+x}, v{76+x}")
    for x in range(12): a(f"v_add_f32 v{64+x}, v{64+x}, v{76+x}")
    for x in range(6): a(f"v_permlane16_swap_b32 v{64+x}, v{70+x}")
    for x in range(6): a(f"v_add_f32 v{64+x}, v{64+x}, v{70+x}")
    for x in range(6): a(f"v_add_f32_dpp v{64+x}, v{64+x}, v{64+x} row_ror:8 row_mask:0xf bank_mask:0xf")
    a("v_mul_u32_u24 v58, 6, v13")
    a("v_lshrrev_b32 v59, 4, v11")
    a("v_mul_u32_u24 v59, 24, v59")
    a("s_mul_i32 s62, s3, 768")
    a("v_add3_u32 v58, v58, v59, s62")
    a("s_lshl_b32 s62, s3, 3"); a("v_mov_b32 v59, s62")
    for x in range(3): a(f"ds_write_b64 v58, v[{64+2*x}:{65+2*x}] offset:{L_OP+8*x}")
    a(f"ds_write_b64 v59, v[60:61] offset:{L_ML}")
    a("s_waitcnt lgkmcnt(0)")
    a("s_barrier")
    a("s_cmp_lg_u32 s3, 0")
    a("s_cbranch_scc1 L_poll1")
    a("v_lshrrev_b32 v58, 4, v11"); a("v_lshlrev_b32 v58, 5, v58")
    a("v_bfe_u32 v59, v11, 1, 3"); a("v_mul_u32_u24 v59, 96, v59")
    a("v_and_b32 v60, 1, v11"); a("v_lshlrev_b32 v60, 4, v60")
    a("v_add3_u32 v58, v58, v59, v60")
    a("v_mov_b32 v59, 0")
    for k in range(4): a(f"ds_read_b128 v[{20+4*k}:{23+4*k}], v59 offset:{L_ML+16*k}")
    for w in range(8): a(f"ds_read_b128 v[{120+4*w}:{123+4*w}], v58 offset:{L_OP+768*w}")
    a("s_waitcnt lgkmcnt(8)")
    a("v_max3_f32 v60, v20, v22, v24"); a("v_max3_f32 v60, v60, v26, v28")
    a("v_max3_f32 v60, v60, v30, v32"); a("v_max_f32 v60, v60, v34")
    for w in range(8): a(f"v_sub_f32 v{20+2*w}, v{20+2*w}, v60")
    for w in range(8): a(f"v_exp_f32 v{20+2*w}, v{20+2*w}")
    a("v_mul_f32 v61, v20, v21")
    for w in range(1, 8): a(f"v_fmac_f32 v61, v{20+2*w}, v{21+2*w}")
    a("s_waitcnt lgkmcnt(0)")
    for r in range(4): a(f"v_mul_f32 v{64+r}, v20, v{120+r}")
    for w in range(1, 8):
        for r in range(4): a(f"v_fmac_f32 v{64+r}, v{20+2*w}, v{120+4*w+r}")
    a("s_mov_b32 s62, 0"); a("s_mov_b32 s63, 0x10000")
    a("v_cndmask_b32 v64, v64, v60, s[62:63]"); a("v_cndmask_b32 v65, v65, v61, s[62:63]")
    a("v_cndmask_b32 v66, v66, v60, s[62:63]"); a("v_cndmask_b32 v67, v67, v61, s[62:63]")
    for r in range(4): a(f"v_min_u32 v{64+r}, -2, v{64+r}")
    a("s_mov_b32 exec_lo, -1"); a("s_mov_b32 exec_hi, 0x1ffff")
    a(f"buffer_store_dwordx4 v[64:67], v18, {WS_}, s77 offen sc1")
    a("s_mov_b64 exec, -1")
    a.label("L_poll1")
    def polls1():
        for s in range(8):
            so = "s75" if s < 4 else "s76"
            a(f"buffer_load_dwordx4 v[{120+4*s}:{123+4*s}], v8, {WS_}, {so} offen offset:{(s&3)*1024} sc1")
        a(f"buffer_load_dwordx2 v[152:153], v9, {WS_}, s74 offen offset:768 sc1")
    polls1()
    a(f"s_mov_b32 s63, {SPIN_MAX}")
    a("v_lshlrev_b32 v58, 16, v56"); a("v_lshlrev_b32 v59, 16, v57")
    for r in range(112, 120): a(f"v_mov_b32 v{r}, 0")
    a("s_waitcnt vmcnt(9)")
    for i in range(2):
        for r in range(4):
            a(f"v_dot2c_f32_bf16 v{112+2*r}, v{104+4*i+r}, v{56+i}")
            a(f"v_dot2c_f32_bf16 v{113+2*r}, v{104+4*i+r}, v{58+i}")
    a.label("L_chk1")
    a("s_waitcnt vmcnt(0)")
    a("v_max_u32 v58, v152, v153")
    for r in range(120, 152, 2): a(f"v_max3_u32 v58, v58, v{r}, v{r+1}")
    a("v_cmp_eq_u32 vcc, -1, v58")
    a("s_cmp_eq_u64 vcc, 0")
    a("s_cbranch_scc1 L_go1")
    a("s_sub_u32 s63, s63, 1"); a("s_cmp_eq_u32 s63, 0")
    a("s_cbranch_scc1 L_go1")
    a("s_sleep 1")
    polls1()
    a("s_branch L_chk1")
    a.label("L_go1")
    stamp(5) if False else None
    a("v_mov_b32 v58, v152")
    for m in ("quad_perm:[1,0,3,2]", "quad_perm:[2,3,0,1]", "row_half_mirror"):
        a(f"v_max_f32_dpp v58, v58, v58 {m} row_mask:0xf bank_mask:0xf")
    a("v_sub_f32 v58, v152, v58"); a("v_exp_f32 v58, v58")
    a("v_mul_f32 v59, v58, v153")
    for m in ("quad_perm:[1,0,3,2]", "quad_perm:[2,3,0,1]", "row_half_mirror"):
        a(f"v_add_f32_dpp v59, v59, v59 {m} row_mask:0xf bank_mask:0xf")
    a("v_rcp_f32 v59, v59"); a("v_mul_f32 v58, v58, v59")
    for s in range(8): a(f"v_readlane_b32 s{80+s}, v58, {s}")
    for r in range(4): a(f"v_mul_f32 v{64+r}, s80, v{120+r}")
    for s in range(1, 8):
        for r in range(4): a(f"v_fmac_f32 v{64+r}, s{80+s}, v{120+4*s+r}")
    a("v_cvt_pk_bf16_f32 v58, v64, v65"); a("v_cvt_pk_bf16_f32 v59, v66, v67")
    lohi(58, 68); lohi(59, 72)
    for i in range(4):
        for r in range(4):
            a(f"v_dot2c_f32_bf16 v{112+2*r}, v{88+4*i+r}, v{68+2*i}")
            a(f"v_dot2c_f32_bf16 v{113+2*r}, v{88+4*i+r}, v{69+2*i}")
    a(f"ds_write_b128 v7, v[112:115] offset:{L_RED}")
    a(f"ds_write_b128 v7, v[116:119] offset:{L_RED+16}")
    a("s_waitcnt lgkmcnt(0)")
    a("s_barrier")
    a("s_cmp_gt_u32 s3, 1")
    a("s_cbranch_scc1 L_fin")
    a("v_lshlrev_b32 v58, 4, v0")
    a("v_cmp_gt_u32 vcc, 80, v0")
    a("s_mov_b64 exec, vcc")
    for g in range(12): a(f"ds_read_b128 v[{120+4*g}:{123+4*g}], v58 offset:{L_RED+1280*g}") if g < 8 else a(f"ds_read_b128 v[{64+4*(g-8)}:{67+4*(g-8)}], v58 offset:{L_RED+1280*g}")
    a("s_waitcnt lgkmcnt(0)")
    for g in range(1, 8):
        for r in range(4): a(f"v_add_f32 v{120+r}, v{120+r}, v{120+4*g+r}")
    for g in range(4):
        for r in range(4): a(f"v_add_f32 v{120+r}, v{120+r}, v{64+4*g+r}")
    for r in range(4): a(f"v_min_u32 v{120+r}, -2, v{120+r}")
    a(f"buffer_store_dwordx4 v[120:123], v58, {WS_}, s78 offen sc1")
    a("s_mov_b64 exec, -1")
    a.label("L_fin")
    stamp(6)
    a("s_cmp_ge_u32 s2, 20")
    a("s_cbranch_scc1 L_done")
    a("v_lshrrev_b32 v58, 3, v0"); a("v_mul_u32_u24 v58, 2560, v58")
    a("v_add_u32 v58, v58, v13")
    a("s_lshl_b32 s62, s2, 7"); a("s_add_u32 s62, s62, %d" % MB2_OFF); a("s_add_u32 s61, s62, %d" % (64 * 2560))
    a("v_lshlrev_b32 v59, 2, v11"); a("s_lshl_b32 s60, s2, 6")
    a(f"buffer_load_dword v57, v59, {X_}, s60 offen")
    a(f"s_mov_b32 s63, {SPIN_MAX}")
    a.label("L_poll2")
    a(f"buffer_load_dwordx4 v[64:67], v58, {WS_}, s62 offen sc1")
    a(f"buffer_load_dwordx4 v[68:71], v58, {WS_}, s61 offen sc1")
    a("s_waitcnt vmcnt(0)")
    a("v_max3_u32 v60, v64, v65, v66"); a("v_max3_u32 v60, v60, v67, v68"); a("v_max3_u32 v60, v60, v69, v70"); a("v_max_u32 v60, v60, v71")
    a("v_cmp_eq_u32 vcc, -1, v60")
    a("s_cmp_eq_u64 vcc, 0")
    a("s_cbranch_scc1 L_go2")
    a("s_sub_u32 s63, s63, 1"); a("s_cmp_eq_u32 s63, 0")
    a("s_cbranch_scc1 L_go2")
    a("s_sleep 1")
    a("s_branch L_poll2")
    a.label("L_go2")
    for r in range(4): a(f"v_add_f32 v{64+r}, v{64+r}, v{68+r}")
    a("v_permlane32_swap_b32 v64, v66"); a("v_permlane32_swap_b32 v65, v67")
    a("v_add_f32 v64, v64, v66"); a("v_add_f32 v65, v65, v67")
    a("v_permlane16_swap_b32 v64, v65"); a("v_add_f32 v64, v64, v65")
    a("v_add_f32_dpp v64, v64, v64 row_ror:8 row_mask:0xf bank_mask:0xf")
    a("v_lshrrev_b32 v60, 4, v11"); a("v_lshlrev_b32 v60, 2, v60")
    a("s_lshl_b32 s62, s3, 7")
    a("v_add3_u32 v60, v60, v13, s62")
    a(f"ds_write_b32 v60, v64 offset:{L_FIN}")
    a("s_waitcnt lgkmcnt(0)")
    a("s_barrier")
    a("s_cmp_lg_u32 s3, 0")
    a("s_cbranch_scc1 L_done")
    a("s_mov_b64 exec, 0xffff")
    a("v_lshlrev_b32 v60, 3, v11")
    for w in range(8): a(f"ds_read_b64 v[{64+2*w}:{65+2*w}], v60 offset:{L_FIN+128*w}")
    unpack(57, 80, 81)
    a("s_waitcnt lgkmcnt(0)")
    for w in range(1, 8):
        a(f"v_add_f32 v64, v64, v{64+2*w}"); a(f"v_add_f32 v65, v65, v{65+2*w}")
    a("v_add_f32 v64, v64, v80"); a("v_add_f32 v65, v65, v81")
    a("v_cvt_pk_bf16_f32 v64, v64, v65")
    a(f"buffer_store_dword v64, v59, {OUT_}, s60 offen")
    a("s_mov_b64 exec, -1")
    a.label("L_done")
    if stamps:
        a("s_memrealtime s[86:87]")
        a("s_cmp_eq_u32 s3, 0"); a("s_cselect_b32 s62, 0, 1")
        a(f"s_cmp_eq_u32 s3, {CW}"); a("s_cselect_b32 s63, 0, 1")
        a("s_and_b32 s63, s63, s62"); a("s_cmp_eq_u32 s63, 1"); a("s_cbranch_scc1 L_end")
        a("s_waitcnt lgkmcnt(0)")
        for i in range(7):
            a(f"v_mov_b32 v{64+2*i}, s{88+2*i}"); a(f"v_mov_b32 v{65+2*i}, s{89+2*i}")
        a("v_mov_b32 v78, s86"); a("v_mov_b32 v79, s87")
        a("s_lshl_b32 s63, s2, 7"); a("s_lshl_b32 s62, s62, 6"); a("s_add_u32 s63, s63, s62"); a(f"s_add_u32 s63, s63, {STAMP_OFF}")
        a("v_mov_b32 v58, 0"); a("s_mov_b64 exec, 1")
        for i in range(4): a(f"buffer_store_dwordx4 v[{64+4*i}:{67+4*i}], v58, {WS_}, s63 offen offset:{16*i}")
    a.label("L_end")
    a("s_endpgm")
    R('.section .rodata,"a"'); R(".p2align 6"); R(f".amdhsa_kernel {KN}")
    R("  .amdhsa_next_free_vgpr 256"); R("  .amdhsa_next_free_sgpr 102"); R("  .amdhsa_accum_offset 256")
    R("  .amdhsa_group_segment_fixed_size 0"); R("  .amdhsa_kernarg_size 96"); R("  .amdhsa_user_sgpr_count 2")
    R("  .amdhsa_user_sgpr_kernarg_segment_ptr 1"); R("  .amdhsa_system_sgpr_workgroup_id_x 1"); R(".end_amdhsa_kernel")
    open(fname, "w").write(a.text())

if __name__ == "__main__":
    gen("k1.s")
    gen("k1_st.s", stamps=True)
```

```python
import sys, argparse
from asmlib import Asm
KN = "parallel_sum__sliding_block_cached__glu_gated_swiglu__decode_kernel"

QP_OFF, MB1_OFF, MB2_OFF = 0, 0x80000, 0x100000
STAMP_OFF = 64 << 20
L_P1 = 0
L_QB = 28160
L_HB = 28672
L_FLAG = 28928
L_OP = 29184
L_ML = 35584
L_RED = 35840
L_FIN = 52480
LDS_SIZE = 53760
OOB = 0x40000000
LOG2E = 0x3fb8aa3b
SCALE = 0x3d93cd3a
SPIN_MAX = 1 << 20

K_, V_, WS_, WQ_, WO_, W1_, W3_, W2_, X_, OUT_, DBG_ = [f"s[{i}:{i+3}]" for i in range(8, 52, 4)]

class VM:
    def __init__(self, a):
        self.a = a; self.n = 0; self.done = 0
    def issue(self, s):
        self.a(s); self.n += 1; return self.n - 1
    def wait_id(self, i):
        if i < self.done: return
        self.a(f"s_waitcnt vmcnt({self.n - 1 - i})"); self.done = i + 1
    def throttle(self, T):
        if self.n - self.done > T - 1:
            self.a(f"s_waitcnt vmcnt({T-1})"); self.done = self.n - (T - 1)
    def reset(self):
        self.n = 0; self.done = 0

def gen(fname, T=3, TC=5, stamps=False, budget=2, CW=7, pol='nt'):
    a = Asm()
    R = a.raw
    R("; fused decode: layernorm + q-proj + sliding-window attention + out-proj + swiglu MLP")
    R(f"; @launch grid=(256,1,1) block=(512,1,1) lds={LDS_SIZE}")
    R('.amdgcn_target "amdgcn-amd-amdhsa--gfx950"')
    R(".text"); R(f".globl {KN}"); R(".p2align 8"); R(f".type {KN},@function"); R(f"{KN}:")
    nst = [0]
    def stamp(i):
        if stamps:
            a(f"s_memrealtime s[{88+2*i}:{89+2*i}]")
    a("s_cmp_ge_u32 s2, 256")
    a("s_cbranch_scc1 L_end")
    stamp(0)
    a("s_load_dwordx16 s[64:79], s[0:1], 0")
    a("s_load_dwordx8 s[80:87], s[0:1], 64")
    a("v_lshrrev_b32 v10, 6, v0")
    a("v_and_b32 v11, 63, v0")
    a("v_readfirstlane_b32 s3, v10")
    a("s_and_b32 s4, s2, 31")
    a("s_lshr_b32 s5, s2, 5")
    a("s_lshr_b32 s6, s5, 1")
    a("s_and_b32 s7, s5, 1")
    a("v_lshrrev_b32 v12, 3, v11")
    a("v_mul_u32_u24 v12, 384, v12")
    a("v_and_b32 v13, 7, v11")
    a("v_lshl_add_u32 v1, v13, 4, v12")
    a("v_mul_u32_u24 v14, 2731, v0")
    a("v_lshrrev_b32 v14, 16, v14")
    a("v_mul_u32_u24 v15, 24, v14")
    a("v_sub_u32 v15, v0, v15")
    a("v_mov_b32 v19, %d" % OOB)
    a("v_cmp_gt_u32 vcc, 480, v0")
    a("v_mul_u32_u24 v2, 49152, v14")
    a("v_lshl_add_u32 v2, v15, 4, v2")
    a("v_cndmask_b32 v2, v19, v2, vcc")
    a("s_mov_b64 s[60:61], vcc")
    a("v_and_b32 v16, 7, v15")
    a("v_mul_u32_u24 v3, 12288, v14")
    a("v_lshl_add_u32 v3, v16, 4, v3")
    a("v_cmp_gt_u32 vcc, 8, v15")
    a("s_and_b64 s[52:53], vcc, s[60:61]")
    a("v_cmp_gt_u32 vcc, 16, v15")
    a("s_and_b64 s[56:57], vcc, s[60:61]")
    a("s_andn2_b64 s[54:55], s[56:57], s[52:53]")
    a("v_mul_u32_u24 v6, 1280, v14")
    a("v_lshl_add_u32 v6, v15, 5, v6")
    a("v_lshlrev_b32 v17, 3, v14")
    a("v_lshlrev_b32 v18, 4, v11")
    a("v_mul_u32_u24 v14, 1639, v0")
    a("v_lshrrev_b32 v14, 16, v14")
    a("v_mul_u32_u24 v15, 40, v14")
    a("v_sub_u32 v15, v0, v15")
    a("v_mul_u32_u24 v4, 5120, v14")
    a("v_lshl_add_u32 v4, v15, 4, v4")
    a("v_cndmask_b32 v4, v19, v4, s[60:61]")
    a("v_cmp_gt_u32 vcc, 320, v0")
    a("v_mul_u32_u24 v5, 2560, v14")
    a("v_lshl_add_u32 v5, v15, 4, v5")
    a("v_cndmask_b32 v5, v19, v5, vcc")
    a("v_mul_u32_u24 v7, 1280, v14")
    a("v_lshl_add_u32 v7, v15, 5, v7")
    a("v_lshlrev_b32 v8, 4, v14")
    a("v_lshlrev_b32 v9, 10, v13")
    a("v_min_u32 v16, 7, v14")
    a("v_lshlrev_b32 v16, 3, v16")
    a("s_lshl_b32 s62, s6, 6")
    a("v_add_u32 v16, s62, v16")
    a("v_lshlrev_b32 v13, 4, v13")
    a("s_waitcnt lgkmcnt(0)")
    def srd(base, ptr, size):
        a(f"s_mov_b32 s{base}, s{ptr}"); a(f"s_mov_b32 s{base+1}, s{ptr+1}")
        a(f"s_mov_b32 s{base+2}, {size}"); a(f"s_mov_b32 s{base+3}, 0x00020000")
    srd(40, 64, 1280)
    srd(20, 70, 7864320)
    vm = VM(a)
    a("s_mul_i32 s63, s5, 160")
    ix0 = vm.issue(f"buffer_load_dwordx4 v[208:211], v18, {X_}, 0 offen")
    ix1 = vm.issue(f"buffer_load_dwordx4 v[212:215], v18, {X_}, 0 offen offset:1024")
    ix2 = vm.issue(f"buffer_load_dwordx2 v[216:217], v17, {X_}, s63 offen")
    a("s_mul_i32 s63, s5, %d" % (80 * 12288))
    a("s_mul_i32 s62, s4, 384")
    a("s_add_u32 s63, s63, s62")
    iwq = []
    for i in range(4):
        iwq.append(vm.issue(f"buffer_load_dwordx4 v[{160+4*i}:{163+4*i}], v2, {WQ_}, s63 offen nt"))
        if i < 3: a("s_add_u32 s63, s63, 12288")
    srd(28, 76, 1966080); srd(32, 78, 1966080)
    a("s_mul_i32 s63, s5, %d" % (80 * 3072))
    a("s_lshl_b32 s62, s4, 7")
    a("s_add_u32 s63, s63, s62")
    a("s_cmp_lt_u32 s4, 24")
    a("s_cselect_b32 s63, s63, %d" % OOB)
    a("s_add_u32 s62, s63, 6144")
    iml = []
    for (msk, srdn) in (("s[52:53]", W1_), ("s[54:55]", W3_)):
        a(f"s_mov_b64 exec, {msk}")
        for i in range(4):
            so = "s63" if i < 2 else "s62"
            iml.append(vm.issue(f"buffer_load_dwordx4 v[{176+4*i}:{179+4*i}], v3, {srdn}, {so} offen offset:{(i&1)*3072} nt"))
    a("s_mov_b64 exec, -1")
    srd(8, 66, 402653184); srd(12, 68, 402653184); srd(16, 86, 1610612736)
    srd(24, 72, 7864320); srd(36, 80, 1966080); srd(44, 82, 1280); srd(48, 84, 256)
    a("s_mul_i32 s64, s4, 12582912")
    a("s_mul_i32 s65, s5, %d" % (512 * 384))
    a("s_mul_i32 s66, s3, %d" % (64 * 384))
    a("s_add_u32 s64, s64, s65"); a("s_add_u32 s64, s64, s66"); a("s_add_u32 s64, s64, %d" % (28672 * 384))
    for i in range(1, 8):
        a(f"s_add_u32 s{64+i}, s64, {i*3072}")
    a("s_mul_i32 s72, s4, 192"); a("s_mul_i32 s63, s6, 48"); a("s_add_u32 s72, s72, s63"); a("s_mul_i32 s72, s72, 1280")
    a("s_mul_i32 s63, s7, 640"); a("s_add_u32 s72, s72, s63")
    a("s_lshl_b32 s73, s4, 6"); a("s_lshl_b32 s62, s6, 4"); a("s_add_u32 s73, s73, s62"); a("s_mul_i32 s73, s73, 1280")
    a("s_add_u32 s73, s73, s63")
    a("s_cmp_lt_u32 s4, 24"); a("s_cselect_b32 s73, s73, %d" % OOB)
    a("s_lshl_b32 s74, s4, 13"); a("s_add_u32 s74, s74, %d" % MB1_OFF)
    a("s_mul_i32 s62, s6, 192"); a("s_add_u32 s75, s74, s62"); a("s_add_u32 s76, s75, 4096")
    a("s_lshl_b32 s62, s5, 10"); a("s_add_u32 s77, s74, s62")
    a("s_lshl_b32 s78, s4, 2"); a("s_add_u32 s78, s78, s6"); a("s_mul_i32 s78, s78, 2560")
    a("s_mul_i32 s62, s7, 1280"); a("s_add_u32 s78, s78, s62"); a("s_add_u32 s78, s78, %d" % MB2_OFF)
    a("s_mul_i32 s79, s4, %d" % (8 * 1280))

    def kload(n):
        i, j = divmod(n, 3); r = 64 + 4 * n
        return vm.issue(f"buffer_load_dwordx4 v[{r}:{r+3}], v1, {K_}, s{64+i} offen offset:{j*128} nt")
    def vload(n):
        i, j = divmod(n, 3); r = 160 + 4 * n
        return vm.issue(f"buffer_load_dwordx4 v[{r}:{r+3}], v1, {V_}, s{64+i} offen offset:{j*128} nt")

    a(f"s_cmp_eq_u32 s3, {CW}")
    a("s_cbranch_scc1 L_ctl_clear")
    kid = {}
    for n in range(3): kid[n] = kload(n)
    a(f"v_mov_b32 v20, {L_FLAG}"); a("v_mov_b32 v21, 0")
    a("ds_write_b32 v20, v21")
    a("s_branch L_phaseA")
    a.label("L_ctl_clear")
    for r in range(20, 24): a(f"v_mov_b32 v{r}, -1")
    a(f"buffer_store_dwordx4 v[20:23], v18, {WS_}, s77 offen sc1")
    a(f"buffer_store_dwordx4 v[20:23], v18, {WS_}, s78 offen sc1")
    a("s_mov_b64 exec, 0xffff")
    a(f"buffer_store_dwordx4 v[20:23], v18, {WS_}, s78 offen offset:1024 sc1")
    a("s_mov_b64 exec, -1")
    a.label("L_phaseA")
    vm.wait_id(ix2)
    def unpack(src, dlo, dhi):
        a(f"v_lshlrev_b32 v{dlo}, 16, v{src}"); a(f"v_and_b32 v{dhi}, 0xffff0000, v{src}")
    for r in range(8): unpack(208 + r, 218 + 2 * r, 219 + 2 * r)
    def wave_sum(v, sdst):
        for m in ("quad_perm:[1,0,3,2]", "quad_perm:[2,3,0,1]", "row_half_mirror", "row_mirror"):
            a(f"v_add_f32_dpp v{v}, v{v}, v{v} {m} row_mask:0xf bank_mask:0xf")
        for k in range(4): a(f"v_readlane_b32 s{sdst+k}, v{v}, {16*k}")
        a(f"v_mov_b32 v{v}, s{sdst}")
        for k in range(1, 4): a(f"v_add_f32 v{v}, s{sdst+k}, v{v}")
    a("v_add_f32 v234, v218, v219")
    for r in range(220, 234): a(f"v_add_f32 v234, v234, v{r}")
    wave_sum(234, 80)
    a("v_mul_f32 v234, 0x3acccccd, v234")
    a("v_mov_b32 v235, 0")
    for r in range(218, 226):
        a(f"v_sub_f32 v236, v{r}, v234"); a("v_fmac_f32 v235, v236, v236")
    a("s_mov_b64 exec, 0xffff")
    for r in range(226, 234):
        a(f"v_sub_f32 v236, v{r}, v234"); a("v_fmac_f32 v235, v236, v236")
    a("s_mov_b64 exec, -1")
    wave_sum(235, 80)
    a("v_mul_f32 v235, 0x3acccccd, v235")
    a("v_cvt_pk_bf16_f32 v236, v234, v235")
    a("v_lshlrev_b32 v234, 16, v236")
    a("v_and_b32 v235, 0xffff0000, v236")
    a("v_add_f32 v235, 0x3727c5ac, v235")
    a("v_cvt_pk_bf16_f32 v235, v235, v235")
    a("v_lshlrev_b32 v235, 16, v235")
    a("v_sqrt_f32 v235, v235")
    a("v_cvt_pk_bf16_f32 v235, v235, v235")
    a("v_lshlrev_b32 v235, 16, v235")
    a("v_rcp_f32 v237, v235")
    unpack(216, 218, 219); unpack(217, 220, 221)
    for r in range(218, 222): a(f"v_sub_f32 v{r}, v{r}, v234")
    a("v_cvt_pk_bf16_f32 v222, v218, v219"); a("v_cvt_pk_bf16_f32 v223, v220, v221")
    unpack(222, 218, 219); unpack(223, 220, 221)
    for r in range(218, 222):
        a(f"v_mul_f32 v224, v{r}, v237")
        a(f"v_fma_f32 v225, -v224, v235, v{r}")
        a(f"v_fma_f32 v{r}, v225, v237, v224")
    a("v_cvt_pk_bf16_f32 v222, v218, v219"); a("v_cvt_pk_bf16_f32 v223, v220, v221")
    def lohi(src, d):
        a(f"v_and_b32 v{d}, 0xffff, v{src}"); a(f"v_lshlrev_b32 v{d+1}, 16, v{src}")
        a(f"v_lshrrev_b32 v{d+2}, 16, v{src}"); a(f"v_and_b32 v{d+3}, 0xffff0000, v{src}")
    lohi(222, 224); lohi(223, 228)
    for r in range(192, 208): a(f"v_mov_b32 v{r}, 0")
    for i in range(4):
        vm.wait_id(iwq[i])
        for r in range(4):
            a(f"v_dot2c_f32_bf16 v{192+2*r}, v{160+4*i+r}, v{224+2*i}")
            a(f"v_dot2c_f32_bf16 v{193+2*r}, v{160+4*i+r}, v{225+2*i}")
    a(f"ds_write_b128 v6, v[192:195] offset:{L_P1}")
    a(f"ds_write_b128 v6, v[196:199] offset:{L_P1+16}")
    vm.wait_id(iml[-1])
    for i in range(4):
        for r in range(4):
            a(f"v_dot2c_f32_bf16 v{200+2*r}, v{176+4*i+r}, v{224+2*i}")
            a(f"v_dot2c_f32_bf16 v{201+2*r}, v{176+4*i+r}, v{225+2*i}")
    a("s_mov_b64 exec, s[56:57]")
    a(f"ds_write_b128 v6, v[200:203] offset:{L_P1+768}")
    a(f"ds_write_b128 v6, v[204:207] offset:{L_P1+784}")
    a("s_mov_b64 exec, -1")
    a("s_waitcnt lgkmcnt(0)")
    a("s_barrier")
    stamp(1)
    a(f"s_cmp_eq_u32 s3, {CW}")
    a("s_cbranch_scc1 L_ctl")

    def stream(first_k, kid, T, tag, wait_flag):
        for n in range(first_k, 24):
            vm.throttle(T); kid[n] = kload(n)
        stamp(2)
        if wait_flag:
            a(f"v_mov_b32 v20, {L_FLAG}")
            a(f"s_mov_b32 s63, {SPIN_MAX}")
            a.label(f"L_flag_{tag}")
            a("ds_read_b32 v21, v20")
            a("s_waitcnt lgkmcnt(0)")
            a("v_readfirstlane_b32 s62, v21")
            a("s_cmp_eq_u32 s62, 1")
            a(f"s_cbranch_scc1 L_flagok_{tag}")
            a("s_sleep 2")
            a("s_sub_u32 s63, s63, 1")
            a("s_cmp_lg_u32 s63, 0")
            a(f"s_cbranch_scc1 L_flag_{tag}")
            a.label(f"L_flagok_{tag}")
        stamp(3)
        for j in range(3):
            a(f"ds_read_b128 v[{20+4*j}:{23+4*j}], v13 offset:{L_QB+128*j}")
        a(f"ds_read_b64 v[56:57], v16 offset:{L_HB}")
        vid = {}; lid = {}
        def t_score(i0):
            def f():
                if i0 == 0: a("s_waitcnt lgkmcnt(0)")
                for i in (i0, i0 + 1): a(f"v_mov_b32 v{32+i}, 0")
                for j in range(3):
                    for r in range(4):
                        for i in (i0, i0 + 1):
                            a(f"v_dot2c_f32_bf16 v{32+i}, v{64+12*i+4*j+r}, v{20+4*j+r}")
                for m in ("quad_perm:[1,0,3,2]", "quad_perm:[2,3,0,1]", "row_half_mirror"):
                    for i in (i0, i0 + 1):
                        a(f"v_add_f32_dpp v{32+i}, v{32+i}, v{32+i} {m} row_mask:0xf bank_mask:0xf")
                a(f"v_cvt_pk_bf16_f32 v58, v{32+i0}, v{33+i0}")
                unpack(58, 32 + i0, 33 + i0)
                a(f"v_mul_f32 v{32+i0}, {SCALE:#x}, v{32+i0}"); a(f"v_mul_f32 v{33+i0}, {SCALE:#x}, v{33+i0}")
                a(f"v_cvt_pk_bf16_f32 v58, v{32+i0}, v{33+i0}")
                unpack(58, 32 + i0, 33 + i0)
                if i0 == 0:
                    for r in range(64, 88): a(f"v_mov_b32 v{r}, 0")
            return f
        def t_softmax():
            a("v_max3_f32 v58, v32, v33, v34"); a("v_max3_f32 v58, v58, v35, v36")
            a("v_max3_f32 v58, v58, v37, v38"); a("v_max_f32 v58, v58, v39")
            a("v_max_f32_dpp v58, v58, v58 row_ror:8 row_mask:0xf bank_mask:0xf")
            a("v_mov_b32 v59, v58"); a("v_permlane16_swap_b32 v58, v59"); a("v_max_f32 v58, v58, v59")
            a("v_mov_b32 v59, v58"); a("v_permlane32_swap_b32 v58, v59"); a("v_max_f32 v58, v58, v59")
            a(f"v_mul_f32 v60, {LOG2E:#x}, v58")
            a(f"s_mov_b32 s62, {LOG2E:#x}")
            for i in range(8): a(f"v_fma_f32 v{32+i}, v{32+i}, s62, -v60")
            for i in range(8): a(f"v_exp_f32 v{32+i}, v{32+i}")
            for i in range(0, 8, 2):
                a(f"v_cvt_pk_bf16_f32 v58, v{32+i}, v{33+i}")
                lohi(58, 40 + 2 * i)
            a("v_add_f32 v61, v41, v43")
            for i in range(2, 8): a(f"v_add_f32 v61, v61, v{41+2*i}")
            a("v_add_f32_dpp v61, v61, v61 row_ror:8 row_mask:0xf bank_mask:0xf")
            a("v_mov_b32 v59, v61"); a("v_permlane16_swap_b32 v61, v59"); a("v_add_f32 v61, v61, v59")
            a("v_mov_b32 v59, v61"); a("v_permlane32_swap_b32 v61, v59"); a("v_add_f32 v61, v61, v59")
        def t_pv(n):
            def f():
                i, j = divmod(n, 3)
                for r in range(4):
                    a(f"v_dot2c_f32_bf16 v{64+8*j+2*r}, v{160+4*n+r}, v{40+2*i}")
                    a(f"v_dot2c_f32_bf16 v{65+8*j+2*r}, v{160+4*n+r}, v{41+2*i}")
            return f
        tasks = [(lambda i0=i0: kid[3 * i0 + 5], t_score(i0)) for i0 in (0, 2, 4, 6)]
        tasks.append((lambda: -1, t_softmax))
        tasks += [(lambda n=n: vid.get(n, 10**9), t_pv(n)) for n in range(24)]
        late = [f"buffer_load_dwordx4 v[{104+4*i}:{107+4*i}], v5, {W2_}, s73 offen offset:{1280*i} nt" for i in range(2)]
        late += [f"buffer_load_dwordx4 v[{88+4*i}:{91+4*i}], v4, {WO_}, s72 offen offset:{1280*i} nt" for i in range(4)]
        done_scores = 0
        for n in range(30):
            vm.throttle(T)
            if n < 24: vid[n] = vload(n)
            else:
                assert done_scores >= 4
                vm.issue(late[n - 24])
            b = budget
            while b > 0 and tasks and tasks[0][0]() < vm.done:
                tasks.pop(0)[1](); b -= 1; done_scores += 1
        while tasks:
            req, f = tasks.pop(0)
            if req() >= 0: vm.wait_id(req())
            f()
        stamp(4)

    stream(3, kid, T, "b", True)
    a("s_branch L_tail")
    a.label("L_ctl")
    vm.reset()
    for rg in range(20):
        a(f"ds_read_b128 v[{64+4*rg}:{67+4*rg}], v18 offset:{L_P1+1280*rg}")
        a(f"ds_read_b128 v[{160+4*rg}:{163+4*rg}], v18 offset:{L_P1+1280*rg+256}")
        if rg % 4 == 3 and rg > 3: a("s_waitcnt lgkmcnt(4)")
        if rg == 3: a("s_waitcnt lgkmcnt(4)")
    a("s_waitcnt lgkmcnt(0)")
    for rg in range(1, 20):
        for r in range(4):
            a(f"v_add_f32 v{64+r}, v{64+r}, v{64+4*rg+r}")
            a(f"v_add_f32 v{160+r}, v{160+r}, v{160+4*rg+r}")
    a("s_mul_i32 s62, s5, 1280"); a("s_add_u32 s62, s62, s79")
    a(f"buffer_store_dwordx4 v[64:67], v18, {WS_}, s62 offen sc1")
    a("s_mov_b32 exec_lo, 0"); a("s_mov_b32 exec_hi, 0xffff0000")
    a(f"buffer_store_dwordx4 v[160:163], v18, {WS_}, s62 offen offset:256 sc1")
    a("s_mov_b64 exec, 1")
    a("v_mov_b32 v20, 1"); a("s_lshl_b32 s62, s4, 2"); a("v_mov_b32 v21, s62")
    a("s_waitcnt vmcnt(0)")
    a(f"buffer_atomic_add v20, v21, {DBG_}, 0 offen")
    a("s_mov_b64 exec, -1")
    a("v_and_b32 v21, 31, v11"); a("v_lshlrev_b32 v21, 2, v21")
    a(f"s_mov_b32 s63, {SPIN_MAX}")
    a.label("L_cpoll")
    a(f"buffer_load_dword v20, v21, {DBG_}, 0 offen sc1")
    a("s_waitcnt vmcnt(0)")
    a("v_cmp_ne_u32 vcc, 8, v20")
    a("s_cmp_eq_u64 vcc, 0")
    a("s_cbranch_scc1 L_cok")
    a("s_sleep 4")
    a("s_sub_u32 s63, s63, 1"); a("s_cmp_lg_u32 s63, 0")
    a("s_cbranch_scc1 L_cpoll")
    a.label("L_cok")
    stamp(5)
    a("s_mov_b32 s62, s79")
    for s in range(8):
        a(f"buffer_load_dwordx4 v[{64+4*s}:{67+4*s}], v18, {WS_}, s62 offen sc1")
        a("s_mov_b32 exec_lo, 0"); a("s_mov_b32 exec_hi, 0xffff0000")
        a(f"buffer_load_dwordx4 v[{160+4*s}:{163+4*s}], v18, {WS_}, s62 offen offset:256 sc1")
        a("s_mov_b64 exec, -1")
        if s < 7: a("s_add_u32 s62, s62, 1280")
    a("s_waitcnt vmcnt(0)")
    for s in range(1, 8):
        for r in range(4):
            a(f"v_add_f32 v{64+r}, v{64+r}, v{64+4*s+r}")
            a(f"v_add_f32 v{160+r}, v{160+r}, v{160+4*s+r}")
    a("v_cvt_pk_bf16_f32 v20, v64, v65"); a("v_cvt_pk_bf16_f32 v21, v66, v67")
    a("v_cvt_pk_bf16_f32 v22, v160, v161"); a("v_cvt_pk_bf16_f32 v23, v162, v163")
    a("v_lshlrev_b32 v24, 3, v11")
    a("s_mov_b32 exec_lo, -1"); a("s_mov_b32 exec_hi, 0xffff")
    a(f"ds_write_b64 v24, v[20:21] offset:{L_QB}")
    a("s_mov_b64 exec, -1")
    unpack(20, 64, 65); unpack(21, 66, 67); unpack(22, 160, 161); unpack(23, 162, 163)
    for r in range(4):
        a(f"v_mul_f32 v{68+r}, {LOG2E|0x80000000:#x}, v{64+r}")
    for r in range(4): a(f"v_exp_f32 v{68+r}, v{68+r}")
    for r in range(4): a(f"v_add_f32 v{68+r}, 1.0, v{68+r}")
    for r in range(4): a(f"v_rcp_f32 v{72+r}, v{68+r}")
    for r in range(4):
        a(f"v_mul_f32 v{76+r}, v{64+r}, v{72+r}")
    a("v_cvt_pk_bf16_f32 v20, v76, v77"); a("v_cvt_pk_bf16_f32 v21, v78, v79")
    unpack(20, 64, 65); unpack(21, 66, 67)
    for r in range(4): a(f"v_mul_f32 v{64+r}, v{64+r}, v{160+r}")
    a("v_cvt_pk_bf16_f32 v20, v64, v65"); a("v_cvt_pk_bf16_f32 v21, v66, v67")
    a("v_and_b32 v64, 0xffff, v20"); a("v_lshrrev_b32 v65, 16, v20")
    a("v_and_b32 v66, 0xffff, v21"); a("v_lshrrev_b32 v67, 16, v21")
    a("s_mov_b32 exec_lo, 0"); a("s_mov_b32 exec_hi, 0xffff0000")
    a(f"ds_write_b128 v18, v[64:67] offset:{L_HB-768}")
    a("s_mov_b64 exec, -1")
    a("s_waitcnt lgkmcnt(0)")
    a(f"v_mov_b32 v20, {L_FLAG}"); a("v_mov_b32 v21, 1")
    a("ds_write_b32 v20, v21")
    stream(0, {}, TC, "c", False)

    a.label("L_tail")
    for x in range(12):
        a(f"v_permlane32_swap_b32 v{64+x}, v{76+x}")
    for x in range(12): a(f"v_add_f32 v{64+x}, v{64+x}, v{76+x}")
    for x in range(6): a(f"v_permlane16_swap_b32 v{64+x}, v{70+x}")
    for x in range(6): a(f"v_add_f32 v{64+x}, v{64+x}, v{70+x}")
    for x in range(6): a(f"v_add_f32_dpp v{64+x}, v{64+x}, v{64+x} row_ror:8 row_mask:0xf bank_mask:0xf")
    a("v_mul_u32_u24 v58, 6, v13")
    a("v_lshrrev_b32 v59, 4, v11")
    a("v_mul_u32_u24 v59, 24, v59")
    a("s_mul_i32 s62, s3, 768")
    a("v_add3_u32 v58, v58, v59, s62")
    a("s_lshl_b32 s62, s3, 3"); a("v_mov_b32 v59, s62")
    for x in range(3): a(f"ds_write_b64 v58, v[{64+2*x}:{65+2*x}] offset:{L_OP+8*x}")
    a(f"ds_write_b64 v59, v[60:61] offset:{L_ML}")
    a("s_waitcnt lgkmcnt(0)")
    a("s_barrier")
    a("s_cmp_lg_u32 s3, 0")
    a("s_cbranch_scc1 L_poll1")
    a("v_lshrrev_b32 v58, 4, v11"); a("v_lshlrev_b32 v58, 5, v58")
    a("v_bfe_u32 v59, v11, 1, 3"); a("v_mul_u32_u24 v59, 96, v59")
    a("v_and_b32 v60, 1, v11"); a("v_lshlrev_b32 v60, 4, v60")
    a("v_add3_u32 v58, v58, v59, v60")
    a("v_mov_b32 v59, 0")
    for k in range(4): a(f"ds_read_b128 v[{20+4*k}:{23+4*k}], v59 offset:{L_ML+16*k}")
    for w in range(8): a(f"ds_read_b128 v[{120+4*w}:{123+4*w}], v58 offset:{L_OP+768*w}")
    a("s_waitcnt lgkmcnt(8)")
    a("v_max3_f32 v60, v20, v22, v24"); a("v_max3_f32 v60, v60, v26, v28")
    a("v_max3_f32 v60, v60, v30, v32"); a("v_max_f32 v60, v60, v34")
    for w in range(8): a(f"v_sub_f32 v{20+2*w}, v{20+2*w}, v60")
    for w in range(8): a(f"v_exp_f32 v{20+2*w}, v{20+2*w}")
    a("v_mul_f32 v61, v20, v21")
    for w in range(1, 8): a(f"v_fmac_f32 v61, v{20+2*w}, v{21+2*w}")
    a("s_waitcnt lgkmcnt(0)")
    for r in range(4): a(f"v_mul_f32 v{64+r}, v20, v{120+r}")
    for w in range(1, 8):
        for r in range(4): a(f"v_fmac_f32 v{64+r}, v{20+2*w}, v{120+4*w+r}")
    a("s_mov_b32 s62, 0"); a("s_mov_b32 s63, 0x10000")
    a("v_cndmask_b32 v64, v64, v60, s[62:63]"); a("v_cndmask_b32 v65, v65, v61, s[62:63]")
    a("v_cndmask_b32 v66, v66, v60, s[62:63]"); a("v_cndmask_b32 v67, v67, v61, s[62:63]")
    for r in range(4): a(f"v_min_u32 v{64+r}, -2, v{64+r}")
    a("s_mov_b32 exec_lo, -1"); a("s_mov_b32 exec_hi, 0x1ffff")
    a(f"buffer_store_dwordx4 v[64:67], v18, {WS_}, s77 offen sc1")
    a("s_mov_b64 exec, -1")
    a.label("L_poll1")
    def polls1():
        for s in range(8):
            so = "s75" if s < 4 else "s76"
            a(f"buffer_load_dwordx4 v[{120+4*s}:{123+4*s}], v8, {WS_}, {so} offen offset:{(s&3)*1024} sc1")
        a(f"buffer_load_dwordx2 v[152:153], v9, {WS_}, s74 offen offset:768 sc1")
    polls1()
    a(f"s_mov_b32 s63, {SPIN_MAX}")
    a("v_lshlrev_b32 v58, 16, v56"); a("v_lshlrev_b32 v59, 16, v57")
    for r in range(112, 120): a(f"v_mov_b32 v{r}, 0")
    a("s_waitcnt vmcnt(9)")
    for i in range(2):
        for r in range(4):
            a(f"v_dot2c_f32_bf16 v{112+2*r}, v{104+4*i+r}, v{56+i}")
            a(f"v_dot2c_f32_bf16 v{113+2*r}, v{104+4*i+r}, v{58+i}")
    a.label("L_chk1")
    a("s_waitcnt vmcnt(0)")
    a("v_max_u32 v58, v152, v153")
    for r in range(120, 152, 2): a(f"v_max3_u32 v58, v58, v{r}, v{r+1}")
    a("v_cmp_eq_u32 vcc, -1, v58")
    a("s_cmp_eq_u64 vcc, 0")
    a("s_cbranch_scc1 L_go1")
    a("s_sub_u32 s63, s63, 1"); a("s_cmp_eq_u32 s63, 0")
    a("s_cbranch_scc1 L_go1")
    a("s_sleep 1")
    polls1()
    a("s_branch L_chk1")
    a.label("L_go1")
    stamp(5) if False else None
    a("v_mov_b32 v58, v152")
    for m in ("quad_perm:[1,0,3,2]", "quad_perm:[2,3,0,1]", "row_half_mirror"):
        a(f"v_max_f32_dpp v58, v58, v58 {m} row_mask:0xf bank_mask:0xf")
    a("v_sub_f32 v58, v152, v58"); a("v_exp_f32 v58, v58")
    a("v_mul_f32 v59, v58, v153")
    for m in ("quad_perm:[1,0,3,2]", "quad_perm:[2,3,0,1]", "row_half_mirror"):
        a(f"v_add_f32_dpp v59, v59, v59 {m} row_mask:0xf bank_mask:0xf")
    a("v_rcp_f32 v59, v59"); a("v_mul_f32 v58, v58, v59")
    for s in range(8): a(f"v_readlane_b32 s{80+s}, v58, {s}")
    for r in range(4): a(f"v_mul_f32 v{64+r}, s80, v{120+r}")
    for s in range(1, 8):
        for r in range(4): a(f"v_fmac_f32 v{64+r}, s{80+s}, v{120+4*s+r}")
    a("v_cvt_pk_bf16_f32 v58, v64, v65"); a("v_cvt_pk_bf16_f32 v59, v66, v67")
    lohi(58, 68); lohi(59, 72)
    for i in range(4):
        for r in range(4):
            a(f"v_dot2c_f32_bf16 v{112+2*r}, v{88+4*i+r}, v{68+2*i}")
            a(f"v_dot2c_f32_bf16 v{113+2*r}, v{88+4*i+r}, v{69+2*i}")
    a(f"ds_write_b128 v7, v[112:115] offset:{L_RED}")
    a(f"ds_write_b128 v7, v[116:119] offset:{L_RED+16}")
    a("s_waitcnt lgkmcnt(0)")
    a("s_barrier")
    a("s_cmp_gt_u32 s3, 1")
    a("s_cbranch_scc1 L_fin")
    a("v_lshlrev_b32 v58, 4, v0")
    a("v_cmp_gt_u32 vcc, 80, v0")
    a("s_mov_b64 exec, vcc")
    for g in range(12): a(f"ds_read_b128 v[{120+4*g}:{123+4*g}], v58 offset:{L_RED+1280*g}") if g < 8 else a(f"ds_read_b128 v[{64+4*(g-8)}:{67+4*(g-8)}], v58 offset:{L_RED+1280*g}")
    a("s_waitcnt lgkmcnt(0)")
    for g in range(1, 8):
        for r in range(4): a(f"v_add_f32 v{120+r}, v{120+r}, v{120+4*g+r}")
    for g in range(4):
        for r in range(4): a(f"v_add_f32 v{120+r}, v{120+r}, v{64+4*g+r}")
    for r in range(4): a(f"v_min_u32 v{120+r}, -2, v{120+r}")
    a(f"buffer_store_dwordx4 v[120:123], v58, {WS_}, s78 offen sc1")
    a("s_mov_b64 exec, -1")
    a.label("L_fin")
    stamp(6)
    a("s_cmp_ge_u32 s2, 20")
    a("s_cbranch_scc1 L_done")
    a("v_lshrrev_b32 v58, 3, v0"); a("v_mul_u32_u24 v58, 2560, v58")
    a("v_add_u32 v58, v58, v13")
    a("s_lshl_b32 s62, s2, 7"); a("s_add_u32 s62, s62, %d" % MB2_OFF); a("s_add_u32 s61, s62, %d" % (64 * 2560))
    a("v_lshlrev_b32 v59, 2, v11"); a("s_lshl_b32 s60, s2, 6")
    a(f"buffer_load_dword v57, v59, {X_}, s60 offen")
    a(f"s_mov_b32 s63, {SPIN_MAX}")
    a.label("L_poll2")
    a(f"buffer_load_dwordx4 v[64:67], v58, {WS_}, s62 offen sc1")
    a(f"buffer_load_dwordx4 v[68:71], v58, {WS_}, s61 offen sc1")
    a("s_waitcnt vmcnt(0)")
    a("v_max3_u32 v60, v64, v65, v66"); a("v_max3_u32 v60, v60, v67, v68"); a("v_max3_u32 v60, v60, v69, v70"); a("v_max_u32 v60, v60, v71")
    a("v_cmp_eq_u32 vcc, -1, v60")
    a("s_cmp_eq_u64 vcc, 0")
    a("s_cbranch_scc1 L_go2")
    a("s_sub_u32 s63, s63, 1"); a("s_cmp_eq_u32 s63, 0")
    a("s_cbranch_scc1 L_go2")
    a("s_sleep 1")
    a("s_branch L_poll2")
    a.label("L_go2")
    for r in range(4): a(f"v_add_f32 v{64+r}, v{64+r}, v{68+r}")
    a("v_permlane32_swap_b32 v64, v66"); a("v_permlane32_swap_b32 v65, v67")
    a("v_add_f32 v64, v64, v66"); a("v_add_f32 v65, v65, v67")
    a("v_permlane16_swap_b32 v64, v65"); a("v_add_f32 v64, v64, v65")
    a("v_add_f32_dpp v64, v64, v64 row_ror:8 row_mask:0xf bank_mask:0xf")
    a("v_lshrrev_b32 v60, 4, v11"); a("v_lshlrev_b32 v60, 2, v60")
    a("s_lshl_b32 s62, s3, 7")
    a("v_add3_u32 v60, v60, v13, s62")
    a(f"ds_write_b32 v60, v64 offset:{L_FIN}")
    a("s_waitcnt lgkmcnt(0)")
    a("s_barrier")
    a("s_cmp_lg_u32 s3, 0")
    a("s_cbranch_scc1 L_done")
    a("s_mov_b64 exec, 0xffff")
    a("v_lshlrev_b32 v60, 3, v11")
    for w in range(8): a(f"ds_read_b64 v[{64+2*w}:{65+2*w}], v60 offset:{L_FIN+128*w}")
    unpack(57, 80, 81)
    a("s_waitcnt lgkmcnt(0)")
    for w in range(1, 8):
        a(f"v_add_f32 v64, v64, v{64+2*w}"); a(f"v_add_f32 v65, v65, v{65+2*w}")
    a("v_add_f32 v64, v64, v80"); a("v_add_f32 v65, v65, v81")
    a("v_cvt_pk_bf16_f32 v64, v64, v65")
    a(f"buffer_store_dword v64, v59, {OUT_}, s60 offen")
    a("s_mov_b64 exec, -1")
    a.label("L_done")
    if stamps:
        a("s_memrealtime s[86:87]")
        a("s_cmp_eq_u32 s3, 0"); a("s_cselect_b32 s62, 0, 1")
        a(f"s_cmp_eq_u32 s3, {CW}"); a("s_cselect_b32 s63, 0, 1")
        a("s_and_b32 s63, s63, s62"); a("s_cmp_eq_u32 s63, 1"); a("s_cbranch_scc1 L_end")
        a("s_waitcnt lgkmcnt(0)")
        for i in range(7):
            a(f"v_mov_b32 v{64+2*i}, s{88+2*i}"); a(f"v_mov_b32 v{65+2*i}, s{89+2*i}")
        a("v_mov_b32 v78, s86"); a("v_mov_b32 v79, s87")
        a("s_lshl_b32 s63, s2, 7"); a("s_lshl_b32 s62, s62, 6"); a("s_add_u32 s63, s63, s62"); a(f"s_add_u32 s63, s63, {STAMP_OFF}")
        a("v_mov_b32 v58, 0"); a("s_mov_b64 exec, 1")
        for i in range(4): a(f"buffer_store_dwordx4 v[{64+4*i}:{67+4*i}], v58, {WS_}, s63 offen offset:{16*i}")
    a.label("L_end")
    a("s_endpgm")
    R('.section .rodata,"a"'); R(".p2align 6"); R(f".amdhsa_kernel {KN}")
    R("  .amdhsa_next_free_vgpr 256"); R("  .amdhsa_next_free_sgpr 102"); R("  .amdhsa_accum_offset 256")
    R("  .amdhsa_group_segment_fixed_size 0"); R("  .amdhsa_kernarg_size 96"); R("  .amdhsa_user_sgpr_count 2")
    R("  .amdhsa_user_sgpr_kernarg_segment_ptr 1"); R("  .amdhsa_system_sgpr_workgroup_id_x 1"); R(".end_amdhsa_kernel")
    txt = a.text()
    if pol != 'nt':
        txt = txt.replace(' nt\n', (' ' + pol if pol else '') + '\n')
    open(fname, "w").write(txt)

if __name__ == "__main__":
    gen("k1.s")
    gen("k1_st.s", stamps=True)
    gen("k1_def.s", pol="")
    gen("k1_t6.s", T=6, TC=8)
    gen("k1_t12.s", T=12, TC=14)
```

```python
import sys, argparse
from asmlib import Asm
KN = "parallel_sum__sliding_block_cached__glu_gated_swiglu__decode_kernel"

QP_OFF, MB1_OFF, MB2_OFF = 0, 0x80000, 0x100000
STAMP_OFF = 64 << 20
L_P1 = 0
L_QB = 28160
L_HB = 28672
L_FLAG = 28928
L_OP = 29184
L_ML = 35584
L_RED = 35840
L_FIN = 52480
LDS_SIZE = 53760
OOB = 0x40000000
LOG2E = 0x3fb8aa3b
SCALE = 0x3d93cd3a
SPIN_MAX = 1 << 20

K_, V_, WS_, WQ_, WO_, W1_, W3_, W2_, X_, OUT_, DBG_ = [f"s[{i}:{i+3}]" for i in range(8, 52, 4)]

class VM:
    def __init__(self, a):
        self.a = a; self.n = 0; self.done = 0
    def issue(self, s):
        self.a(s); self.n += 1; return self.n - 1
    def wait_id(self, i):
        if i < self.done: return
        self.a(f"s_waitcnt vmcnt({self.n - 1 - i})"); self.done = i + 1
    def throttle(self, T):
        if self.n - self.done > T - 1:
            self.a(f"s_waitcnt vmcnt({T-1})"); self.done = self.n - (T - 1)
    def reset(self):
        self.n = 0; self.done = 0

def gen(fname, T=3, TC=5, stamps=False, budget=2, CW=7, pol='nt', dbgst=False):
    a = Asm()
    R = a.raw
    R("; fused decode: layernorm + q-proj + sliding-window attention + out-proj + swiglu MLP")
    R(f"; @launch grid=(256,1,1) block=(512,1,1) lds={LDS_SIZE}")
    R('.amdgcn_target "amdgcn-amd-amdhsa--gfx950"')
    R(".text"); R(f".globl {KN}"); R(".p2align 8"); R(f".type {KN},@function"); R(f"{KN}:")
    nst = [0]
    def stamp(i):
        if stamps or dbgst:
            a(f"s_memrealtime s[{88+2*i}:{89+2*i}]")
    a("s_cmp_ge_u32 s2, 256")
    a("s_cbranch_scc1 L_end")
    stamp(0)
    a("s_load_dwordx16 s[64:79], s[0:1], 0")
    a("s_load_dwordx8 s[80:87], s[0:1], 64")
    a("v_lshrrev_b32 v10, 6, v0")
    a("v_and_b32 v11, 63, v0")
    a("v_readfirstlane_b32 s3, v10")
    a("s_and_b32 s4, s2, 31")
    a("s_lshr_b32 s5, s2, 5")
    a("s_lshr_b32 s6, s5, 1")
    a("s_and_b32 s7, s5, 1")
    a("v_lshrrev_b32 v12, 3, v11")
    a("v_mul_u32_u24 v12, 384, v12")
    a("v_and_b32 v13, 7, v11")
    a("v_lshl_add_u32 v1, v13, 4, v12")
    a("v_mul_u32_u24 v14, 2731, v0")
    a("v_lshrrev_b32 v14, 16, v14")
    a("v_mul_u32_u24 v15, 24, v14")
    a("v_sub_u32 v15, v0, v15")
    a("v_mov_b32 v19, %d" % OOB)
    a("v_cmp_gt_u32 vcc, 480, v0")
    a("v_mul_u32_u24 v2, 49152, v14")
    a("v_lshl_add_u32 v2, v15, 4, v2")
    a("v_cndmask_b32 v2, v19, v2, vcc")
    a("s_mov_b64 s[60:61], vcc")
    a("v_and_b32 v16, 7, v15")
    a("v_mul_u32_u24 v3, 12288, v14")
    a("v_lshl_add_u32 v3, v16, 4, v3")
    a("v_cmp_gt_u32 vcc, 8, v15")
    a("s_and_b64 s[52:53], vcc, s[60:61]")
    a("v_cmp_gt_u32 vcc, 16, v15")
    a("s_and_b64 s[56:57], vcc, s[60:61]")
    a("s_andn2_b64 s[54:55], s[56:57], s[52:53]")
    a("v_mul_u32_u24 v6, 1280, v14")
    a("v_lshl_add_u32 v6, v15, 5, v6")
    a("v_lshlrev_b32 v17, 3, v14")
    a("v_lshlrev_b32 v18, 4, v11")
    a("v_mul_u32_u24 v14, 1639, v0")
    a("v_lshrrev_b32 v14, 16, v14")
    a("v_mul_u32_u24 v15, 40, v14")
    a("v_sub_u32 v15, v0, v15")
    a("v_mul_u32_u24 v4, 5120, v14")
    a("v_lshl_add_u32 v4, v15, 4, v4")
    a("v_cndmask_b32 v4, v19, v4, s[60:61]")
    a("v_cmp_gt_u32 vcc, 320, v0")
    a("v_mul_u32_u24 v5, 2560, v14")
    a("v_lshl_add_u32 v5, v15, 4, v5")
    a("v_cndmask_b32 v5, v19, v5, vcc")
    a("v_mul_u32_u24 v7, 1280, v14")
    a("v_lshl_add_u32 v7, v15, 5, v7")
    a("v_lshlrev_b32 v8, 4, v14")
    a("v_lshlrev_b32 v9, 10, v13")
    a("v_min_u32 v16, 7, v14")
    a("v_lshlrev_b32 v16, 3, v16")
    a("s_lshl_b32 s62, s6, 6")
    a("v_add_u32 v16, s62, v16")
    a("v_lshlrev_b32 v13, 4, v13")
    a("s_waitcnt lgkmcnt(0)")
    def srd(base, ptr, size):
        a(f"s_mov_b32 s{base}, s{ptr}"); a(f"s_mov_b32 s{base+1}, s{ptr+1}")
        a(f"s_mov_b32 s{base+2}, {size}"); a(f"s_mov_b32 s{base+3}, 0x00020000")
    srd(40, 64, 1280)
    srd(20, 70, 7864320)
    vm = VM(a)
    a("s_mul_i32 s63, s5, 160")
    ix0 = vm.issue(f"buffer_load_dwordx4 v[208:211], v18, {X_}, 0 offen")
    ix1 = vm.issue(f"buffer_load_dwordx4 v[212:215], v18, {X_}, 0 offen offset:1024")
    ix2 = vm.issue(f"buffer_load_dwordx2 v[216:217], v17, {X_}, s63 offen")
    a("s_mul_i32 s63, s5, %d" % (80 * 12288))
    a("s_mul_i32 s62, s4, 384")
    a("s_add_u32 s63, s63, s62")
    iwq = []
    for i in range(4):
        iwq.append(vm.issue(f"buffer_load_dwordx4 v[{160+4*i}:{163+4*i}], v2, {WQ_}, s63 offen nt"))
        if i < 3: a("s_add_u32 s63, s63, 12288")
    srd(28, 76, 1966080); srd(32, 78, 1966080)
    a("s_mul_i32 s63, s5, %d" % (80 * 3072))
    a("s_lshl_b32 s62, s4, 7")
    a("s_add_u32 s63, s63, s62")
    a("s_cmp_lt_u32 s4, 24")
    a("s_cselect_b32 s63, s63, %d" % OOB)
    a("s_add_u32 s62, s63, 6144")
    iml = []
    for (msk, srdn) in (("s[52:53]", W1_), ("s[54:55]", W3_)):
        a(f"s_mov_b64 exec, {msk}")
        for i in range(4):
            so = "s63" if i < 2 else "s62"
            iml.append(vm.issue(f"buffer_load_dwordx4 v[{176+4*i}:{179+4*i}], v3, {srdn}, {so} offen offset:{(i&1)*3072} nt"))
    a("s_mov_b64 exec, -1")
    srd(8, 66, 402653184); srd(12, 68, 402653184); srd(16, 86, 1610612736)
    srd(24, 72, 7864320); srd(36, 80, 1966080); srd(44, 82, 1280); srd(48, 84, 256)
    a("s_mul_i32 s64, s4, 12582912")
    a("s_mul_i32 s65, s5, %d" % (512 * 384))
    a("s_mul_i32 s66, s3, %d" % (64 * 384))
    a("s_add_u32 s64, s64, s65"); a("s_add_u32 s64, s64, s66"); a("s_add_u32 s64, s64, %d" % (28672 * 384))
    for i in range(1, 8):
        a(f"s_add_u32 s{64+i}, s64, {i*3072}")
    a("s_mul_i32 s72, s4, 192"); a("s_mul_i32 s63, s6, 48"); a("s_add_u32 s72, s72, s63"); a("s_mul_i32 s72, s72, 1280")
    a("s_mul_i32 s63, s7, 640"); a("s_add_u32 s72, s72, s63")
    a("s_lshl_b32 s73, s4, 6"); a("s_lshl_b32 s62, s6, 4"); a("s_add_u32 s73, s73, s62"); a("s_mul_i32 s73, s73, 1280")
    a("s_add_u32 s73, s73, s63")
    a("s_cmp_lt_u32 s4, 24"); a("s_cselect_b32 s73, s73, %d" % OOB)
    a("s_lshl_b32 s74, s4, 13"); a("s_add_u32 s74, s74, %d" % MB1_OFF)
    a("s_mul_i32 s62, s6, 192"); a("s_add_u32 s75, s74, s62"); a("s_add_u32 s76, s75, 4096")
    a("s_lshl_b32 s62, s5, 10"); a("s_add_u32 s77, s74, s62")
    a("s_lshl_b32 s78, s4, 2"); a("s_add_u32 s78, s78, s6"); a("s_mul_i32 s78, s78, 2560")
    a("s_mul_i32 s62, s7, 1280"); a("s_add_u32 s78, s78, s62"); a("s_add_u32 s78, s78, %d" % MB2_OFF)
    a("s_mul_i32 s79, s4, %d" % (8 * 1280))

    def kload(n):
        i, j = divmod(n, 3); r = 64 + 4 * n
        return vm.issue(f"buffer_load_dwordx4 v[{r}:{r+3}], v1, {K_}, s{64+i} offen offset:{j*128} nt")
    def vload(n):
        i, j = divmod(n, 3); r = 160 + 4 * n
        return vm.issue(f"buffer_load_dwordx4 v[{r}:{r+3}], v1, {V_}, s{64+i} offen offset:{j*128} nt")

    a(f"s_cmp_eq_u32 s3, {CW}")
    a("s_cbranch_scc1 L_ctl_clear")
    kid = {}
    for n in range(3): kid[n] = kload(n)
    a(f"v_mov_b32 v20, {L_FLAG}"); a("v_mov_b32 v21, 0")
    a("ds_write_b32 v20, v21")
    a("s_branch L_phaseA")
    a.label("L_ctl_clear")
    for r in range(20, 24): a(f"v_mov_b32 v{r}, -1")
    a(f"buffer_store_dwordx4 v[20:23], v18, {WS_}, s77 offen sc1")
    a(f"buffer_store_dwordx4 v[20:23], v18, {WS_}, s78 offen sc1")
    a("s_mov_b64 exec, 0xffff")
    a(f"buffer_store_dwordx4 v[20:23], v18, {WS_}, s78 offen offset:1024 sc1")
    a("s_mov_b64 exec, -1")
    a.label("L_phaseA")
    vm.wait_id(ix2)
    def unpack(src, dlo, dhi):
        a(f"v_lshlrev_b32 v{dlo}, 16, v{src}"); a(f"v_and_b32 v{dhi}, 0xffff0000, v{src}")
    for r in range(8): unpack(208 + r, 218 + 2 * r, 219 + 2 * r)
    def wave_sum(v, sdst):
        for m in ("quad_perm:[1,0,3,2]", "quad_perm:[2,3,0,1]", "row_half_mirror", "row_mirror"):
            a(f"v_add_f32_dpp v{v}, v{v}, v{v} {m} row_mask:0xf bank_mask:0xf")
        for k in range(4): a(f"v_readlane_b32 s{sdst+k}, v{v}, {16*k}")
        a(f"v_mov_b32 v{v}, s{sdst}")
        for k in range(1, 4): a(f"v_add_f32 v{v}, s{sdst+k}, v{v}")
    a("v_add_f32 v234, v218, v219")
    for r in range(220, 234): a(f"v_add_f32 v234, v234, v{r}")
    wave_sum(234, 80)
    a("v_mul_f32 v234, 0x3acccccd, v234")
    a("v_mov_b32 v235, 0")
    for r in range(218, 226):
        a(f"v_sub_f32 v236, v{r}, v234"); a("v_fmac_f32 v235, v236, v236")
    a("s_mov_b64 exec, 0xffff")
    for r in range(226, 234):
        a(f"v_sub_f32 v236, v{r}, v234"); a("v_fmac_f32 v235, v236, v236")
    a("s_mov_b64 exec, -1")
    wave_sum(235, 80)
    a("v_mul_f32 v235, 0x3acccccd, v235")
    a("v_cvt_pk_bf16_f32 v236, v234, v235")
    a("v_lshlrev_b32 v234, 16, v236")
    a("v_and_b32 v235, 0xffff0000, v236")
    a("v_add_f32 v235, 0x3727c5ac, v235")
    a("v_cvt_pk_bf16_f32 v235, v235, v235")
    a("v_lshlrev_b32 v235, 16, v235")
    a("v_sqrt_f32 v235, v235")
    a("v_cvt_pk_bf16_f32 v235, v235, v235")
    a("v_lshlrev_b32 v235, 16, v235")
    a("v_rcp_f32 v237, v235")
    unpack(216, 218, 219); unpack(217, 220, 221)
    for r in range(218, 222): a(f"v_sub_f32 v{r}, v{r}, v234")
    a("v_cvt_pk_bf16_f32 v222, v218, v219"); a("v_cvt_pk_bf16_f32 v223, v220, v221")
    unpack(222, 218, 219); unpack(223, 220, 221)
    for r in range(218, 222):
        a(f"v_mul_f32 v224, v{r}, v237")
        a(f"v_fma_f32 v225, -v224, v235, v{r}")
        a(f"v_fma_f32 v{r}, v225, v237, v224")
    a("v_cvt_pk_bf16_f32 v222, v218, v219"); a("v_cvt_pk_bf16_f32 v223, v220, v221")
    def lohi(src, d):
        a(f"v_and_b32 v{d}, 0xffff, v{src}"); a(f"v_lshlrev_b32 v{d+1}, 16, v{src}")
        a(f"v_lshrrev_b32 v{d+2}, 16, v{src}"); a(f"v_and_b32 v{d+3}, 0xffff0000, v{src}")
    lohi(222, 224); lohi(223, 228)
    for r in range(192, 208): a(f"v_mov_b32 v{r}, 0")
    for i in range(4):
        vm.wait_id(iwq[i])
        for r in range(4):
            a(f"v_dot2c_f32_bf16 v{192+2*r}, v{160+4*i+r}, v{224+2*i}")
            a(f"v_dot2c_f32_bf16 v{193+2*r}, v{160+4*i+r}, v{225+2*i}")
    a(f"ds_write_b128 v6, v[192:195] offset:{L_P1}")
    a(f"ds_write_b128 v6, v[196:199] offset:{L_P1+16}")
    vm.wait_id(iml[-1])
    for i in range(4):
        for r in range(4):
            a(f"v_dot2c_f32_bf16 v{200+2*r}, v{176+4*i+r}, v{224+2*i}")
            a(f"v_dot2c_f32_bf16 v{201+2*r}, v{176+4*i+r}, v{225+2*i}")
    a("s_mov_b64 exec, s[56:57]")
    a(f"ds_write_b128 v6, v[200:203] offset:{L_P1+768}")
    a(f"ds_write_b128 v6, v[204:207] offset:{L_P1+784}")
    a("s_mov_b64 exec, -1")
    a("s_waitcnt lgkmcnt(0)")
    a("s_barrier")
    stamp(1)
    a(f"s_cmp_eq_u32 s3, {CW}")
    a("s_cbranch_scc1 L_ctl")

    def stream(first_k, kid, T, tag, wait_flag):
        for n in range(first_k, 24):
            vm.throttle(T); kid[n] = kload(n)
        stamp(2)
        if wait_flag:
            a(f"v_mov_b32 v20, {L_FLAG}")
            a(f"s_mov_b32 s63, {SPIN_MAX}")
            a.label(f"L_flag_{tag}")
            a("ds_read_b32 v21, v20")
            a("s_waitcnt lgkmcnt(0)")
            a("v_readfirstlane_b32 s62, v21")
            a("s_cmp_eq_u32 s62, 1")
            a(f"s_cbranch_scc1 L_flagok_{tag}")
            a("s_sleep 2")
            a("s_sub_u32 s63, s63, 1")
            a("s_cmp_lg_u32 s63, 0")
            a(f"s_cbranch_scc1 L_flag_{tag}")
            a.label(f"L_flagok_{tag}")
        stamp(3)
        for j in range(3):
            a(f"ds_read_b128 v[{20+4*j}:{23+4*j}], v13 offset:{L_QB+128*j}")
        a(f"ds_read_b64 v[56:57], v16 offset:{L_HB}")
        vid = {}; lid = {}
        def t_score(i0):
            def f():
                if i0 == 0: a("s_waitcnt lgkmcnt(0)")
                for i in (i0, i0 + 1): a(f"v_mov_b32 v{32+i}, 0")
                for j in range(3):
                    for r in range(4):
                        for i in (i0, i0 + 1):
                            a(f"v_dot2c_f32_bf16 v{32+i}, v{64+12*i+4*j+r}, v{20+4*j+r}")
                for m in ("quad_perm:[1,0,3,2]", "quad_perm:[2,3,0,1]", "row_half_mirror"):
                    for i in (i0, i0 + 1):
                        a(f"v_add_f32_dpp v{32+i}, v{32+i}, v{32+i} {m} row_mask:0xf bank_mask:0xf")
                a(f"v_cvt_pk_bf16_f32 v58, v{32+i0}, v{33+i0}")
                unpack(58, 32 + i0, 33 + i0)
                a(f"v_mul_f32 v{32+i0}, {SCALE:#x}, v{32+i0}"); a(f"v_mul_f32 v{33+i0}, {SCALE:#x}, v{33+i0}")
                a(f"v_cvt_pk_bf16_f32 v58, v{32+i0}, v{33+i0}")
                unpack(58, 32 + i0, 33 + i0)
                if i0 == 0:
                    for r in range(64, 88): a(f"v_mov_b32 v{r}, 0")
            return f
        def t_softmax():
            a("v_max3_f32 v58, v32, v33, v34"); a("v_max3_f32 v58, v58, v35, v36")
            a("v_max3_f32 v58, v58, v37, v38"); a("v_max_f32 v58, v58, v39")
            a("v_max_f32_dpp v58, v58, v58 row_ror:8 row_mask:0xf bank_mask:0xf")
            a("v_mov_b32 v59, v58"); a("v_permlane16_swap_b32 v58, v59"); a("v_max_f32 v58, v58, v59")
            a("v_mov_b32 v59, v58"); a("v_permlane32_swap_b32 v58, v59"); a("v_max_f32 v58, v58, v59")
            a(f"v_mul_f32 v60, {LOG2E:#x}, v58")
            a(f"s_mov_b32 s62, {LOG2E:#x}")
            for i in range(8): a(f"v_fma_f32 v{32+i}, v{32+i}, s62, -v60")
            for i in range(8): a(f"v_exp_f32 v{32+i}, v{32+i}")
            for i in range(0, 8, 2):
                a(f"v_cvt_pk_bf16_f32 v58, v{32+i}, v{33+i}")
                lohi(58, 40 + 2 * i)
            a("v_add_f32 v61, v41, v43")
            for i in range(2, 8): a(f"v_add_f32 v61, v61, v{41+2*i}")
            a("v_add_f32_dpp v61, v61, v61 row_ror:8 row_mask:0xf bank_mask:0xf")
            a("v_mov_b32 v59, v61"); a("v_permlane16_swap_b32 v61, v59"); a("v_add_f32 v61, v61, v59")
            a("v_mov_b32 v59, v61"); a("v_permlane32_swap_b32 v61, v59"); a("v_add_f32 v61, v61, v59")
        def t_pv(n):
            def f():
                i, j = divmod(n, 3)
                for r in range(4):
                    a(f"v_dot2c_f32_bf16 v{64+8*j+2*r}, v{160+4*n+r}, v{40+2*i}")
                    a(f"v_dot2c_f32_bf16 v{65+8*j+2*r}, v{160+4*n+r}, v{41+2*i}")
            return f
        tasks = [(lambda i0=i0: kid[3 * i0 + 5], t_score(i0)) for i0 in (0, 2, 4, 6)]
        tasks.append((lambda: -1, t_softmax))
        tasks += [(lambda n=n: vid.get(n, 10**9), t_pv(n)) for n in range(24)]
        late = [f"buffer_load_dwordx4 v[{104+4*i}:{107+4*i}], v5, {W2_}, s73 offen offset:{1280*i} nt" for i in range(2)]
        late += [f"buffer_load_dwordx4 v[{88+4*i}:{91+4*i}], v4, {WO_}, s72 offen offset:{1280*i} nt" for i in range(4)]
        done_scores = 0
        for n in range(30):
            vm.throttle(T)
            if n < 24: vid[n] = vload(n)
            else:
                assert done_scores >= 4
                vm.issue(late[n - 24])
            b = budget
            while b > 0 and tasks and tasks[0][0]() < vm.done:
                tasks.pop(0)[1](); b -= 1; done_scores += 1
        while tasks:
            req, f = tasks.pop(0)
            if req() >= 0: vm.wait_id(req())
            f()
        stamp(4)

    stream(3, kid, T, "b", True)
    a("s_branch L_tail")
    a.label("L_ctl")
    vm.reset()
    for rg in range(20):
        a(f"ds_read_b128 v[{64+4*rg}:{67+4*rg}], v18 offset:{L_P1+1280*rg}")
        a(f"ds_read_b128 v[{160+4*rg}:{163+4*rg}], v18 offset:{L_P1+1280*rg+256}")
        if rg % 4 == 3 and rg > 3: a("s_waitcnt lgkmcnt(4)")
        if rg == 3: a("s_waitcnt lgkmcnt(4)")
    a("s_waitcnt lgkmcnt(0)")
    for rg in range(1, 20):
        for r in range(4):
            a(f"v_add_f32 v{64+r}, v{64+r}, v{64+4*rg+r}")
            a(f"v_add_f32 v{160+r}, v{160+r}, v{160+4*rg+r}")
    a("s_mul_i32 s62, s5, 1280"); a("s_add_u32 s62, s62, s79")
    a(f"buffer_store_dwordx4 v[64:67], v18, {WS_}, s62 offen sc1")
    a("s_mov_b32 exec_lo, 0"); a("s_mov_b32 exec_hi, 0xffff0000")
    a(f"buffer_store_dwordx4 v[160:163], v18, {WS_}, s62 offen offset:256 sc1")
    a("s_mov_b64 exec, 1")
    a("v_mov_b32 v20, 1"); a("s_lshl_b32 s62, s4, 2"); a("v_mov_b32 v21, s62")
    a("s_waitcnt vmcnt(0)")
    a(f"buffer_atomic_add v20, v21, {DBG_}, 0 offen offset:{128 if dbgst else 0}")
    a("s_mov_b64 exec, -1")
    a("v_and_b32 v21, 31, v11"); a("v_lshlrev_b32 v21, 2, v21")
    a(f"s_mov_b32 s63, {SPIN_MAX}")
    a.label("L_cpoll")
    a(f"buffer_load_dword v20, v21, {DBG_}, 0 offen offset:{128 if dbgst else 0} sc1")
    a("s_waitcnt vmcnt(0)")
    a("v_cmp_ne_u32 vcc, 8, v20")
    a("s_cmp_eq_u64 vcc, 0")
    a("s_cbranch_scc1 L_cok")
    a("s_sleep 4")
    a("s_sub_u32 s63, s63, 1"); a("s_cmp_lg_u32 s63, 0")
    a("s_cbranch_scc1 L_cpoll")
    a.label("L_cok")
    stamp(5)
    a("s_mov_b32 s62, s79")
    for s in range(8):
        a(f"buffer_load_dwordx4 v[{64+4*s}:{67+4*s}], v18, {WS_}, s62 offen sc1")
        a("s_mov_b32 exec_lo, 0"); a("s_mov_b32 exec_hi, 0xffff0000")
        a(f"buffer_load_dwordx4 v[{160+4*s}:{163+4*s}], v18, {WS_}, s62 offen offset:256 sc1")
        a("s_mov_b64 exec, -1")
        if s < 7: a("s_add_u32 s62, s62, 1280")
    a("s_waitcnt vmcnt(0)")
    for s in range(1, 8):
        for r in range(4):
            a(f"v_add_f32 v{64+r}, v{64+r}, v{64+4*s+r}")
            a(f"v_add_f32 v{160+r}, v{160+r}, v{160+4*s+r}")
    a("v_cvt_pk_bf16_f32 v20, v64, v65"); a("v_cvt_pk_bf16_f32 v21, v66, v67")
    a("v_cvt_pk_bf16_f32 v22, v160, v161"); a("v_cvt_pk_bf16_f32 v23, v162, v163")
    a("v_lshlrev_b32 v24, 3, v11")
    a("s_mov_b32 exec_lo, -1"); a("s_mov_b32 exec_hi, 0xffff")
    a(f"ds_write_b64 v24, v[20:21] offset:{L_QB}")
    a("s_mov_b64 exec, -1")
    unpack(20, 64, 65); unpack(21, 66, 67); unpack(22, 160, 161); unpack(23, 162, 163)
    for r in range(4):
        a(f"v_mul_f32 v{68+r}, {LOG2E|0x80000000:#x}, v{64+r}")
    for r in range(4): a(f"v_exp_f32 v{68+r}, v{68+r}")
    for r in range(4): a(f"v_add_f32 v{68+r}, 1.0, v{68+r}")
    for r in range(4): a(f"v_rcp_f32 v{72+r}, v{68+r}")
    for r in range(4):
        a(f"v_mul_f32 v{76+r}, v{64+r}, v{72+r}")
    a("v_cvt_pk_bf16_f32 v20, v76, v77"); a("v_cvt_pk_bf16_f32 v21, v78, v79")
    unpack(20, 64, 65); unpack(21, 66, 67)
    for r in range(4): a(f"v_mul_f32 v{64+r}, v{64+r}, v{160+r}")
    a("v_cvt_pk_bf16_f32 v20, v64, v65"); a("v_cvt_pk_bf16_f32 v21, v66, v67")
    a("v_and_b32 v64, 0xffff, v20"); a("v_lshrrev_b32 v65, 16, v20")
    a("v_and_b32 v66, 0xffff, v21"); a("v_lshrrev_b32 v67, 16, v21")
    a("s_mov_b32 exec_lo, 0"); a("s_mov_b32 exec_hi, 0xffff0000")
    a(f"ds_write_b128 v18, v[64:67] offset:{L_HB-768}")
    a("s_mov_b64 exec, -1")
    a("s_waitcnt lgkmcnt(0)")
    a(f"v_mov_b32 v20, {L_FLAG}"); a("v_mov_b32 v21, 1")
    a("ds_write_b32 v20, v21")
    stream(0, {}, TC, "c", False)

    a.label("L_tail")
    for x in range(12):
        a(f"v_permlane32_swap_b32 v{64+x}, v{76+x}")
    for x in range(12): a(f"v_add_f32 v{64+x}, v{64+x}, v{76+x}")
    for x in range(6): a(f"v_permlane16_swap_b32 v{64+x}, v{70+x}")
    for x in range(6): a(f"v_add_f32 v{64+x}, v{64+x}, v{70+x}")
    for x in range(6): a(f"v_add_f32_dpp v{64+x}, v{64+x}, v{64+x} row_ror:8 row_mask:0xf bank_mask:0xf")
    a("v_mul_u32_u24 v58, 6, v13")
    a("v_lshrrev_b32 v59, 4, v11")
    a("v_mul_u32_u24 v59, 24, v59")
    a("s_mul_i32 s62, s3, 768")
    a("v_add3_u32 v58, v58, v59, s62")
    a("s_lshl_b32 s62, s3, 3"); a("v_mov_b32 v59, s62")
    for x in range(3): a(f"ds_write_b64 v58, v[{64+2*x}:{65+2*x}] offset:{L_OP+8*x}")
    a(f"ds_write_b64 v59, v[60:61] offset:{L_ML}")
    a("s_waitcnt lgkmcnt(0)")
    a("s_barrier")
    a("s_cmp_lg_u32 s3, 0")
    a("s_cbranch_scc1 L_poll1")
    a("v_lshrrev_b32 v58, 4, v11"); a("v_lshlrev_b32 v58, 5, v58")
    a("v_bfe_u32 v59, v11, 1, 3"); a("v_mul_u32_u24 v59, 96, v59")
    a("v_and_b32 v60, 1, v11"); a("v_lshlrev_b32 v60, 4, v60")
    a("v_add3_u32 v58, v58, v59, v60")
    a("v_mov_b32 v59, 0")
    for k in range(4): a(f"ds_read_b128 v[{20+4*k}:{23+4*k}], v59 offset:{L_ML+16*k}")
    for w in range(8): a(f"ds_read_b128 v[{120+4*w}:{123+4*w}], v58 offset:{L_OP+768*w}")
    a("s_waitcnt lgkmcnt(8)")
    a("v_max3_f32 v60, v20, v22, v24"); a("v_max3_f32 v60, v60, v26, v28")
    a("v_max3_f32 v60, v60, v30, v32"); a("v_max_f32 v60, v60, v34")
    for w in range(8): a(f"v_sub_f32 v{20+2*w}, v{20+2*w}, v60")
    for w in range(8): a(f"v_exp_f32 v{20+2*w}, v{20+2*w}")
    a("v_mul_f32 v61, v20, v21")
    for w in range(1, 8): a(f"v_fmac_f32 v61, v{20+2*w}, v{21+2*w}")
    a("s_waitcnt lgkmcnt(0)")
    for r in range(4): a(f"v_mul_f32 v{64+r}, v20, v{120+r}")
    for w in range(1, 8):
        for r in range(4): a(f"v_fmac_f32 v{64+r}, v{20+2*w}, v{120+4*w+r}")
    a("s_mov_b32 s62, 0"); a("s_mov_b32 s63, 0x10000")
    a("v_cndmask_b32 v64, v64, v60, s[62:63]"); a("v_cndmask_b32 v65, v65, v61, s[62:63]")
    a("v_cndmask_b32 v66, v66, v60, s[62:63]"); a("v_cndmask_b32 v67, v67, v61, s[62:63]")
    for r in range(4): a(f"v_min_u32 v{64+r}, -2, v{64+r}")
    a("s_mov_b32 exec_lo, -1"); a("s_mov_b32 exec_hi, 0x1ffff")
    a(f"buffer_store_dwordx4 v[64:67], v18, {WS_}, s77 offen sc1")
    a("s_mov_b64 exec, -1")
    a.label("L_poll1")
    def polls1():
        for s in range(8):
            so = "s75" if s < 4 else "s76"
            a(f"buffer_load_dwordx4 v[{120+4*s}:{123+4*s}], v8, {WS_}, {so} offen offset:{(s&3)*1024} sc1")
        a(f"buffer_load_dwordx2 v[152:153], v9, {WS_}, s74 offen offset:768 sc1")
    polls1()
    a(f"s_mov_b32 s63, {SPIN_MAX}")
    a("v_lshlrev_b32 v58, 16, v56"); a("v_lshlrev_b32 v59, 16, v57")
    for r in range(112, 120): a(f"v_mov_b32 v{r}, 0")
    a("s_waitcnt vmcnt(9)")
    for i in range(2):
        for r in range(4):
            a(f"v_dot2c_f32_bf16 v{112+2*r}, v{104+4*i+r}, v{56+i}")
            a(f"v_dot2c_f32_bf16 v{113+2*r}, v{104+4*i+r}, v{58+i}")
    a.label("L_chk1")
    a("s_waitcnt vmcnt(0)")
    a("v_max_u32 v58, v152, v153")
    for r in range(120, 152, 2): a(f"v_max3_u32 v58, v58, v{r}, v{r+1}")
    a("v_cmp_eq_u32 vcc, -1, v58")
    a("s_cmp_eq_u64 vcc, 0")
    a("s_cbranch_scc1 L_go1")
    a("s_sub_u32 s63, s63, 1"); a("s_cmp_eq_u32 s63, 0")
    a("s_cbranch_scc1 L_go1")
    a("s_sleep 1")
    polls1()
    a("s_branch L_chk1")
    a.label("L_go1")
    stamp(5) if False else None
    a("v_mov_b32 v58, v152")
    for m in ("quad_perm:[1,0,3,2]", "quad_perm:[2,3,0,1]", "row_half_mirror"):
        a(f"v_max_f32_dpp v58, v58, v58 {m} row_mask:0xf bank_mask:0xf")
    a("v_sub_f32 v58, v152, v58"); a("v_exp_f32 v58, v58")
    a("v_mul_f32 v59, v58, v153")
    for m in ("quad_perm:[1,0,3,2]", "quad_perm:[2,3,0,1]", "row_half_mirror"):
        a(f"v_add_f32_dpp v59, v59, v59 {m} row_mask:0xf bank_mask:0xf")
    a("v_rcp_f32 v59, v59"); a("v_mul_f32 v58, v58, v59")
    for s in range(8): a(f"v_readlane_b32 s{80+s}, v58, {s}")
    for r in range(4): a(f"v_mul_f32 v{64+r}, s80, v{120+r}")
    for s in range(1, 8):
        for r in range(4): a(f"v_fmac_f32 v{64+r}, s{80+s}, v{120+4*s+r}")
    a("v_cvt_pk_bf16_f32 v58, v64, v65"); a("v_cvt_pk_bf16_f32 v59, v66, v67")
    lohi(58, 68); lohi(59, 72)
    for i in range(4):
        for r in range(4):
            a(f"v_dot2c_f32_bf16 v{112+2*r}, v{88+4*i+r}, v{68+2*i}")
            a(f"v_dot2c_f32_bf16 v{113+2*r}, v{88+4*i+r}, v{69+2*i}")
    a(f"ds_write_b128 v7, v[112:115] offset:{L_RED}")
    a(f"ds_write_b128 v7, v[116:119] offset:{L_RED+16}")
    a("s_waitcnt lgkmcnt(0)")
    a("s_barrier")
    a("s_cmp_gt_u32 s3, 1")
    a("s_cbranch_scc1 L_fin")
    a("v_lshlrev_b32 v58, 4, v0")
    a("v_cmp_gt_u32 vcc, 80, v0")
    a("s_mov_b64 exec, vcc")
    for g in range(12): a(f"ds_read_b128 v[{120+4*g}:{123+4*g}], v58 offset:{L_RED+1280*g}") if g < 8 else a(f"ds_read_b128 v[{64+4*(g-8)}:{67+4*(g-8)}], v58 offset:{L_RED+1280*g}")
    a("s_waitcnt lgkmcnt(0)")
    for g in range(1, 8):
        for r in range(4): a(f"v_add_f32 v{120+r}, v{120+r}, v{120+4*g+r}")
    for g in range(4):
        for r in range(4): a(f"v_add_f32 v{120+r}, v{120+r}, v{64+4*g+r}")
    for r in range(4): a(f"v_min_u32 v{120+r}, -2, v{120+r}")
    a(f"buffer_store_dwordx4 v[120:123], v58, {WS_}, s78 offen sc1")
    a("s_mov_b64 exec, -1")
    a.label("L_fin")
    stamp(6)
    a("s_cmp_ge_u32 s2, 20")
    a("s_cbranch_scc1 L_done")
    a("v_lshrrev_b32 v58, 3, v0"); a("v_mul_u32_u24 v58, 2560, v58")
    a("v_add_u32 v58, v58, v13")
    a("s_lshl_b32 s62, s2, 7"); a("s_add_u32 s62, s62, %d" % MB2_OFF); a("s_add_u32 s61, s62, %d" % (64 * 2560))
    a("v_lshlrev_b32 v59, 2, v11"); a("s_lshl_b32 s60, s2, 6")
    a(f"buffer_load_dword v57, v59, {X_}, s60 offen")
    a(f"s_mov_b32 s63, {SPIN_MAX}")
    a.label("L_poll2")
    a(f"buffer_load_dwordx4 v[64:67], v58, {WS_}, s62 offen sc1")
    a(f"buffer_load_dwordx4 v[68:71], v58, {WS_}, s61 offen sc1")
    a("s_waitcnt vmcnt(0)")
    a("v_max3_u32 v60, v64, v65, v66"); a("v_max3_u32 v60, v60, v67, v68"); a("v_max3_u32 v60, v60, v69, v70"); a("v_max_u32 v60, v60, v71")
    a("v_cmp_eq_u32 vcc, -1, v60")
    a("s_cmp_eq_u64 vcc, 0")
    a("s_cbranch_scc1 L_go2")
    a("s_sub_u32 s63, s63, 1"); a("s_cmp_eq_u32 s63, 0")
    a("s_cbranch_scc1 L_go2")
    a("s_sleep 1")
    a("s_branch L_poll2")
    a.label("L_go2")
    for r in range(4): a(f"v_add_f32 v{64+r}, v{64+r}, v{68+r}")
    a("v_permlane32_swap_b32 v64, v66"); a("v_permlane32_swap_b32 v65, v67")
    a("v_add_f32 v64, v64, v66"); a("v_add_f32 v65, v65, v67")
    a("v_permlane16_swap_b32 v64, v65"); a("v_add_f32 v64, v64, v65")
    a("v_add_f32_dpp v64, v64, v64 row_ror:8 row_mask:0xf bank_mask:0xf")
    a("v_lshrrev_b32 v60, 4, v11"); a("v_lshlrev_b32 v60, 2, v60")
    a("s_lshl_b32 s62, s3, 7")
    a("v_add3_u32 v60, v60, v13, s62")
    a(f"ds_write_b32 v60, v64 offset:{L_FIN}")
    a("s_waitcnt lgkmcnt(0)")
    a("s_barrier")
    a("s_cmp_lg_u32 s3, 0")
    a("s_cbranch_scc1 L_done")
    a("s_mov_b64 exec, 0xffff")
    a("v_lshlrev_b32 v60, 3, v11")
    for w in range(8): a(f"ds_read_b64 v[{64+2*w}:{65+2*w}], v60 offset:{L_FIN+128*w}")
    unpack(57, 80, 81)
    a("s_waitcnt lgkmcnt(0)")
    for w in range(1, 8):
        a(f"v_add_f32 v64, v64, v{64+2*w}"); a(f"v_add_f32 v65, v65, v{65+2*w}")
    a("v_add_f32 v64, v64, v80"); a("v_add_f32 v65, v65, v81")
    a("v_cvt_pk_bf16_f32 v64, v64, v65")
    a(f"buffer_store_dword v64, v59, {OUT_}, s60 offen")
    a("s_mov_b64 exec, -1")
    a.label("L_done")
    if stamps:
        a("s_memrealtime s[86:87]")
        a("s_cmp_eq_u32 s3, 0"); a("s_cselect_b32 s62, 0, 1")
        a(f"s_cmp_eq_u32 s3, {CW}"); a("s_cselect_b32 s63, 0, 1")
        a("s_and_b32 s63, s63, s62"); a("s_cmp_eq_u32 s63, 1"); a("s_cbranch_scc1 L_end")
        a("s_waitcnt lgkmcnt(0)")
        for i in range(7):
            a(f"v_mov_b32 v{64+2*i}, s{88+2*i}"); a(f"v_mov_b32 v{65+2*i}, s{89+2*i}")
        a("v_mov_b32 v78, s86"); a("v_mov_b32 v79, s87")
        a("s_lshl_b32 s63, s2, 7"); a("s_lshl_b32 s62, s62, 6"); a("s_add_u32 s63, s63, s62"); a(f"s_add_u32 s63, s63, {STAMP_OFF}")
        a("v_mov_b32 v58, 0"); a("s_mov_b64 exec, 1")
        for i in range(4): a(f"buffer_store_dwordx4 v[{64+4*i}:{67+4*i}], v58, {WS_}, s63 offen offset:{16*i}")
    if dbgst:
        a("s_memrealtime s[86:87]")
        a("s_cmp_lg_u32 s3, 0"); a("s_cbranch_scc1 L_end")
        a("s_waitcnt lgkmcnt(0)")
        a("s_mov_b64 exec, 1")
        for i, sr in enumerate([88, 90, 92, 94, 96, 98, 100, 86]):
            a(f"v_mov_b32 v64, s{sr}"); a(f"v_not_b32 v65, v64"); a(f"v_mov_b32 v58, {4*i}")
            a(f"buffer_atomic_umax v64, v58, {DBG_}, 0 offen")
            a(f"buffer_atomic_umax v65, v58, {DBG_}, 0 offen offset:32")
            a("s_waitcnt vmcnt(0)")
    a.label("L_end")
    a("s_endpgm")
    R('.section .rodata,"a"'); R(".p2align 6"); R(f".amdhsa_kernel {KN}")
    R("  .amdhsa_next_free_vgpr 256"); R("  .amdhsa_next_free_sgpr 102"); R("  .amdhsa_accum_offset 256")
    R("  .amdhsa_group_segment_fixed_size 0"); R("  .amdhsa_kernarg_size 96"); R("  .amdhsa_user_sgpr_count 2")
    R("  .amdhsa_user_sgpr_kernarg_segment_ptr 1"); R("  .amdhsa_system_sgpr_workgroup_id_x 1"); R(".end_amdhsa_kernel")
    txt = a.text()
    if pol != 'nt':
        txt = txt.replace(' nt\n', (' ' + pol if pol else '') + '\n')
    open(fname, "w").write(txt)

if __name__ == "__main__":
    gen("k1.s")
    gen("k1_st.s", stamps=True)
    gen("k1_def.s", pol="")
    gen("k1_dbg.s", dbgst=True)
    gen("k1_t6.s", T=6, TC=8)
    gen("k1_t12.s", T=12, TC=14)
```

```python
import sys, argparse
from asmlib import Asm
KN = "parallel_sum__sliding_block_cached__glu_gated_swiglu__decode_kernel"

QP_OFF, QMB_OFF, MBX_OFF, MB2_OFF = 0, 0x60000, 0x80000, 0x100000
STAMP_OFF = 64 << 20
L_P1 = 0
L_QB = 28160
L_HB = L_QB + 384
L_FLAG = 28928
L_OB = 29056
L_OP = 29184
L_ML = 35584
L_RED = 35840
L_FIN = 52480
LDS_SIZE = 53760
OOB = 0x40000000
LOG2E = 0x3fb8aa3b
SCALE = 0x3d93cd3a
SPIN_MAX = 1 << 16

K_, V_, WS_, WQ_, WO_, W1_, W3_, W2_, X_, OUT_, DBG_ = [f"s[{i}:{i+3}]" for i in range(8, 52, 4)]
DPP3 = ("quad_perm:[1,0,3,2]", "quad_perm:[2,3,0,1]", "row_half_mirror")

class VM:
    def __init__(self, a):
        self.a = a; self.n = 0; self.done = 0
    def issue(self, s):
        self.a(s); self.n += 1; return self.n - 1
    def wait_id(self, i):
        if i < self.done: return
        self.a(f"s_waitcnt vmcnt({self.n - 1 - i})"); self.done = i + 1
    def throttle(self, T):
        if self.n - self.done > T - 1:
            self.a(f"s_waitcnt vmcnt({T-1})"); self.done = self.n - (T - 1)
    def copy_from(self, o):
        self.n = o[0]; self.done = o[1]
    def state(self): return (self.n, self.done)

def gen(fname, T=3, TC=4, stamps=False, budget=2, CW=7, burst=6, pol='nt', NV=0):
    a = Asm()
    R = a.raw
    R("; fused decode: layernorm + q-proj + sliding-window attention + out-proj + swiglu MLP")
    R(f"; @launch grid=(256,1,1) block=(512,1,1) lds={LDS_SIZE}")
    R('.amdgcn_target "amdgcn-amd-amdhsa--gfx950"')
    R(".text"); R(f".globl {KN}"); R(".p2align 8"); R(f".type {KN},@function"); R(f"{KN}:")
    def stamp(i):
        if stamps:
            a(f"s_memrealtime s[{88+2*i}:{89+2*i}]")
    def unpack(src, dlo, dhi):
        a(f"v_lshlrev_b32 v{dlo}, 16, v{src}"); a(f"v_and_b32 v{dhi}, 0xffff0000, v{src}")
    def lohi(src, d):
        a(f"v_and_b32 v{d}, 0xffff, v{src}"); a(f"v_lshlrev_b32 v{d+1}, 16, v{src}")
        a(f"v_lshrrev_b32 v{d+2}, 16, v{src}"); a(f"v_and_b32 v{d+3}, 0xffff0000, v{src}")
    def exec_hi16():
        a("s_mov_b32 exec_lo, 0"); a("s_mov_b32 exec_hi, 0xffff0000")
    a("s_cmp_ge_u32 s2, 256")
    a("s_cbranch_scc1 L_end")
    stamp(0)
    a("s_load_dwordx16 s[64:79], s[0:1], 0")
    a("s_load_dwordx8 s[80:87], s[0:1], 64")
    a("v_lshrrev_b32 v10, 6, v0")
    a("v_and_b32 v11, 63, v0")
    a("v_readfirstlane_b32 s3, v10")
    a("s_and_b32 s4, s2, 31")
    a("s_lshr_b32 s5, s2, 5")
    a("s_lshr_b32 s6, s5, 1")
    a("s_and_b32 s7, s5, 1")
    a("v_lshrrev_b32 v12, 3, v11")
    a("v_mul_u32_u24 v12, 384, v12")
    a("v_and_b32 v13, 7, v11")
    a("v_lshl_add_u32 v1, v13, 4, v12")
    a("v_mul_u32_u24 v14, 2731, v0")
    a("v_lshrrev_b32 v14, 16, v14")
    a("v_mul_u32_u24 v15, 24, v14")
    a("v_sub_u32 v15, v0, v15")
    a("v_mov_b32 v19, %d" % OOB)
    a("v_cmp_gt_u32 vcc, 480, v0")
    a("v_mul_u32_u24 v2, 49152, v14")
    a("v_lshl_add_u32 v2, v15, 4, v2")
    a("v_cndmask_b32 v2, v19, v2, vcc")
    a("s_mov_b64 s[60:61], vcc")
    a("v_and_b32 v16, 7, v15")
    a("v_mul_u32_u24 v3, 12288, v14")
    a("v_lshl_add_u32 v3, v16, 4, v3")
    a("v_cmp_gt_u32 vcc, 8, v15")
    a("s_and_b64 s[52:53], vcc, s[60:61]")
    a("v_cmp_gt_u32 vcc, 16, v15")
    a("s_and_b64 s[56:57], vcc, s[60:61]")
    a("s_andn2_b64 s[54:55], s[56:57], s[52:53]")
    a("v_mul_u32_u24 v6, 1280, v14")
    a("v_lshl_add_u32 v6, v15, 5, v6")
    a("v_lshlrev_b32 v17, 3, v14")
    a("v_lshlrev_b32 v18, 4, v11")
    a("s_waitcnt lgkmcnt(0)")
    def srd(base, ptr, size):
        a(f"s_mov_b32 s{base}, s{ptr}"); a(f"s_mov_b32 s{base+1}, s{ptr+1}")
        a(f"s_mov_b32 s{base+2}, {size}"); a(f"s_mov_b32 s{base+3}, 0x00020000")
    srd(40, 64, 1280)
    srd(20, 70, 7864320)
    vm = VM(a)
    a("s_mul_i32 s63, s5, 160")
    ix0 = vm.issue(f"buffer_load_dwordx4 v[208:211], v18, {X_}, 0 offen")
    ix1 = vm.issue(f"buffer_load_dwordx4 v[212:215], v18, {X_}, 0 offen offset:1024")
    ix2 = vm.issue(f"buffer_load_dwordx2 v[216:217], v17, {X_}, s63 offen")
    a("s_mul_i32 s63, s5, %d" % (80 * 12288))
    a("s_mul_i32 s62, s4, 384")
    a("s_add_u32 s63, s63, s62")
    iwq = []
    for i in range(4):
        iwq.append(vm.issue(f"buffer_load_dwordx4 v[{160+4*i}:{163+4*i}], v2, {WQ_}, s63 offen nt"))
        if i < 3: a("s_add_u32 s63, s63, 12288")
    srd(28, 76, 1966080); srd(32, 78, 1966080)
    a("s_mul_i32 s63, s5, %d" % (80 * 3072))
    a("s_lshl_b32 s62, s4, 7")
    a("s_add_u32 s63, s63, s62")
    a("s_cmp_lt_u32 s4, 24")
    a("s_cselect_b32 s63, s63, %d" % OOB)
    a("s_add_u32 s62, s63, 6144")
    iml = []
    for (msk, srdn) in (("s[52:53]", W1_), ("s[54:55]", W3_)):
        a(f"s_mov_b64 exec, {msk}")
        for i in range(4):
            so = "s63" if i < 2 else "s62"
            iml.append(vm.issue(f"buffer_load_dwordx4 v[{176+4*i}:{179+4*i}], v3, {srdn}, {so} offen offset:{(i&1)*3072} nt"))
    a("s_mov_b64 exec, -1")
    srd(8, 66, 402653184); srd(12, 68, 402653184); srd(16, 86, 1610612736)
    srd(24, 72, 7864320); srd(36, 80, 1966080); srd(44, 82, 1280); srd(48, 84, 256)
    a("s_mul_i32 s64, s4, 12582912")
    a("s_mul_i32 s65, s5, %d" % (512 * 384))
    a("s_mul_i32 s66, s3, %d" % (64 * 384))
    a("s_add_u32 s64, s64, s65"); a("s_add_u32 s64, s64, s66"); a("s_add_u32 s64, s64, %d" % (28672 * 384))
    for i in range(1, 8):
        a(f"s_add_u32 s{64+i}, s64, {i*3072}")

    def kload(n):
        i, j = divmod(n, 3); r = 64 + 4 * n
        return vm.issue(f"buffer_load_dwordx4 v[{r}:{r+3}], v1, {K_}, s{64+i} offen offset:{j*128} nt")
    def vload(n):
        i, j = divmod(n, 3); r = 160 + 4 * n
        return vm.issue(f"buffer_load_dwordx4 v[{r}:{r+3}], v1, {V_}, s{64+i} offen offset:{j*128} nt")

    def setup2():
        a("s_mul_i32 s72, s4, 192"); a("s_mul_i32 s63, s6, 48"); a("s_add_u32 s72, s72, s63"); a("s_mul_i32 s72, s72, 1280")
        a("s_mul_i32 s63, s7, 640"); a("s_add_u32 s72, s72, s63")
        a("s_lshl_b32 s73, s4, 6"); a("s_lshl_b32 s62, s6, 4"); a("s_add_u32 s73, s73, s62"); a("s_mul_i32 s73, s73, 1280")
        a("s_add_u32 s73, s73, s63")
        a("s_cmp_lt_u32 s4, 24"); a("s_cselect_b32 s73, s73, %d" % OOB)
        a("s_lshl_b32 s74, s4, 14"); a("s_add_u32 s74, s74, %d" % MBX_OFF)
        a("s_lshl_b32 s62, s5, 11"); a("s_add_u32 s75, s74, s62")
        a("s_lshl_b32 s62, s5, 8"); a("s_add_u32 s76, s74, s62")
        a("s_lshl_b32 s77, s2, 9"); a("s_add_u32 s77, s77, %d" % QMB_OFF)
        a("s_lshl_b32 s78, s4, 2"); a("s_add_u32 s78, s78, s6"); a("s_mul_i32 s78, s78, 2560")
        a("s_mul_i32 s62, s7, 1280"); a("s_add_u32 s78, s78, s62"); a("s_add_u32 s78, s78, %d" % MB2_OFF)
        a("s_mul_i32 s79, s4, %d" % (8 * 1280))
    def setup3():
        a("v_mul_u32_u24 v14, 1639, v0")
        a("v_lshrrev_b32 v14, 16, v14")
        a("v_mul_u32_u24 v15, 40, v14")
        a("v_sub_u32 v15, v0, v15")
        a("v_mul_u32_u24 v4, 5120, v14")
        a("v_lshl_add_u32 v4, v15, 4, v4")
        a("v_cndmask_b32 v4, v19, v4, s[60:61]")
        a("v_cmp_gt_u32 vcc, 320, v0")
        a("v_mul_u32_u24 v5, 2560, v14")
        a("v_lshl_add_u32 v5, v15, 4, v5")
        a("v_cndmask_b32 v5, v19, v5, vcc")
        a("v_mul_u32_u24 v7, 1280, v14")
        a("v_lshl_add_u32 v7, v15, 5, v7")
        a("v_lshlrev_b32 v8, 3, v14")
        a("v_min_u32 v16, 7, v14")
        a("v_lshlrev_b32 v16, 2, v16")
        a("s_lshl_b32 s62, s6, 5")
        a("v_add_u32 v16, s62, v16")
        a("v_lshlrev_b32 v13, 4, v13")
        a("v_mul_u32_u24 v9, 43, v11"); a("v_lshrrev_b32 v9, 9, v9")
        a("v_mul_u32_u24 v10, 12, v9"); a("v_sub_u32 v10, v11, v10")
        a("v_lshlrev_b32 v9, 12, v9"); a("v_lshl_add_u32 v9, v10, 4, v9")
        a("v_subrev_u32 v10, 48, v11"); a("v_lshlrev_b32 v10, 12, v10"); a("v_add_u32 v10, 192, v10")
        a("v_cmp_gt_u32 vcc, 48, v11")
        a("v_cndmask_b32 v9, v10, v9, vcc")

    def phaseA():
        vm.wait_id(ix2)
        for r in range(8): unpack(208 + r, 218 + 2 * r, 219 + 2 * r)
        def wave_sum(v, sdst):
            for m in DPP3 + ("row_mirror",):
                a(f"v_add_f32_dpp v{v}, v{v}, v{v} {m} row_mask:0xf bank_mask:0xf")
            for k in range(4): a(f"v_readlane_b32 s{sdst+k}, v{v}, {16*k}")
            a(f"v_mov_b32 v{v}, s{sdst}")
            for k in range(1, 4): a(f"v_add_f32 v{v}, s{sdst+k}, v{v}")
        a("v_add_f32 v234, v218, v219")
        for r in range(220, 234): a(f"v_add_f32 v234, v234, v{r}")
        wave_sum(234, 80)
        a("v_mul_f32 v234, 0x3acccccd, v234")
        a("v_mov_b32 v235, 0")
        for r in range(218, 226):
            a(f"v_sub_f32 v236, v{r}, v234"); a("v_fmac_f32 v235, v236, v236")
        a("s_mov_b64 exec, 0xffff")
        for r in range(226, 234):
            a(f"v_sub_f32 v236, v{r}, v234"); a("v_fmac_f32 v235, v236, v236")
        a("s_mov_b64 exec, -1")
        wave_sum(235, 80)
        a("v_mul_f32 v235, 0x3acccccd, v235")
        a("v_cvt_pk_bf16_f32 v236, v234, v235")
        a("v_lshlrev_b32 v234, 16, v236")
        a("v_and_b32 v235, 0xffff0000, v236")
        a("v_add_f32 v235, 0x3727c5ac, v235")
        a("v_cvt_pk_bf16_f32 v235, v235, v235")
        a("v_lshlrev_b32 v235, 16, v235")
        a("v_sqrt_f32 v235, v235")
        a("v_cvt_pk_bf16_f32 v235, v235, v235")
        a("v_lshlrev_b32 v235, 16, v235")
        a("v_rcp_f32 v237, v235")
        unpack(216, 218, 219); unpack(217, 220, 221)
        for r in range(218, 222): a(f"v_sub_f32 v{r}, v{r}, v234")
        a("v_cvt_pk_bf16_f32 v222, v218, v219"); a("v_cvt_pk_bf16_f32 v223, v220, v221")
        unpack(222, 218, 219); unpack(223, 220, 221)
        for r in range(218, 222):
            a(f"v_mul_f32 v224, v{r}, v237")
            a(f"v_fma_f32 v225, -v224, v235, v{r}")
            a(f"v_fma_f32 v{r}, v225, v237, v224")
        a("v_cvt_pk_bf16_f32 v222, v218, v219"); a("v_cvt_pk_bf16_f32 v223, v220, v221")
        lohi(222, 224); lohi(223, 228)
        for r in range(192, 208): a(f"v_mov_b32 v{r}, 0")
        for i in range(4):
            vm.wait_id(iwq[i])
            for r in range(4):
                a(f"v_dot2c_f32_bf16 v{192+2*r}, v{160+4*i+r}, v{224+2*i}")
                a(f"v_dot2c_f32_bf16 v{193+2*r}, v{160+4*i+r}, v{225+2*i}")
        a(f"ds_write_b128 v6, v[192:195] offset:{L_P1}")
        a(f"ds_write_b128 v6, v[196:199] offset:{L_P1+16}")
        vm.wait_id(iml[-1])
        for i in range(4):
            for r in range(4):
                a(f"v_dot2c_f32_bf16 v{200+2*r}, v{176+4*i+r}, v{224+2*i}")
                a(f"v_dot2c_f32_bf16 v{201+2*r}, v{176+4*i+r}, v{225+2*i}")
        a("s_mov_b64 exec, s[56:57]")
        a(f"ds_write_b128 v6, v[200:203] offset:{L_P1+768}")
        a(f"ds_write_b128 v6, v[204:207] offset:{L_P1+784}")
        a("s_mov_b64 exec, -1")
        a("s_waitcnt lgkmcnt(0)")
        a("s_barrier")
        stamp(1)

    def vphase(kid, T, vid=None):
        for j in range(3):
            a(f"ds_read_b128 v[{20+4*j}:{23+4*j}], v13 offset:{L_QB+128*j}")
        a(f"ds_read_b32 v56, v16 offset:{L_HB}")
        vid = {} if vid is None else vid
        nv0 = len(vid)
        def t_score(i0):
            def f():
                if i0 == 0: a("s_waitcnt lgkmcnt(0)")
                for i in (i0, i0 + 1): a(f"v_mov_b32 v{32+i}, 0")
                for j in range(3):
                    for r in range(4):
                        for i in (i0, i0 + 1):
                            a(f"v_dot2c_f32_bf16 v{32+i}, v{64+12*i+4*j+r}, v{20+4*j+r}")
                for m in DPP3:
                    for i in (i0, i0 + 1):
                        a(f"v_add_f32_dpp v{32+i}, v{32+i}, v{32+i} {m} row_mask:0xf bank_mask:0xf")
                a(f"v_cvt_pk_bf16_f32 v58, v{32+i0}, v{33+i0}")
                unpack(58, 32 + i0, 33 + i0)
                a(f"v_mul_f32 v{32+i0}, {SCALE:#x}, v{32+i0}"); a(f"v_mul_f32 v{33+i0}, {SCALE:#x}, v{33+i0}")
                a(f"v_cvt_pk_bf16_f32 v58, v{32+i0}, v{33+i0}")
                unpack(58, 32 + i0, 33 + i0)
                if i0 == 0:
                    for r in range(64, 88): a(f"v_mov_b32 v{r}, 0")
            return f
        def t_softmax():
            a("v_max3_f32 v58, v32, v33, v34"); a("v_max3_f32 v58, v58, v35, v36")
            a("v_max3_f32 v58, v58, v37, v38"); a("v_max_f32 v58, v58, v39")
            a("v_max_f32_dpp v58, v58, v58 row_ror:8 row_mask:0xf bank_mask:0xf")
            a("v_mov_b32 v59, v58"); a("v_permlane16_swap_b32 v58, v59"); a("v_max_f32 v58, v58, v59")
            a("v_mov_b32 v59, v58"); a("v_permlane32_swap_b32 v58, v59"); a("v_max_f32 v58, v58, v59")
            a(f"v_mul_f32 v60, {LOG2E:#x}, v58")
            a(f"s_mov_b32 s62, {LOG2E:#x}")
            for i in range(8): a(f"v_fma_f32 v{32+i}, v{32+i}, s62, -v60")
            for i in range(8): a(f"v_exp_f32 v{32+i}, v{32+i}")
            for i in range(0, 8, 2):
                a(f"v_cvt_pk_bf16_f32 v58, v{32+i}, v{33+i}")
                lohi(58, 40 + 2 * i)
            a("v_add_f32 v61, v41, v43")
            for i in range(2, 8): a(f"v_add_f32 v61, v61, v{41+2*i}")
            a("v_add_f32_dpp v61, v61, v61 row_ror:8 row_mask:0xf bank_mask:0xf")
            a("v_mov_b32 v59, v61"); a("v_permlane16_swap_b32 v61, v59"); a("v_add_f32 v61, v61, v59")
            a("v_mov_b32 v59, v61"); a("v_permlane32_swap_b32 v61, v59"); a("v_add_f32 v61, v61, v59")
            a("s_lshl_b32 s62, s3, 3"); a("v_mov_b32 v59, s62")
            a(f"ds_write_b64 v59, v[60:61] offset:{L_ML}")
            a("v_mul_u32_u24 v62, 6, v13")
            a("v_lshrrev_b32 v59, 4, v11")
            a("v_mul_u32_u24 v59, 24, v59")
            a("s_mul_i32 s62, s3, 768")
            a("v_add3_u32 v62, v62, v59, s62")
        def t_pv(n):
            def f():
                i, j = divmod(n, 3)
                for r in range(4):
                    a(f"v_dot2c_f32_bf16 v{64+8*j+2*r}, v{160+4*n+r}, v{40+2*i}")
                    a(f"v_dot2c_f32_bf16 v{65+8*j+2*r}, v{160+4*n+r}, v{41+2*i}")
            return f
        tasks = [(lambda i0=i0: kid[3 * i0 + 5], t_score(i0)) for i0 in (0, 2, 4, 6)]
        tasks.append((lambda: -1, t_softmax))
        tasks += [(lambda n=n: vid.get(n, 10**9), t_pv(n)) for n in range(24)]
        late = [f"buffer_load_dwordx4 v[{104+4*i}:{107+4*i}], v5, {W2_}, s73 offen offset:{1280*i} nt" for i in range(2)]
        late += [f"buffer_load_dwordx4 v[{88+4*i}:{91+4*i}], v4, {WO_}, s72 offen offset:{1280*i} nt" for i in range(4)]
        ndone = 0
        for n in range(nv0, 30):
            if n < 24 + T - 1: vm.throttle(T)
            if n < 24: vid[n] = vload(n)
            else:
                assert ndone >= 4
                vm.issue(late[n - 24])
            b = budget
            while b > 0 and tasks and tasks[0][0]() < vm.done:
                tasks.pop(0)[1](); b -= 1; ndone += 1
        while tasks:
            req, f = tasks.pop(0)
            if req() >= 0: vm.wait_id(req())
            f()
        stamp(4)

    st0 = vm.state()
    a(f"s_cmp_eq_u32 s3, {CW}")
    a("s_cbranch_scc1 L_ctl")
    kid = {}
    for n in range(burst): kid[n] = kload(n)
    a(f"v_mov_b32 v20, {L_FLAG}"); a("v_mov_b32 v21, 0")
    a("ds_write_b32 v20, v21")
    setup2(); setup3()
    phaseA()
    for n in range(burst, 24):
        vm.throttle(T); kid[n] = kload(n)
    vid0 = {}
    for n in range(NV):
        vm.throttle(T); vid0[n] = vload(n)
    stamp(2)
    a(f"v_mov_b32 v20, {L_FLAG}")
    a(f"s_mov_b32 s63, {SPIN_MAX}")
    a.label("L_flag")
    a("ds_read_b32 v21, v20")
    a("s_waitcnt lgkmcnt(0)")
    a("v_readfirstlane_b32 s62, v21")
    a("s_cmp_eq_u32 s62, 1")
    a("s_cbranch_scc1 L_flagok")
    a("s_sleep 2")
    a("s_sub_u32 s63, s63, 1")
    a("s_cmp_lg_u32 s63, 0")
    a("s_cbranch_scc1 L_flag")
    a.label("L_flagok")
    stamp(3)
    vphase(kid, T, vid0)
    a("s_branch L_tail")
    a.label("L_ctl")
    vm.copy_from(st0)
    setup2()
    for r in range(20, 24): a(f"v_mov_b32 v{r}, -1")
    a("v_lshlrev_b32 v24, 3, v11")
    vm.issue(f"buffer_store_dwordx2 v[20:21], v24, {WS_}, s77 offen sc1")
    vm.issue(f"buffer_store_dwordx4 v[20:23], v18, {WS_}, s75 offen sc1")
    vm.issue(f"buffer_store_dwordx4 v[20:23], v18, {WS_}, s75 offen offset:1024 sc1")
    vm.issue(f"buffer_store_dwordx4 v[20:23], v18, {WS_}, s78 offen sc1")
    a("s_mov_b64 exec, 0xffff")
    vm.issue(f"buffer_store_dwordx4 v[20:23], v18, {WS_}, s78 offen offset:1024 sc1")
    a("s_mov_b64 exec, -1")
    setup3()
    phaseA()
    for rg in range(20):
        a(f"ds_read_b128 v[{64+4*rg}:{67+4*rg}], v18 offset:{L_P1+1280*rg}")
        a(f"ds_read_b128 v[{160+4*rg}:{163+4*rg}], v18 offset:{L_P1+1280*rg+256}")
        if rg % 4 == 3: a("s_waitcnt lgkmcnt(4)")
    a("s_waitcnt lgkmcnt(0)")
    for rg in range(1, 20):
        for r in range(4):
            a(f"v_add_f32 v{64+r}, v{64+r}, v{64+4*rg+r}")
            a(f"v_add_f32 v{160+r}, v{160+r}, v{160+4*rg+r}")
    a("s_mul_i32 s62, s5, 1280"); a("s_add_u32 s62, s62, s79")
    a(f"buffer_store_dwordx4 v[64:67], v18, {WS_}, s62 offen sc1")
    exec_hi16()
    a(f"buffer_store_dwordx4 v[160:163], v18, {WS_}, s62 offen offset:256 sc1")
    a("s_mov_b64 exec, 1")
    a("v_mov_b32 v20, 1"); a("s_and_b32 s62, s4, 16"); a("s_add_u32 s62, s62, s4"); a("s_lshl_b32 s62, s62, 2"); a("v_mov_b32 v21, s62")
    a("s_waitcnt vmcnt(0)")
    a(f"buffer_atomic_add v20, v21, {DBG_}, 0 offen sc0")
    a("s_waitcnt vmcnt(0)")
    a("v_readfirstlane_b32 s62, v20")
    a("s_mov_b64 exec, -1")
    stamp(5)
    a("s_mov_b32 s59, 0")
    a("s_and_b32 s62, s62, 7"); a("s_cmp_eq_u32 s62, 7")
    a("s_cbranch_scc0 L_ctl_k")
    a("s_mov_b32 s62, s79")
    for s in range(8):
        a(f"buffer_load_dwordx4 v[{64+4*s}:{67+4*s}], v18, {WS_}, s62 offen sc1")
        exec_hi16()
        a(f"buffer_load_dwordx4 v[{160+4*s}:{163+4*s}], v18, {WS_}, s62 offen offset:256 sc1")
        a("s_mov_b64 exec, -1")
        if s < 7: a("s_add_u32 s62, s62, 1280")
    a("s_waitcnt vmcnt(0)")
    for s in range(1, 8):
        for r in range(4):
            a(f"v_add_f32 v{64+r}, v{64+r}, v{64+4*s+r}")
            a(f"v_add_f32 v{160+r}, v{160+r}, v{160+4*s+r}")
    a("v_cvt_pk_bf16_f32 v20, v64, v65"); a("v_cvt_pk_bf16_f32 v21, v66, v67")
    a("v_cvt_pk_bf16_f32 v22, v160, v161"); a("v_cvt_pk_bf16_f32 v23, v162, v163")
    exec_hi16()
    unpack(20, 64, 65); unpack(21, 66, 67); unpack(22, 160, 161); unpack(23, 162, 163)
    for r in range(4): a(f"v_mul_f32 v{68+r}, {LOG2E|0x80000000:#x}, v{64+r}")
    for r in range(4): a(f"v_exp_f32 v{68+r}, v{68+r}")
    for r in range(4): a(f"v_add_f32 v{68+r}, 1.0, v{68+r}")
    for r in range(4): a(f"v_rcp_f32 v{72+r}, v{68+r}")
    for r in range(4): a(f"v_mul_f32 v{76+r}, v{64+r}, v{72+r}")
    a("v_cvt_pk_bf16_f32 v20, v76, v77"); a("v_cvt_pk_bf16_f32 v21, v78, v79")
    unpack(20, 64, 65); unpack(21, 66, 67)
    for r in range(4): a(f"v_mul_f32 v{64+r}, v{64+r}, v{160+r}")
    a("v_cvt_pk_bf16_f32 v20, v64, v65"); a("v_cvt_pk_bf16_f32 v21, v66, v67")
    a("s_mov_b64 exec, -1")
    a("v_min_u32 v20, -2, v20"); a("v_min_u32 v21, -2, v21")
    a("s_lshl_b32 s62, s4, 9"); a("s_add_u32 s62, s62, %d" % QMB_OFF)
    for s in range(8):
        a(f"buffer_store_dwordx2 v[20:21], v24, {WS_}, s62 offen sc1")
        if s < 7: a("s_add_u32 s62, s62, %d" % (32 * 512))
    def take_q():
        a(f"ds_write_b64 v24, v[20:21] offset:{L_QB}")
        a(f"v_mov_b32 v22, {L_FLAG}"); a("v_mov_b32 v23, 1")
        a("s_waitcnt lgkmcnt(0)")
        a("ds_write_b32 v22, v23")
        a("s_mov_b32 s59, 1")
    take_q()
    a.label("L_ctl_k")
    vm.copy_from((0, 0))
    kidc = {}
    def pollq(lbl_fail):
        a(f"buffer_load_dwordx2 v[20:21], v24, {WS_}, s77 offen sc1")
        a("s_waitcnt vmcnt(0)")
        a("v_max_u32 v22, v20, v21")
        a("v_cmp_eq_u32 vcc, -1, v22")
        a("s_cmp_eq_u64 vcc, 0")
        a(f"s_cbranch_scc0 {lbl_fail}")
    for r in range(8):
        for n in range(3 * r, 3 * r + 3): kidc[n] = kload(n)
        a("s_cmp_eq_u32 s59, 1")
        a(f"s_cbranch_scc1 L_cskip{r}")
        pollq(f"L_cskip{r}")
        take_q()
        a.label(f"L_cskip{r}")
        a(f"s_waitcnt vmcnt({TC-1})")
    vm.copy_from((24, 24 - (TC - 1)))
    stamp(2)
    a("s_cmp_eq_u32 s59, 1")
    a("s_cbranch_scc1 L_chave")
    a(f"s_mov_b32 s63, {SPIN_MAX}")
    a.label("L_cspin")
    a("s_sub_u32 s63, s63, 1"); a("s_cmp_eq_u32 s63, 0")
    a("s_cbranch_scc1 L_cforce")
    a("s_sleep 2")
    pollq("L_cspin")
    a.label("L_cforce")
    take_q()
    a.label("L_chave")
    stamp(3)
    vphase(kidc, TC)

    a.label("L_tail")
    for x in range(12): a(f"v_permlane32_swap_b32 v{64+x}, v{76+x}")
    for x in range(12): a(f"v_add_f32 v{64+x}, v{64+x}, v{76+x}")
    for x in range(6): a(f"v_permlane16_swap_b32 v{64+x}, v{70+x}")
    for x in range(6): a(f"v_add_f32 v{64+x}, v{64+x}, v{70+x}")
    for x in range(6): a(f"v_add_f32_dpp v{64+x}, v{64+x}, v{64+x} row_ror:8 row_mask:0xf bank_mask:0xf")
    for x in range(3): a(f"ds_write_b64 v62, v[{64+2*x}:{65+2*x}] offset:{L_OP+8*x}")
    a("s_waitcnt lgkmcnt(0)")
    a("s_barrier")
    a("s_cmp_eq_u32 s3, 1")
    a("s_cbranch_scc1 L_w1")
    a("s_cmp_lg_u32 s3, 0")
    a("s_cbranch_scc1 L_wother")
    a("v_lshrrev_b32 v58, 4, v11"); a("v_lshlrev_b32 v58, 5, v58")
    a("v_bfe_u32 v59, v11, 1, 3"); a("v_mul_u32_u24 v59, 96, v59")
    a("v_and_b32 v60, 1, v11"); a("v_lshlrev_b32 v60, 4, v60")
    a("v_add3_u32 v58, v58, v59, v60")
    a("v_mov_b32 v59, 0")
    for k in range(4): a(f"ds_read_b128 v[{20+4*k}:{23+4*k}], v59 offset:{L_ML+16*k}")
    for w in range(8): a(f"ds_read_b128 v[{120+4*w}:{123+4*w}], v58 offset:{L_OP+768*w}")
    a("s_waitcnt lgkmcnt(8)")
    a("v_max3_f32 v60, v20, v22, v24"); a("v_max3_f32 v60, v60, v26, v28")
    a("v_max3_f32 v60, v60, v30, v32"); a("v_max_f32 v60, v60, v34")
    for w in range(8): a(f"v_sub_f32 v{20+2*w}, v{20+2*w}, v60")
    for w in range(8): a(f"v_exp_f32 v{20+2*w}, v{20+2*w}")
    a("v_mul_f32 v61, v20, v21")
    for w in range(1, 8): a(f"v_fmac_f32 v61, v{20+2*w}, v{21+2*w}")
    a("s_waitcnt lgkmcnt(0)")
    for r in range(4): a(f"v_mul_f32 v{64+r}, v20, v{120+r}")
    for w in range(1, 8):
        for r in range(4): a(f"v_fmac_f32 v{64+r}, v{20+2*w}, v{120+4*w+r}")
    a("s_mov_b32 s62, 0"); a("s_mov_b32 s63, 0xffff0000")
    a("v_cndmask_b32 v64, v64, v60, s[62:63]"); a("v_cndmask_b32 v65, v65, v61, s[62:63]")
    a("v_cndmask_b32 v66, v66, v60, s[62:63]"); a("v_cndmask_b32 v67, v67, v61, s[62:63]")
    for r in range(4): a(f"v_min_u32 v{64+r}, -2, v{64+r}")
    a("s_mov_b32 exec_lo, -1"); a("s_mov_b32 exec_hi, 0xfffff")
    a(f"buffer_store_dwordx4 v[64:67], v9, {WS_}, s76 offen sc1")
    a(f"buffer_store_dwordx4 v[64:67], v9, {WS_}, s76 offen offset:2048 sc1")
    a("s_mov_b64 exec, -1")
    a("s_branch L_pacc")
    a.label("L_wother")
    a("s_cmp_lg_u32 s3, 2"); a("s_cbranch_scc1 L_pacc")
    a("s_cmp_ge_u32 s2, 20"); a("s_cbranch_scc1 L_pacc")
    a("v_and_b32 v58, 15, v11"); a("v_and_b32 v59, 16, v11"); a("v_lshl_add_u32 v58, v59, 1, v58"); a("v_lshlrev_b32 v58, 2, v58")
    a(f"s_mov_b32 s63, {SPIN_MAX}")
    a.label("L_cnt")
    a(f"buffer_load_dword v59, v58, {DBG_}, 0 offen sc1")
    a("s_waitcnt vmcnt(0)")
    a("v_cmp_gt_u32 vcc, 8, v59")
    a("s_cmp_eq_u64 vcc, 0")
    a("s_cbranch_scc1 L_pacc")
    a("s_sub_u32 s63, s63, 1"); a("s_cmp_eq_u32 s63, 0")
    a("s_cbranch_scc1 L_pacc")
    a("s_sleep 8")
    a("s_branch L_cnt")
    def pacc(wait):
        lohi(56, 58)
        for r in range(112, 120): a(f"v_mov_b32 v{r}, 0")
        a(wait)
        for i in range(2):
            for r in range(4):
                a(f"v_dot2c_f32_bf16 v{112+2*r}, v{104+4*i+r}, v{58+2*i}")
                a(f"v_dot2c_f32_bf16 v{113+2*r}, v{104+4*i+r}, v{59+2*i}")
    a.label("L_pacc")
    pacc("s_waitcnt vmcnt(0)")
    a("s_branch L_b3b")
    a.label("L_w1")
    a("v_lshrrev_b32 v20, 3, v11"); a("v_lshlrev_b32 v20, 8, v20")
    a("v_add_u32 v21, v20, v13")
    a("v_and_b32 v22, 48, v13"); a("v_add_u32 v22, v20, v22")
    def polls1():
        a(f"buffer_load_dwordx4 v[120:123], v21, {WS_}, s75 offen sc1")
        a(f"buffer_load_dwordx4 v[124:127], v22, {WS_}, s75 offen offset:128 sc1")
        a(f"buffer_load_dwordx2 v[128:129], v20, {WS_}, s75 offen offset:192 sc1")
    polls1()
    a(f"s_mov_b32 s63, {SPIN_MAX}")
    pacc("s_waitcnt vmcnt(3)")
    a("v_lshrrev_b32 v23, 1, v13")
    a("v_and_b32 v24, 24, v23"); a("v_add_u32 v24, 64, v24")
    a("v_cmp_gt_u32 vcc, 32, v11")
    a("v_cndmask_b32 v23, v24, v23, vcc")
    a("v_bfe_u32 v24, v11, 4, 1"); a("v_lshl_add_u32 v23, v24, 2, v23")
    a.label("L_chk1")
    a("s_waitcnt vmcnt(0)")
    a("v_max3_u32 v58, v120, v121, v122"); a("v_max3_u32 v58, v58, v123, v124"); a("v_max3_u32 v58, v58, v125, v126")
    a("v_max3_u32 v58, v58, v127, v128"); a("v_max_u32 v58, v58, v129")
    a("v_cmp_eq_u32 vcc, -1, v58")
    a("s_cmp_eq_u64 vcc, 0")
    a("s_cbranch_scc1 L_go1")
    a("s_sub_u32 s63, s63, 1"); a("s_cmp_eq_u32 s63, 0")
    a("s_cbranch_scc1 L_go1")
    polls1()
    a("s_branch L_chk1")
    a.label("L_go1")
    a("v_max_f32_dpp v58, v128, v128 row_ror:8 row_mask:0xf bank_mask:0xf")
    a("v_mov_b32 v59, v58"); a("v_permlane16_swap_b32 v58, v59"); a("v_max_f32 v58, v58, v59")
    a("v_mov_b32 v59, v58"); a("v_permlane32_swap_b32 v58, v59"); a("v_max_f32 v58, v58, v59")
    a("v_sub_f32 v58, v128, v58"); a("v_exp_f32 v58, v58")
    a("v_mul_f32 v60, v58, v129")
    for r in range(8): a(f"v_mul_f32 v{120+r}, v58, v{120+r}")
    a("v_add_f32_dpp v60, v60, v60 row_ror:8 row_mask:0xf bank_mask:0xf")
    for r in range(4): a(f"v_permlane32_swap_b32 v{120+r}, v{124+r}")
    a("v_mov_b32 v59, v60"); a("v_permlane16_swap_b32 v60, v59"); a("v_add_f32 v60, v60, v59")
    for r in range(4): a(f"v_add_f32 v{120+r}, v{120+r}, v{124+r}")
    a("v_mov_b32 v59, v60"); a("v_permlane32_swap_b32 v60, v59"); a("v_add_f32 v60, v60, v59")
    a("v_permlane16_swap_b32 v120, v122"); a("v_permlane16_swap_b32 v121, v123")
    a("v_rcp_f32 v60, v60")
    a("v_add_f32 v120, v120, v122"); a("v_add_f32 v121, v121, v123")
    a("v_add_f32_dpp v120, v120, v120 row_ror:8 row_mask:0xf bank_mask:0xf")
    a("v_add_f32_dpp v121, v121, v121 row_ror:8 row_mask:0xf bank_mask:0xf")
    a("v_mul_f32 v120, v120, v60"); a("v_mul_f32 v121, v121, v60")
    a("v_cvt_pk_bf16_f32 v120, v120, v121")
    a(f"ds_write_b32 v23, v120 offset:{L_OB}")
    a("s_waitcnt lgkmcnt(0)")
    a.label("L_b3b")
    a("s_barrier")
    stamp(5) if False else None
    a(f"ds_read_b64 v[58:59], v8 offset:{L_OB}")
    a("s_waitcnt lgkmcnt(0)")
    lohi(58, 68); lohi(59, 72)
    for i in range(4):
        for r in range(4):
            a(f"v_dot2c_f32_bf16 v{112+2*r}, v{88+4*i+r}, v{68+2*i}")
            a(f"v_dot2c_f32_bf16 v{113+2*r}, v{88+4*i+r}, v{69+2*i}")
    a(f"ds_write_b128 v7, v[112:115] offset:{L_RED}")
    a(f"ds_write_b128 v7, v[116:119] offset:{L_RED+16}")
    a("s_waitcnt lgkmcnt(0)")
    a("s_barrier")
    a("s_cmp_gt_u32 s3, 1")
    a("s_cbranch_scc1 L_fin")
    a("v_lshlrev_b32 v58, 4, v0")
    a("v_cmp_gt_u32 vcc, 80, v0")
    a("s_mov_b64 exec, vcc")
    for g in range(12):
        d = 120 + 4 * g if g < 8 else 64 + 4 * (g - 8)
        a(f"ds_read_b128 v[{d}:{d+3}], v58 offset:{L_RED+1280*g}")
    a("s_waitcnt lgkmcnt(0)")
    for g in range(1, 8):
        for r in range(4): a(f"v_add_f32 v{120+r}, v{120+r}, v{120+4*g+r}")
    for g in range(4):
        for r in range(4): a(f"v_add_f32 v{120+r}, v{120+r}, v{64+4*g+r}")
    for r in range(4): a(f"v_min_u32 v{120+r}, -2, v{120+r}")
    a(f"buffer_store_dwordx4 v[120:123], v58, {WS_}, s78 offen sc1")
    a("s_mov_b64 exec, -1")
    a.label("L_fin")
    stamp(6)
    a("s_cmp_ge_u32 s2, 20")
    a("s_cbranch_scc1 L_done")
    a("v_lshrrev_b32 v58, 3, v0"); a("v_mul_u32_u24 v58, 2560, v58")
    a("v_add_u32 v58, v58, v13")
    a("s_lshl_b32 s62, s2, 7"); a("s_add_u32 s62, s62, %d" % MB2_OFF); a("s_add_u32 s61, s62, %d" % (64 * 2560))
    a("v_lshlrev_b32 v59, 2, v11"); a("s_lshl_b32 s60, s2, 6")
    a(f"buffer_load_dword v57, v59, {X_}, s60 offen")
    a(f"s_mov_b32 s63, {SPIN_MAX}")
    a.label("L_poll2")
    a(f"buffer_load_dwordx4 v[64:67], v58, {WS_}, s62 offen sc1")
    a(f"buffer_load_dwordx4 v[68:71], v58, {WS_}, s61 offen sc1")
    a("s_waitcnt vmcnt(0)")
    a("v_max3_u32 v60, v64, v65, v66"); a("v_max3_u32 v60, v60, v67, v68"); a("v_max3_u32 v60, v60, v69, v70"); a("v_max_u32 v60, v60, v71")
    a("v_cmp_eq_u32 vcc, -1, v60")
    a("s_cmp_eq_u64 vcc, 0")
    a("s_cbranch_scc1 L_go2")
    a("s_sub_u32 s63, s63, 1"); a("s_cmp_eq_u32 s63, 0")
    a("s_cbranch_scc1 L_go2")
    a("s_branch L_poll2")
    a.label("L_go2")
    for r in range(4): a(f"v_add_f32 v{64+r}, v{64+r}, v{68+r}")
    a("v_permlane32_swap_b32 v64, v66"); a("v_permlane32_swap_b32 v65, v67")
    a("v_add_f32 v64, v64, v66"); a("v_add_f32 v65, v65, v67")
    a("v_permlane16_swap_b32 v64, v65"); a("v_add_f32 v64, v64, v65")
    a("v_add_f32_dpp v64, v64, v64 row_ror:8 row_mask:0xf bank_mask:0xf")
    a("v_lshrrev_b32 v60, 4, v11"); a("v_lshlrev_b32 v60, 2, v60")
    a("s_lshl_b32 s62, s3, 7")
    a("v_add3_u32 v60, v60, v13, s62")
    a(f"ds_write_b32 v60, v64 offset:{L_FIN}")
    a("s_waitcnt lgkmcnt(0)")
    a("s_barrier")
    a("s_cmp_lg_u32 s3, 0")
    a("s_cbranch_scc1 L_done")
    a("s_mov_b64 exec, 0xffff")
    a("v_lshlrev_b32 v60, 3, v11")
    for w in range(8): a(f"ds_read_b64 v[{64+2*w}:{65+2*w}], v60 offset:{L_FIN+128*w}")
    unpack(57, 80, 81)
    a("s_waitcnt lgkmcnt(0)")
    for w in range(1, 8):
        a(f"v_add_f32 v64, v64, v{64+2*w}"); a(f"v_add_f32 v65, v65, v{65+2*w}")
    a("v_add_f32 v64, v64, v80"); a("v_add_f32 v65, v65, v81")
    a("v_cvt_pk_bf16_f32 v64, v64, v65")
    a(f"buffer_store_dword v64, v59, {OUT_}, s60 offen")
    a("s_mov_b64 exec, -1")
    a.label("L_done")
    if stamps:
        a("s_memrealtime s[86:87]")
        a("s_cmp_eq_u32 s3, 0"); a("s_cselect_b32 s62, 0, 1")
        a(f"s_cmp_eq_u32 s3, {CW}"); a("s_cselect_b32 s63, 0, 1")
        a("s_and_b32 s63, s63, s62"); a("s_cmp_eq_u32 s63, 1"); a("s_cbranch_scc1 L_end")
        a("s_waitcnt lgkmcnt(0)")
        for i in range(7):
            a(f"v_mov_b32 v{64+2*i}, s{88+2*i}"); a(f"v_mov_b32 v{65+2*i}, s{89+2*i}")
        a("v_mov_b32 v78, s86"); a("v_mov_b32 v79, s87")
        a("s_lshl_b32 s63, s2, 7"); a("s_lshl_b32 s62, s62, 6"); a("s_add_u32 s63, s63, s62"); a(f"s_add_u32 s63, s63, {STAMP_OFF}")
        a("v_mov_b32 v58, 0"); a("s_mov_b64 exec, 1")
        for i in range(4): a(f"buffer_store_dwordx4 v[{64+4*i}:{67+4*i}], v58, {WS_}, s63 offen offset:{16*i}")
    a.label("L_end")
    a("s_endpgm")
    R('.section .rodata,"a"'); R(".p2align 6"); R(f".amdhsa_kernel {KN}")
    R("  .amdhsa_next_free_vgpr 256"); R("  .amdhsa_next_free_sgpr 102"); R("  .amdhsa_accum_offset 256")
    R("  .amdhsa_group_segment_fixed_size 0"); R("  .amdhsa_kernarg_size 96"); R("  .amdhsa_user_sgpr_count 2")
    R("  .amdhsa_user_sgpr_kernarg_segment_ptr 1"); R("  .amdhsa_system_sgpr_workgroup_id_x 1"); R(".end_amdhsa_kernel")
    txt = a.text()
    if pol != 'nt':
        txt = txt.replace(' nt\n', (' ' + pol if pol else '') + '\n')
    open(fname, "w").write(txt)

if __name__ == "__main__":
    gen("k2.s", NV=10, budget=3)
    gen("k2_a.s", NV=10, budget=3, T=4, TC=7)
    gen("k2_b.s", NV=12, budget=3, T=6, TC=10)
    gen("k2_c.s", NV=10, budget=3, T=3, TC=6)
    gen("k2_a_st.s", stamps=True, NV=10, budget=3, T=4, TC=7)
    gen("k2_b_st.s", stamps=True, NV=12, budget=3, T=6, TC=10)
    gen("k2_c_st.s", stamps=True, NV=10, budget=3, T=3, TC=6)
```

```python
import re

TRANS = ("v_exp_f32", "v_log_f32", "v_rcp_f32", "v_rsq_f32", "v_sqrt_f32", "v_sin_f32", "v_cos_f32")

def regs_of(tok):
    tok = tok.strip()
    tok = tok.lstrip('-')
    m = re.match(r"abs\((.*)\)", tok)
    if m: tok = m.group(1)
    m = re.fullmatch(r"([vs])(\d+)", tok)
    if m: return [(m.group(1), int(m.group(2)))]
    m = re.fullmatch(r"([vs])\[(\d+):(\d+)\]", tok)
    if m: return [(m.group(1), i) for i in range(int(m.group(2)), int(m.group(3)) + 1)]
    if tok == "vcc": return [("s", 106), ("s", 107)]
    if tok == "vcc_lo": return [("s", 106)]
    if tok == "vcc_hi": return [("s", 107)]
    return []

class Asm:
    def __init__(self):
        self.lines = []
        self.hist = []

    def raw(self, s):
        self.lines.append(s)

    def label(self, name):
        self._pad_all()
        self.lines.append(f"{name}:")

    def _pad_all(self):
        need = 0
        for age, h in enumerate(reversed(self.hist[-10:])):
            if h.get("mfma"):
                need = max(need, 8 - age)
            if h.get("valu"):
                req = 5 if h["sw"] else (3 if h["dot"] else 2)
                need = max(need, req - age)
            if h.get("wstore"):
                need = max(need, 2 - age)
        if need > 0:
            self._nop(need)
        self.hist = []

    def _nop(self, n):
        self.lines.append(f"    s_nop {n-1}")
        for _ in range(n):
            self.hist.append({})

    def __call__(self, s):
        s = s.strip()
        if not s or s.startswith(";"):
            self.lines.append("    " + s); return
        body = s.split(";")[0].strip()
        parts = body.split(None, 1)
        op = parts[0]
        rest = parts[1] if len(parts) > 1 else ""
        ops = [o.strip() for o in re.split(r",(?![^\[]*\])", rest)] if rest else []
        mods = ""
        if ops:
            sp = ops[-1].split(None, 1)
            ops[-1] = sp[0]
            mods = sp[1] if len(sp) > 1 else ""
        is_valu = op.startswith("v_")
        is_vmem = op.startswith("buffer_") or op.startswith("global_")
        is_dpp = "_dpp" in op or "quad_perm" in mods or "row_" in mods
        is_dot = op.startswith("v_dot")
        is_trans = any(op.startswith(t) for t in TRANS)
        is_perml = op.startswith("v_permlane")
        is_rdl = op.startswith("v_readlane") or op.startswith("v_readfirstlane")
        is_mfma = op.startswith("v_mfma")
        is_ds = op.startswith("ds_")
        is_branch = op.startswith("s_cbranch") or op.startswith("s_branch") or op in ("s_endpgm", "s_setpc_b64")
        writes = []; reads = []
        if is_valu:
            if is_perml:
                writes = regs_of(ops[0]) + regs_of(ops[1]); reads = list(writes)
            elif op.startswith("v_cmp"):
                writes = regs_of(ops[0]); reads = sum((regs_of(o) for o in ops[1:]), [])
            else:
                writes = regs_of(ops[0]); reads = sum((regs_of(o) for o in ops[1:]), [])
                if op.startswith("v_fmac") or op.startswith("v_dot2c") or op.startswith("v_pk_fmac"):
                    reads += regs_of(ops[0])
                if op.startswith("v_cndmask") and len(ops) == 3:
                    reads += regs_of("vcc")
        elif is_vmem:
            reads = sum((regs_of(o) for o in ops), [])
        need = 0
        for age, h in enumerate(reversed(self.hist[-10:])):
            if h.get("mfma"):
                allr = set(sum((regs_of(o) for o in ops), []))
                d = h["vw"]
                if is_mfma:
                    ab = set(regs_of(ops[1]) + regs_of(ops[2])); c = set(regs_of(ops[3]))
                    if ab & d: need = max(need, 8 - age)
                    if (c & d) and c != d: need = max(need, 6 - age)
                elif (is_valu or is_vmem or is_ds) and (allr & d): need = max(need, 8 - age)
                if is_valu and not is_mfma and (set(writes) & h["c"]): need = max(need, 3 - age)
                continue
            if h.get("valu") and is_mfma:
                if set(r for r in reads if r[0] == "v") & h["vw"]: need = max(need, (3 if h["dot"] else 2) - age)
                continue
            if h.get("valu"):
                wv = h["vw"]; ws = h["sw"]
                rv = set(r for r in reads if r[0] == "v"); rs = set(r for r in reads if r[0] == "s")
                wr = set(writes)
                if is_valu:
                    if is_dpp and ops and (set(regs_of(ops[1])) & wv): need = max(need, 2 - age)
                    if is_rdl and (rv & wv): need = max(need, 1 - age)
                    if is_perml and (rv & wv): need = max(need, 2 - age)
                    if rs & ws: need = max(need, (4 if is_rdl else 2) - age)
                    if h["trans"] and not is_trans and (rv & wv): need = max(need, 1 - age)
                    if h["dot"]:
                        if op == h["op"]:
                            srcab = set(regs_of(ops[1]) + regs_of(ops[2]))
                            if srcab & wv: need = max(need, 3 - age)
                        elif (rv | wr) & wv: need = max(need, 3 - age)
                if is_vmem:
                    if rs & ws: need = max(need, 5 - age)
                    if h["dot"] and (rv & wv): need = max(need, 3 - age)
                if op.startswith("ds_") and h["dot"]:
                    dr = set(sum((regs_of(o) for o in ops), []))
                    if dr & wv: need = max(need, 3 - age)
            if h.get("wstore") and is_valu:
                if set(writes) & h["wstore"]: need = max(need, 2 - age)
        if need > 0:
            self._nop(need)
        if is_branch:
            self._pad_all()
        self.lines.append("    " + s)
        e = {}
        if is_valu:
            e = dict(valu=True, vw=set(r for r in writes if r[0] == "v"), sw=set(r for r in writes if r[0] == "s"),
                     trans=is_trans, dot=is_dot, op=op)
        if is_mfma:
            e = dict(mfma=True, vw=set(regs_of(ops[0])), c=set(regs_of(ops[3])))
        if is_vmem and ("store_dwordx4" in op or "store_dwordx3" in op):
            e = dict(wstore=set(regs_of(ops[0])))
        if op == "s_nop":
            n = int(ops[0]) + 1
            for _ in range(n): self.hist.append({})
        else:
            self.hist.append(e)
        if is_branch:
            self.hist = []

    def text(self):
        return "\n".join(self.lines) + "\n"
```

```python
import sys
from asmlib import Asm
KN = "parallel_sum__sliding_block_cached__glu_gated_swiglu__decode_kernel"

MBX_OFF, MB2_OFF, QX_OFF, QMB_OFF = 0x80000, 0x100000, 0x200000, 0x60000
STAMP_OFF = 64 << 20
L_P1 = 0
L_QB = 2816
L_HB = L_QB + 384
L_FLAG = 3328
L_OB = 3392
L_ML = 3584
L_OP = 3712
L_FIN = 16256
LDS_SIZE = 17408
OOB = 0x40000000
LOG2E = 0x3fb8aa3b
SCALE = 0x3d93cd3a
SPIN_MAX = 1 << 16
AUX = 7
CLR = 6

K_, V_, WS_, WQ_, WO_, W1_, W3_, W2_, X_, OUT_, DBG_ = [f"s[{i}:{i+3}]" for i in range(8, 52, 4)]
DPP3 = ("quad_perm:[1,0,3,2]", "quad_perm:[2,3,0,1]", "row_half_mirror")
KB, VB = 40, 148
DACC, MSK, AOP, WO, W2, PD = 40, 52, 56, 92, 116, 124
MF = "v_mfma_f32_16x16x32_bf16"

class VM:
    def __init__(self, a):
        self.a = a; self.n = 0; self.done = 0
    def issue(self, s):
        self.a(s); self.n += 1; return self.n - 1
    def wait_id(self, i):
        if i < self.done: return
        self.a(f"s_waitcnt vmcnt({self.n - 1 - i})"); self.done = i + 1
    def throttle(self, T):
        if self.n - self.done > T - 1:
            self.a(f"s_waitcnt vmcnt({T-1})"); self.done = self.n - (T - 1)
    def set(self, n, d):
        self.n = n; self.done = d

def gen(fname, T=4, TL=None, NV=2, budget=2, prio=1, st=None, wfirst=True, abl='', tlb=0, psleep=2, pre=0, cpos=0, cpol='sc1', cnum=5):
    TL = T if TL is None else TL
    a = Asm()
    R = a.raw
    R(f"; @launch grid=(256,1,1) block=(512,1,1) lds={LDS_SIZE}")
    R('.amdgcn_target "amdgcn-amd-amdhsa--gfx950"')
    R(".text"); R(f".globl {KN}"); R(".p2align 8"); R(f".type {KN},@function"); R(f"{KN}:")
    def stamp(i, kinds=("main", "wave")):
        if st in kinds: a(f"s_memrealtime s[{88+2*i}:{89+2*i}]")
    def tstamp(i): stamp(i, ("tail",))
    def unpack(src, dlo, dhi):
        a(f"v_lshlrev_b32 v{dlo}, 16, v{src}"); a(f"v_and_b32 v{dhi}, 0xffff0000, v{src}")
    def lohi(src, d):
        a(f"v_and_b32 v{d}, 0xffff, v{src}"); a(f"v_lshlrev_b32 v{d+1}, 16, v{src}")
        a(f"v_lshrrev_b32 v{d+2}, 16, v{src}"); a(f"v_and_b32 v{d+3}, 0xffff0000, v{src}")
    def exec_hi16():
        a("s_mov_b32 exec_lo, 0"); a("s_mov_b32 exec_hi, 0xffff0000")
    def exec_valid():
        a("s_mov_b32 exec_lo, 0x00ff00ff"); a("s_mov_b32 exec_hi, 0xff00ff00")
    def srd(base, ptr, size):
        a(f"s_mov_b32 s{base}, s{ptr}"); a(f"s_mov_b32 s{base+1}, s{ptr+1}")
        a(f"s_mov_b32 s{base+2}, {size}"); a(f"s_mov_b32 s{base+3}, 0x00020000")
    def masks(d, t0, t1):
        a(f"v_and_b32 v{t0}, 1, v2"); a(f"v_lshlrev_b32 v{t0}, 4, v{t0}")
        a(f"v_mov_b32 v{t1}, 0xffff"); a(f"v_lshlrev_b32 v{t1}, v{t0}, v{t1}")
        a(f"v_bfe_u32 v{t0}, v2, 1, 2")
        for r in range(4):
            a(f"v_cmp_eq_u32 vcc, {r}, v{t0}")
            a(f"v_cndmask_b32 v{d+r}, 0, v{t1}, vcc")
    vm = VM(a)
    a("s_cmp_ge_u32 s2, 256")
    a("s_cbranch_scc1 L_end")
    stamp(0, ("main", "wave", "tail"))
    a("s_load_dwordx16 s[52:67], s[0:1], 0")
    a("s_load_dwordx8 s[68:75], s[0:1], 64")
    a("v_lshrrev_b32 v15, 6, v0")
    a("v_and_b32 v2, 63, v0")
    a("v_readfirstlane_b32 s3, v15")
    a("s_and_b32 s4, s2, 31")
    a("s_lshr_b32 s5, s2, 5")
    a("s_lshr_b32 s6, s5, 1")
    a("s_and_b32 s7, s5, 1")
    a("v_lshrrev_b32 v15, 3, v2")
    a("v_and_b32 v3, 7, v2"); a("v_lshlrev_b32 v3, 4, v3")
    a("v_mul_u32_u24 v1, 384, v15"); a("v_add_u32 v1, v1, v3")
    a("v_lshlrev_b32 v6, 4, v2")
    a("s_mul_i32 s76, s4, 12582912"); a("s_mul_i32 s77, s5, %d" % (512 * 384))
    a("s_add_u32 s76, s76, s77"); a("s_add_u32 s76, s76, %d" % (28672 * 384))
    a(f"s_cmp_eq_u32 s3, {AUX}")
    a("s_cbranch_scc1 L_aux")

    SO = 78
    def kload(n, base=KB):
        i, j = divmod(n, 3); r = base + 4 * n
        return vm.issue(f"buffer_load_dwordx4 v[{r}:{r+3}], v1, {K_}, s{SO+i} offen offset:{j*128} nt")
    def vload(n, base=VB):
        i, j = divmod(n, 3); r = base + 4 * n
        return vm.issue(f"buffer_load_dwordx4 v[{r}:{r+3}], v1, {V_}, s{SO+i} offen offset:{j*128} nt")

    def setup_common():
        srd(16, 74, 1610612736); srd(24, 60, 7864320); srd(36, 68, 1966080); srd(44, 70, 1280); srd(48, 72, 256)
        srd(40, 52, 1280)
        a("s_mul_i32 s52, s4, 192"); a("s_mul_i32 s63, s6, 48"); a("s_add_u32 s52, s52, s63"); a("s_mul_i32 s52, s52, 1280")
        a("s_mul_i32 s63, s7, 640"); a("s_add_u32 s52, s52, s63")
        a("s_lshl_b32 s53, s4, 6"); a("s_lshl_b32 s62, s6, 4"); a("s_add_u32 s53, s53, s62"); a("s_mul_i32 s53, s53, 1280")
        a("s_add_u32 s53, s53, s63")
        a("s_cmp_lt_u32 s4, 24"); a("s_cselect_b32 s53, s53, %d" % OOB)
        a("s_sub_u32 s62, s3, 1"); a("s_cmp_lt_u32 s62, 4"); a("s_cselect_b32 s62, s62, 8"); a("s_cmp_eq_u32 s3, 7"); a("s_cselect_b32 s62, 4, s62")
        a("s_lshl_b32 s63, s62, 7"); a("s_cmp_lt_u32 s62, 5"); a("s_cselect_b32 s63, s63, %d" % OOB)
        a("s_add_u32 s52, s52, s63"); a("s_add_u32 s53, s53, s63"); a("s_add_u32 s64, s52, 5120")
        a("s_lshl_b32 s65, s62, 8")
        a("s_lshl_b32 s54, s4, 13"); a("s_add_u32 s54, s54, %d" % MBX_OFF)
        a("s_lshl_b32 s62, s6, 11"); a("s_add_u32 s55, s54, s62")
        a("s_lshl_b32 s62, s5, 8"); a("s_add_u32 s56, s54, s62")
        a("s_mul_i32 s57, s4, 10240"); a("s_add_u32 s57, s57, %d" % QX_OFF)
        a("s_lshl_b32 s58, s4, 2"); a("s_add_u32 s58, s58, s6"); a("s_mul_i32 s58, s58, 2560")
        a("s_mul_i32 s62, s7, 1280"); a("s_add_u32 s58, s58, s62"); a("s_add_u32 s58, s58, %d" % MB2_OFF); a("s_add_u32 s58, s58, s65")
        a("s_mul_i32 s59, s4, 10240"); a("s_mul_i32 s62, s5, 1280"); a("s_add_u32 s59, s59, s62"); a("s_add_u32 s59, s59, %d" % QX_OFF)
    def setup_proj():
        a("v_lshrrev_b32 v15, 3, v2")
        a("v_mul_u32_u24 v4, 7680, v15"); a("v_add_u32 v4, v4, v3")
        a("v_mul_u32_u24 v5, 2560, v15"); a("v_add_u32 v5, v5, v3")
        a("v_lshlrev_b32 v9, 2, v15"); a("s_lshl_b32 s87, s6, 5"); a("v_add_u32 v9, s87, v9")
        a("v_lshlrev_b32 v8, 4, v3")
        a("v_mul_u32_u24 v7, 24, v15")
        a("v_and_b32 v16, 16, v2")
        a("v_lshl_add_u32 v11, v3, 1, v16")
        a("v_lshrrev_b32 v15, 5, v2"); a("v_mul_u32_u24 v15, 768, v15")
        a("s_mul_i32 s87, s3, 1536")
        a("v_add3_u32 v14, v11, v15, s87")

    late = [f"buffer_load_dwordx4 v[{W2+4*i}:{W2+3+4*i}], v5, {W2_}, s53 offen offset:{1280*i} nt" for i in range(2)]
    late += [f"buffer_load_dwordx4 v[{WO+4*i}:{WO+3+4*i}], v4, {WO_}, {'s52' if i < 4 else 's64'} offen offset:{1280*(i%4)} nt" for i in range(6)]

    def read_q():
        for j in range(3):
            a(f"ds_read_b128 v[{20+4*j}:{23+4*j}], v3 offset:{L_QB+128*j}")
        a(f"ds_read_b32 v10, v9 offset:{L_HB}")
    def t_score(groups, sc, kb, first):
        def f():
            if first: a("s_waitcnt lgkmcnt(0)")
            for i in groups: a(f"v_mov_b32 v{sc[i]}, 0")
            for j in range(3):
                for r in range(4):
                    for i in groups:
                        a(f"v_dot2c_f32_bf16 v{sc[i]}, v{kb+12*i+4*j+r}, v{20+4*j+r}")
            for m in DPP3:
                for i in groups:
                    a(f"v_add_f32_dpp v{sc[i]}, v{sc[i]}, v{sc[i]} {m} row_mask:0xf bank_mask:0xf")
            s0 = sc[groups[0]]; s1 = sc[groups[-1]]
            for rnd in range(2):
                a(f"v_cvt_pk_bf16_f32 v15, v{s0}, v{s1}")
                a(f"v_lshlrev_b32 v{s0}, 16, v15")
                if s1 != s0: a(f"v_and_b32 v{s1}, 0xffff0000, v15")
                if rnd == 0:
                    for i in groups: a(f"v_mul_f32 v{sc[i]}, {SCALE:#x}, v{sc[i]}")
        return f
    def t_softmax(G, sc):
        def f1():
            a(f"v_mov_b32 v15, v{sc[0]}")
            rest = list(range(1, G))
            for k in range(0, len(rest), 2): a(f"v_max3_f32 v15, v15, v{sc[rest[k]]}, v{sc[rest[k+1]]}")
            a("v_max_f32_dpp v15, v15, v15 row_ror:8 row_mask:0xf bank_mask:0xf")
            for r in range(DACC, DACC + 12): a(f"v_mov_b32 v{r}, 0")
            a("v_mov_b32 v16, v15"); a("v_permlane16_swap_b32 v15, v16"); a("v_max_f32 v15, v15, v16")
            a("v_mov_b32 v16, v15"); a("v_permlane32_swap_b32 v15, v16"); a("v_max_f32 v15, v15, v16")
            a(f"v_mul_f32 v12, {LOG2E:#x}, v15")
            masks(MSK, 17, 18)
        def f2():
            a(f"s_mov_b32 s62, {LOG2E:#x}")
            for i in range(G): a(f"v_fma_f32 v{sc[i]}, v{sc[i]}, s62, -v12")
            for i in range(G): a(f"v_exp_f32 v{sc[i]}, v{sc[i]}")
            for i in range(G): a(f"v_cvt_pk_bf16_f32 v{sc[i]}, v{sc[i]}, v{sc[i]}")
        def f3():
            for i in range(G):
                for r in range(4): a(f"v_and_b32 v{AOP+4*i+r}, v{MSK+r}, v{sc[i]}")
        def f4():
            a(f"v_and_b32 v13, 0xffff0000, v{sc[0]}")
            for i in range(1, G):
                a(f"v_and_b32 v15, 0xffff0000, v{sc[i]}"); a("v_add_f32 v13, v13, v15")
            a("v_add_f32_dpp v13, v13, v13 row_ror:8 row_mask:0xf bank_mask:0xf")
            a("v_mov_b32 v16, v13"); a("v_permlane16_swap_b32 v13, v16"); a("v_add_f32 v13, v13, v16")
            a("v_mov_b32 v16, v13"); a("v_permlane32_swap_b32 v13, v16"); a("v_add_f32 v13, v13, v16")
            a("s_lshl_b32 s62, s3, 3"); a("v_mov_b32 v16, s62")
            a(f"ds_write_b64 v16, v[12:13] offset:{L_ML}")
        return [f1, f2, f3, f4]
    def t_pv(n, vb):
        def f():
            i, j = divmod(n, 3)
            d = DACC + 4 * j
            a(f"{MF} v[{d}:{d+3}], v[{AOP+4*i}:{AOP+3+4*i}], v[{vb+4*n}:{vb+3+4*n}], v[{d}:{d+3}]")
        return f

    a("s_lshr_b32 s77, s2, 3"); a("s_add_u32 s77, s77, s3"); a("s_add_u32 s77, s77, s2")
    a("s_mul_i32 s87, s77, 57"); a("s_lshr_b32 s87, s87, 9"); a("s_mul_i32 s87, s87, 9"); a("s_sub_u32 s77, s77, s87")
    a("s_mul_i32 s87, s3, 3072"); a("s_add_u32 s76, s76, s87")
    for i in range(9):
        a(f"s_add_u32 s{SO+i}, s77, {i}"); a(f"s_sub_u32 s87, s{SO+i}, 9"); a(f"s_cmp_ge_u32 s{SO+i}, 9")
        a(f"s_cselect_b32 s{SO+i}, s87, s{SO+i}"); a(f"s_mul_i32 s{SO+i}, s{SO+i}, {7*3072}"); a(f"s_add_u32 s{SO+i}, s{SO+i}, s76")
    if prio:
        a("s_cmp_lt_u32 s3, 4"); a("s_cbranch_scc1 L_noprio"); a(f"s_setprio {prio}"); a.label("L_noprio")
    setup_proj()
    a("s_waitcnt lgkmcnt(0)")
    srd(8, 54, 402653184); srd(12, 56, 402653184)
    setup_common()
    if tlb:
        a("s_cmp_lg_u32 s3, 5"); a("s_cbranch_scc1 L_notlb")
        a("s_mov_b64 exec, 1"); a("v_mov_b32 v20, 0")
        a("s_add_u32 s62, s76, %d" % (196608 - 5 * 3072 - 64))
        a(f"buffer_load_dword v21, v20, {V_}, s76 offen nt")
        a(f"buffer_load_dword v22, v20, {V_}, s62 offen nt")
        a(f"buffer_load_dword v23, v20, {K_}, s62 offen nt")
        a(f"buffer_load_dword v24, v20, {WO_}, s52 offen nt")
        a(f"buffer_load_dword v25, v20, {W2_}, s53 offen nt")
        a(f"buffer_load_dword v26, v20, {WS_}, s57 offen nt")
        a(f"buffer_load_dword v27, v20, {OUT_}, 0 offen nt")
        a("s_mov_b64 exec, -1")
        a.label("L_notlb")
    kid = {}
    if wfirst: a("s_barrier")
    for n in range(T): kid[n] = kload(n)
    if not wfirst: a("s_barrier")
    for n in range(T, 27):
        vm.throttle(T); kid[n] = kload(n)
    vid = {}
    for n in range(NV):
        vm.throttle(T); vid[n] = vload(n)
    stamp(2)
    a(f"v_mov_b32 v15, {L_FLAG}")
    a(f"s_mov_b32 s63, {SPIN_MAX}")
    a.label("L_flag")
    a("ds_read_b32 v16, v15")
    a("s_waitcnt lgkmcnt(0)")
    a("v_readfirstlane_b32 s62, v16")
    a("s_cmp_eq_u32 s62, 1")
    a("s_cbranch_scc1 L_flagok")
    a("s_sleep 2")
    a("s_sub_u32 s63, s63, 1")
    a("s_cmp_lg_u32 s63, 0")
    a("s_cbranch_scc1 L_flag")
    a.label("L_flagok")
    stamp(3)
    read_q()
    sc = [32 + i for i in range(8)] + [19]
    tasks = [(lambda g=g: kid[3 * g[-1] + 2], t_score(g, sc, KB, g[0] == 0), 4) for g in ((0, 1), (2, 3), (4, 5), (6, 7), (8,))]
    tasks += [(lambda: -1, f, 4) for f in t_softmax(9, sc)]
    tasks += [(lambda n=n: vid.get(n, 10**9), t_pv(n, VB), 0.5) for n in range(27)]
    ndone = 0
    for n in range(NV, 35):
        if n < 27 + TL - 1: vm.throttle(TL)
        if n < 27: vid[n] = vload(n)
        else:
            assert ndone >= 8
            vm.issue(late[n - 27])
        b = budget * 4
        while b > 0 and tasks and tasks[0][0]() < vm.done:
            t = tasks.pop(0); t[1](); b -= t[2]; ndone += 1
    while tasks:
        req, f, c = tasks.pop(0)
        if req() >= 0: vm.wait_id(req())
        f()
    stamp(4)
    a("s_branch L_tail")

    a.label("L_aux")
    vm.set(0, 0)
    a("s_setprio 2")
    a(f"v_mov_b32 v16, {L_FLAG}"); a("v_mov_b32 v17, 0")
    a("ds_write_b32 v16, v17")
    a("v_mul_u32_u24 v4, 122880, v15"); a("v_add_u32 v4, v4, v3")
    a("v_mul_u32_u24 v5, 30720, v15"); a("v_add_u32 v5, v5, v3")
    a("v_mul_u32_u24 v7, 20, v15")
    a(f"s_add_u32 s{SO}, s76, {63*3072}")
    a("s_mul_i32 s79, s5, 160")
    a("s_mul_i32 s80, s5, %d" % (80 * 12288)); a("s_mul_i32 s77, s4, 384"); a("s_add_u32 s80, s80, s77")
    a("s_mul_i32 s81, s5, %d" % (80 * 3072)); a("s_lshl_b32 s77, s4, 7"); a("s_add_u32 s81, s81, s77")
    a("s_cmp_lt_u32 s4, 24"); a("s_cselect_b32 s81, s81, %d" % OOB)
    a("s_lshl_b32 s82, s2, 9"); a("s_add_u32 s82, s82, %d" % QMB_OFF)
    a("v_lshlrev_b32 v14, 3, v2")
    a("s_lshl_b32 s83, s4, 13"); a("s_lshl_b32 s77, s5, 8"); a("s_add_u32 s83, s83, s77"); a("s_add_u32 s83, s83, %d" % MBX_OFF)
    a("v_lshrrev_b32 v12, 4, v2"); a("v_lshlrev_b32 v12, 11, v12"); a("v_and_b32 v13, 15, v2"); a("v_lshl_add_u32 v12, v13, 4, v12")
    a("s_lshl_b32 s84, s4, 2"); a("s_add_u32 s84, s84, s6"); a("s_mul_i32 s84, s84, 2560")
    a("s_mul_i32 s77, s7, 1280"); a("s_add_u32 s84, s84, s77"); a("s_add_u32 s84, s84, %d" % MB2_OFF)
    masks(8, 16, 17)
    for r in range(52, 56): a(f"v_mov_b32 v{r}, -1")
    a("s_waitcnt lgkmcnt(0)")
    srd(16, 74, 1610612736)
    def clears():
        if 'a' in abl: return
        vm.issue(f"buffer_store_dwordx2 v[52:53], v14, {WS_}, s82 offen {cpol}")
        if cnum < 2: return
        vm.issue(f"buffer_store_dwordx4 v[52:55], v12, {WS_}, s83 offen {cpol}")
        vm.issue(f"buffer_store_dwordx4 v[52:55], v6, {WS_}, s84 offen {cpol}")
        a("s_mov_b64 exec, 0xffff")
        vm.issue(f"buffer_store_dwordx4 v[52:55], v6, {WS_}, s84 offen offset:1024 {cpol}")
        a("s_mov_b64 exec, -1")
    if cpos == 0: clears()
    srd(40, 52, 1280); srd(20, 58, 7864320)
    ix0 = vm.issue(f"buffer_load_dwordx4 v[32:35], v6, {X_}, 0 offen")
    ix1 = vm.issue(f"buffer_load_dwordx4 v[36:39], v6, {X_}, 0 offen offset:1024")
    vm.issue(f"buffer_load_dwordx4 v[16:19], v7, {X_}, s79 offen")
    ixo = vm.issue(f"buffer_load_dword v30, v7, {X_}, s79 offen offset:16")
    srd(28, 64, 1966080); srd(32, 66, 1966080)
    iw = {}
    for i in range(10):
        b = 56 + 20 * i
        for j in range(3):
            vm.issue(f"buffer_load_dwordx4 v[{b+4*j}:{b+3+4*j}], v4, {WQ_}, s80 offen offset:{128*j} nt")
        vm.issue(f"buffer_load_dwordx4 v[{b+12}:{b+15}], v5, {W1_}, s81 offen nt")
        iw[i] = vm.issue(f"buffer_load_dwordx4 v[{b+16}:{b+19}], v5, {W3_}, s81 offen nt")
        if i < 9:
            a("s_add_u32 s80, s80, 12288"); a("s_add_u32 s81, s81, 3072")
    a("s_barrier")
    if cpos == 1: clears()
    srd(8, 54, 402653184); srd(12, 56, 402653184)
    setup_common()
    a("s_and_b32 s62, s4, 16"); a("s_add_u32 s62, s62, s4"); a("s_lshl_b32 s62, s62, 2"); a("v_mov_b32 v12, s62")
    a("v_mov_b32 v13, 1")
    vm.wait_id(ixo)
    for k in range(4): unpack(16 + k, 20 + 2 * k, 21 + 2 * k)
    unpack(30, 28, 29)
    for r in range(8): unpack(32 + r, 40 + 2 * r, 41 + 2 * r)
    def wave_sum(v, sdst):
        for m in DPP3 + ("row_mirror",):
            a(f"v_add_f32_dpp v{v}, v{v}, v{v} {m} row_mask:0xf bank_mask:0xf")
        for k in range(4): a(f"v_readlane_b32 s{sdst+k}, v{v}, {16*k}")
        a(f"v_mov_b32 v{v}, s{sdst}")
        for k in range(1, 4): a(f"v_add_f32 v{v}, s{sdst+k}, v{v}")
    a("v_add_f32 v15, v40, v41")
    for r in range(42, 56): a(f"v_add_f32 v15, v15, v{r}")
    wave_sum(15, 60)
    a("v_mul_f32 v15, 0x3acccccd, v15")
    a("v_mov_b32 v16, 0")
    for r in range(40, 48):
        a(f"v_sub_f32 v17, v{r}, v15"); a("v_fmac_f32 v16, v17, v17")
    a("s_mov_b64 exec, 0xffff")
    for r in range(48, 56):
        a(f"v_sub_f32 v17, v{r}, v15"); a("v_fmac_f32 v16, v17, v17")
    a("s_mov_b64 exec, -1")
    wave_sum(16, 60)
    a("v_mul_f32 v16, 0x3acccccd, v16")
    a("v_cvt_pk_bf16_f32 v17, v15, v16")
    a("v_lshlrev_b32 v15, 16, v17")
    a("v_and_b32 v16, 0xffff0000, v17")
    a("v_add_f32 v16, 0x3727c5ac, v16")
    a("v_cvt_pk_bf16_f32 v16, v16, v16")
    a("v_lshlrev_b32 v16, 16, v16")
    a("v_sqrt_f32 v16, v16")
    a("v_cvt_pk_bf16_f32 v16, v16, v16")
    a("v_lshlrev_b32 v16, 16, v16")
    a("v_rcp_f32 v17, v16")
    for i in range(10): a(f"v_sub_f32 v{20+i}, v{20+i}, v15")
    for i in range(0, 10, 2):
        a(f"v_cvt_pk_bf16_f32 v18, v{20+i}, v{21+i}"); unpack(18, 20 + i, 21 + i)
    for i in range(10):
        a(f"v_mul_f32 v18, v{20+i}, v17")
        a(f"v_fma_f32 v19, -v18, v16, v{20+i}")
        a(f"v_fma_f32 v{20+i}, v19, v17, v18")
    for i in range(10): a(f"v_cvt_pk_bf16_f32 v{20+i}, v{20+i}, v{20+i}")
    for r in range(32, 52): a(f"v_mov_b32 v{r}, 0")
    a("v_lshrrev_b32 v15, 5, v2"); a("v_mul_u32_u24 v15, 1280, v15")
    a("v_and_b32 v16, 16, v2"); a("v_lshl_add_u32 v16, v3, 1, v16"); a("v_add_u32 v15, v15, v16")
    a("v_lshlrev_b32 v14, 3, v2")
    for i in range(10):
        for r in range(4): a(f"v_and_b32 v{52+r}, v{8+r}, v{20+i}")
        vm.wait_id(iw[i])
        b = 56 + 20 * i
        for c in range(5):
            a(f"{MF} v[{32+4*c}:{35+4*c}], v[52:55], v[{b+4*c}:{b+3+4*c}], v[{32+4*c}:{35+4*c}]")
    stamp(1)
    exec_valid()
    for c in range(5): a(f"ds_write_b128 v15, v[{32+4*c}:{35+4*c}] offset:{L_P1+256*c}")
    a("s_mov_b64 exec, -1")
    a("s_waitcnt lgkmcnt(0)")
    a(f"ds_read_b128 v[64:67], v6 offset:{L_P1}")
    a(f"ds_read_b128 v[68:71], v6 offset:{L_P1+1280}")
    a(f"ds_read_b128 v[72:75], v6 offset:{L_P1+256}")
    a(f"ds_read_b128 v[76:79], v6 offset:{L_P1+1280+256}")
    a("s_waitcnt lgkmcnt(0)")
    for r in range(4):
        a(f"v_add_f32 v{64+r}, v{64+r}, v{68+r}"); a(f"v_add_f32 v{72+r}, v{72+r}, v{76+r}")
    for r in range(4):
        a(f"v_min_u32 v{64+r}, -2, v{64+r}"); a(f"v_min_u32 v{72+r}, -2, v{72+r}")
    if 'b' in abl: a("s_branch L_atake")
    if 'p' not in abl:
        a(f"buffer_store_dwordx4 v[64:67], v6, {WS_}, s59 offen sc1")
        exec_hi16()
        a(f"buffer_store_dwordx4 v[72:75], v6, {WS_}, s59 offen offset:256 sc1")
        a("s_mov_b64 exec, -1")
    a("s_mov_b64 exec, 1")
    a("s_waitcnt vmcnt(0)")
    if 'n' in abl: pass
    elif 'r' in abl: a(f"buffer_atomic_add v13, v12, {DBG_}, 0 offen")
    elif 'w' in abl: a(f"buffer_atomic_add v13, v12, {WS_}, s82 offen sc0")
    else: a(f"buffer_atomic_add v13, v12, {DBG_}, 0 offen sc0")
    a("s_waitcnt vmcnt(0)")
    a("v_readfirstlane_b32 s62, v13")
    a("s_mov_b64 exec, -1")
    stamp(5)
    if 'c' in abl: a("s_branch L_atake")
    if st == "main":
        a("s_and_b32 s92, s62, 7"); a("s_mov_b32 s93, 0")
    a("s_and_b32 s62, s62, 7"); a("s_cmp_eq_u32 s62, 7")
    a("s_cbranch_scc0 L_await")
    a("s_add_u32 s60, s57, 3840"); a("s_add_u32 s61, s57, 7680")
    if 'g' not in abl:
        for s in range(8):
            so = ("s57", "s60", "s61")[s // 3]
            a(f"buffer_load_dwordx4 v[{96+4*s}:{99+4*s}], v6, {WS_}, {so} offen offset:{(s%3)*1280} sc1")
        exec_hi16()
        for s in range(8):
            so = ("s57", "s60", "s61")[s // 3]
            a(f"buffer_load_dwordx4 v[{160+4*s}:{163+4*s}], v6, {WS_}, {so} offen offset:{(s%3)*1280+256} sc1")
        a("s_mov_b64 exec, -1")
        a("s_waitcnt vmcnt(0)")
    a.label("L_agot")
    for s in range(1, 8):
        for r in range(4):
            a(f"v_add_f32 v{96+r}, v{96+r}, v{96+4*s+r}")
            a(f"v_add_f32 v{160+r}, v{160+r}, v{160+4*s+r}")
    a("v_cvt_pk_bf16_f32 v20, v96, v97"); a("v_cvt_pk_bf16_f32 v21, v98, v99")
    a("v_cvt_pk_bf16_f32 v22, v160, v161"); a("v_cvt_pk_bf16_f32 v23, v162, v163")
    exec_hi16()
    unpack(20, 64, 65); unpack(21, 66, 67); unpack(22, 160, 161); unpack(23, 162, 163)
    for r in range(4): a(f"v_mul_f32 v{68+r}, {LOG2E|0x80000000:#x}, v{64+r}")
    for r in range(4): a(f"v_exp_f32 v{68+r}, v{68+r}")
    for r in range(4): a(f"v_add_f32 v{68+r}, 1.0, v{68+r}")
    for r in range(4): a(f"v_rcp_f32 v{72+r}, v{68+r}")
    for r in range(4): a(f"v_mul_f32 v{76+r}, v{64+r}, v{72+r}")
    a("v_cvt_pk_bf16_f32 v20, v76, v77"); a("v_cvt_pk_bf16_f32 v21, v78, v79")
    unpack(20, 64, 65); unpack(21, 66, 67)
    for r in range(4): a(f"v_mul_f32 v{64+r}, v{64+r}, v{160+r}")
    a("v_cvt_pk_bf16_f32 v20, v64, v65"); a("v_cvt_pk_bf16_f32 v21, v66, v67")
    a("s_mov_b64 exec, -1")
    a("v_min_u32 v20, -2, v20"); a("v_min_u32 v21, -2, v21")
    a("s_lshl_b32 s62, s4, 9"); a("s_add_u32 s62, s62, %d" % QMB_OFF)
    for s in range(8):
        if 'u' not in abl: a(f"buffer_store_dwordx2 v[20:21], v14, {WS_}, s62 offen sc1")
        if s < 7: a("s_add_u32 s62, s62, %d" % (32 * 512))
    a("s_branch L_atake")
    a.label("L_await")
    if 'q' in abl: a("s_branch L_atake")
    for _ in range(pre): a("s_sleep 16")
    a(f"s_mov_b32 s63, {SPIN_MAX}")
    a.label("L_aspin")
    a(f"buffer_load_dwordx2 v[20:21], v14, {WS_}, s82 offen sc1")
    a("s_waitcnt vmcnt(0)")
    a("v_max_u32 v22, v20, v21")
    a("v_cmp_eq_u32 vcc, -1, v22")
    a("s_cmp_eq_u64 vcc, 0")
    a("s_cbranch_scc1 L_atake")
    a("s_sub_u32 s63, s63, 1"); a("s_cmp_eq_u32 s63, 0")
    a("s_cbranch_scc1 L_atake")
    a(f"s_sleep {psleep}")
    a("s_branch L_aspin")
    a.label("L_atake")
    a(f"ds_write_b64 v14, v[20:21] offset:{L_QB}")
    a(f"v_mov_b32 v22, {L_FLAG}"); a("v_mov_b32 v23, 1")
    a("s_waitcnt lgkmcnt(0)")
    a("ds_write_b32 v22, v23")
    stamp(3)
    a("s_setprio 0")
    vm.set(0, 0)
    AK, AV = 160, 148
    kida = [kload(n, AK) for n in range(3)]
    vida = [vload(n, AV) for n in range(3)]
    setup_proj()
    for l in late: vm.issue(l)
    read_q()
    vm.wait_id(kida[2])
    t_score((0,), [32], AK, True)()
    for f in t_softmax(1, [32]): f()
    vm.wait_id(vida[2])
    for n in range(3): t_pv(n, AV)()
    if 'f' in abl: a("s_branch L_acntok")
    a("s_cmp_ge_u32 s2, 20"); a("s_cbranch_scc1 L_acntok")
    a("v_and_b32 v15, 15, v2"); a("v_and_b32 v16, 16, v2"); a("v_lshl_add_u32 v15, v16, 1, v15"); a("v_lshlrev_b32 v15, 2, v15")
    a(f"s_mov_b32 s63, {SPIN_MAX}")
    a.label("L_cnt")
    a(f"buffer_load_dword v16, v15, {DBG_}, 0 offen sc1")
    a("s_waitcnt vmcnt(0)")
    a("v_cmp_gt_u32 vcc, 8, v16")
    a("s_cmp_eq_u64 vcc, 0")
    a("s_cbranch_scc1 L_acntok")
    a("s_sub_u32 s63, s63, 1"); a("s_cmp_eq_u32 s63, 0")
    a("s_cbranch_scc1 L_acntok")
    a("s_sleep 16")
    a("s_branch L_cnt")
    a.label("L_acntok")
    stamp(4)

    a.label("L_tail")
    if 't' in abl:
        a("s_waitcnt vmcnt(0)"); a("s_branch L_done")
    exec_valid()
    for j in range(3): a(f"ds_write_b128 v14, v[{DACC+4*j}:{DACC+3+4*j}] offset:{L_OP+256*j}")
    a("s_mov_b64 exec, -1")
    def mlp_part(wait):
        a("v_and_b32 v16, 0xffff, v10"); a("v_lshl_or_b32 v16, v16, 16, v16")
        a("v_lshrrev_b32 v17, 16, v10"); a("v_lshl_or_b32 v17, v17, 16, v17")
        for r in range(4): a(f"v_mov_b32 v{PD+r}, 0")
        for i in range(2):
            for r in range(4): a(f"v_and_b32 v{28+4*i+r}, v{MSK+r}, v{16+i}")
        a(wait)
        for i in range(2):
            a(f"{MF} v[{PD}:{PD+3}], v[{28+4*i}:{31+4*i}], v[{W2+4*i}:{W2+3+4*i}], v[{PD}:{PD+3}]")
    a("s_cmp_eq_u32 s3, 0")
    a("s_cbranch_scc1 L_w0")
    a(f"s_cmp_eq_u32 s3, {AUX}")
    a("s_cbranch_scc1 L_w7")
    a("s_waitcnt lgkmcnt(0)")
    a("s_barrier")
    mlp_part("s_waitcnt vmcnt(0)")
    a("s_branch L_b3b")
    a.label("L_w7")
    mlp_part("s_waitcnt vmcnt(0)")
    a("v_lshrrev_b32 v20, 3, v2"); a("v_lshlrev_b32 v20, 8, v20")
    a("v_add_u32 v21, v20, v3")
    a("v_and_b32 v22, 48, v3"); a("v_add_u32 v22, v20, v22")
    a("v_and_b32 v24, 48, v3"); a("v_add_u32 v24, 128, v24")
    a("v_cmp_gt_u32 vcc, 32, v2")
    a("v_cndmask_b32 v23, v24, v3, vcc")
    a("v_bfe_u32 v24, v2, 4, 1"); a("v_lshl_add_u32 v23, v24, 3, v23")
    a(f"s_mov_b32 s63, {SPIN_MAX}")
    a("s_waitcnt lgkmcnt(0)")
    a("s_barrier")
    tstamp(1)
    a.label("L_chk1")
    a(f"buffer_load_dwordx4 v[128:131], v21, {WS_}, s55 offen sc1")
    a(f"buffer_load_dwordx4 v[132:135], v22, {WS_}, s55 offen offset:128 sc1")
    a(f"buffer_load_dwordx2 v[136:137], v20, {WS_}, s55 offen offset:192 sc1")
    a("s_waitcnt vmcnt(0)")
    a("v_max3_u32 v64, v128, v129, v130"); a("v_max3_u32 v64, v64, v131, v132"); a("v_max3_u32 v64, v64, v133, v134")
    a("v_max3_u32 v64, v64, v135, v136"); a("v_max_u32 v64, v64, v137")
    a("v_cmp_eq_u32 vcc, -1, v64")
    a("s_cmp_eq_u64 vcc, 0")
    a("s_cbranch_scc1 L_go1")
    a("s_sub_u32 s63, s63, 1"); a("s_cmp_lg_u32 s63, 0")
    a("s_cbranch_scc1 L_chk1")
    a.label("L_go1")
    tstamp(2)
    a("v_max_f32_dpp v64, v136, v136 row_ror:8 row_mask:0xf bank_mask:0xf")
    a("v_mov_b32 v65, v64"); a("v_permlane16_swap_b32 v64, v65"); a("v_max_f32 v64, v64, v65")
    a("v_mov_b32 v65, v64"); a("v_permlane32_swap_b32 v64, v65"); a("v_max_f32 v64, v64, v65")
    a("v_sub_f32 v64, v136, v64"); a("v_exp_f32 v64, v64")
    a("v_mul_f32 v66, v64, v137")
    for r in range(8): a(f"v_mul_f32 v{128+r}, v64, v{128+r}")
    a("v_add_f32_dpp v66, v66, v66 row_ror:8 row_mask:0xf bank_mask:0xf")
    for r in range(4): a(f"v_permlane32_swap_b32 v{128+r}, v{132+r}")
    a("v_mov_b32 v65, v66"); a("v_permlane16_swap_b32 v66, v65"); a("v_add_f32 v66, v66, v65")
    for r in range(4): a(f"v_add_f32 v{128+r}, v{128+r}, v{132+r}")
    a("v_mov_b32 v65, v66"); a("v_permlane32_swap_b32 v66, v65"); a("v_add_f32 v66, v66, v65")
    a("v_permlane16_swap_b32 v128, v130"); a("v_permlane16_swap_b32 v129, v131")
    a("v_rcp_f32 v66, v66")
    a("v_add_f32 v128, v128, v130"); a("v_add_f32 v129, v129, v131")
    a("v_add_f32_dpp v128, v128, v128 row_ror:8 row_mask:0xf bank_mask:0xf")
    a("v_add_f32_dpp v129, v129, v129 row_ror:8 row_mask:0xf bank_mask:0xf")
    a("v_mul_f32 v128, v128, v66"); a("v_mul_f32 v129, v129, v66")
    a("v_cvt_pk_bf16_f32 v128, v128, v128"); a("v_cvt_pk_bf16_f32 v129, v129, v129")
    a(f"ds_write_b64 v23, v[128:129] offset:{L_OB}")
    a("s_waitcnt lgkmcnt(0)")
    a.label("L_b3b")
    a("s_barrier")
    a("s_cmp_ge_u32 s65, 2048")
    a("s_cbranch_scc1 L_fin")
    for k in range(3): a(f"ds_read_b64 v[{128+2*k}:{129+2*k}], v7 offset:{L_OB+8*k}")
    a("s_waitcnt lgkmcnt(0)")
    for i in range(6):
        for r in range(4): a(f"v_and_b32 v{64+4*i+r}, v{MSK+r}, v{128+i}")
        if i >= 1:
            a(f"{MF} v[{PD}:{PD+3}], v[{64+4*(i-1)}:{67+4*(i-1)}], v[{WO+4*(i-1)}:{WO+3+4*(i-1)}], v[{PD}:{PD+3}]")
    a(f"{MF} v[{PD}:{PD+3}], v[84:87], v[{WO+20}:{WO+23}], v[{PD}:{PD+3}]")
    for r in range(4): a(f"v_mov_b32 v{20+r}, v{PD+r}")
    for r in range(4): a(f"v_permlane32_swap_b32 v{PD+r}, v{20+r}")
    for r in range(4): a(f"v_add_f32_dpp v{24+r}, v{20+r}, v{PD+r} row_ror:8 row_mask:0xf bank_mask:0xf")
    for r in range(4): a(f"v_min_u32 v{24+r}, -2, v{24+r}")
    a("s_mov_b64 exec, 0x00ff00ff")
    a(f"buffer_store_dwordx4 v[24:27], v11, {WS_}, s58 offen sc1")
    a("s_mov_b64 exec, -1")
    tstamp(3)
    a("s_branch L_fin")
    a.label("L_w0")
    a("v_mov_b32 v65, 0")
    a("v_mul_u32_u24 v66, 43, v2"); a("v_lshrrev_b32 v66, 9, v66")
    a("v_mul_u32_u24 v67, 12, v66"); a("v_sub_u32 v67, v2, v67")
    a("v_lshlrev_b32 v66, 11, v66"); a("v_lshl_add_u32 v66, v67, 4, v66")
    a("v_subrev_u32 v67, 48, v2"); a("v_lshlrev_b32 v67, 11, v67"); a("v_add_u32 v67, 192, v67")
    a("v_cmp_gt_u32 vcc, 48, v2")
    a("v_cndmask_b32 v66, v67, v66, vcc")
    a("s_mov_b32 s62, 0"); a("s_mov_b32 s63, 0xffff0000")
    a("s_waitcnt lgkmcnt(0)")
    a("s_barrier")
    tstamp(1)
    for k in range(4): a(f"ds_read_b128 v[{20+4*k}:{23+4*k}], v65 offset:{L_ML+16*k}")
    for w in range(10): a(f"ds_read_b128 v[{148+4*w}:{151+4*w}], v6 offset:{L_OP+768*w}")
    a("s_waitcnt lgkmcnt(0)" if st == "tail" else "s_waitcnt lgkmcnt(9)")
    for w in range(10, 16): a(f"ds_read_b128 v[{148+4*w}:{151+4*w}], v6 offset:{L_OP+768*w}")
    a("v_max3_f32 v68, v20, v22, v24"); a("v_max3_f32 v68, v68, v26, v28")
    a("v_max3_f32 v68, v68, v30, v32"); a("v_max_f32 v68, v68, v34")
    for w in range(8): a(f"v_sub_f32 v{20+2*w}, v{20+2*w}, v68")
    for w in range(8): a(f"v_exp_f32 v{20+2*w}, v{20+2*w}")
    a("v_mul_f32 v69, v20, v21")
    for w in range(1, 8): a(f"v_fmac_f32 v69, v{20+2*w}, v{21+2*w}")
    a("s_waitcnt lgkmcnt(0)")
    for w in range(8):
        a(f"v_pk_add_f32 v[{148+8*w}:{149+8*w}], v[{148+8*w}:{149+8*w}], v[{152+8*w}:{153+8*w}]")
        a(f"v_pk_add_f32 v[{150+8*w}:{151+8*w}], v[{150+8*w}:{151+8*w}], v[{154+8*w}:{155+8*w}]")
    for r in range(4): a(f"v_mul_f32 v{72+r}, v20, v{148+r}")
    for w in range(1, 8):
        for r in range(4): a(f"v_fmac_f32 v{72+r}, v{20+2*w}, v{148+8*w+r}")
    a("v_cndmask_b32 v72, v72, v68, s[62:63]"); a("v_cndmask_b32 v73, v73, v69, s[62:63]")
    a("v_cndmask_b32 v74, v74, v68, s[62:63]"); a("v_cndmask_b32 v75, v75, v69, s[62:63]")
    for r in range(4): a(f"v_min_u32 v{72+r}, -2, v{72+r}")
    a("s_mov_b32 exec_lo, -1"); a("s_mov_b32 exec_hi, 0xfffff")
    a(f"buffer_store_dwordx4 v[72:75], v66, {WS_}, s56 offen sc1")
    a("s_mov_b64 exec, -1")
    tstamp(2)
    a("s_branch L_b3b")
    a.label("L_fin")
    tstamp(5); tstamp(6); stamp(6)
    a("s_cmp_ge_u32 s2, 20")
    a("s_cbranch_scc1 L_done")
    a("v_lshrrev_b32 v15, 3, v0"); a("v_mul_u32_u24 v15, 2560, v15")
    a("v_add_u32 v15, v15, v3")
    a("s_lshl_b32 s62, s2, 7"); a("s_add_u32 s62, s62, %d" % MB2_OFF); a("s_add_u32 s61, s62, %d" % (64 * 2560))
    a("v_lshlrev_b32 v16, 2, v2"); a("s_lshl_b32 s60, s2, 6")
    a(f"buffer_load_dword v17, v16, {X_}, s60 offen")
    a(f"s_mov_b32 s63, {SPIN_MAX}")
    a.label("L_poll2")
    a(f"buffer_load_dwordx4 v[64:67], v15, {WS_}, s62 offen sc1")
    a(f"buffer_load_dwordx4 v[68:71], v15, {WS_}, s61 offen sc1")
    a("s_waitcnt vmcnt(0)")
    a("v_max3_u32 v18, v64, v65, v66"); a("v_max3_u32 v18, v18, v67, v68"); a("v_max3_u32 v18, v18, v69, v70"); a("v_max_u32 v18, v18, v71")
    a("v_cmp_eq_u32 vcc, -1, v18")
    a("s_cmp_eq_u64 vcc, 0")
    a("s_cbranch_scc1 L_go2")
    a("s_sub_u32 s63, s63, 1"); a("s_cmp_lg_u32 s63, 0")
    a("s_cbranch_scc1 L_poll2")
    a.label("L_go2")
    tstamp(6)
    for r in range(4): a(f"v_add_f32 v{64+r}, v{64+r}, v{68+r}")
    a("v_permlane32_swap_b32 v64, v66"); a("v_permlane32_swap_b32 v65, v67")
    a("v_add_f32 v64, v64, v66"); a("v_add_f32 v65, v65, v67")
    a("v_permlane16_swap_b32 v64, v65"); a("v_add_f32 v64, v64, v65")
    a("v_add_f32_dpp v64, v64, v64 row_ror:8 row_mask:0xf bank_mask:0xf")
    a("v_lshrrev_b32 v18, 4, v2"); a("v_lshlrev_b32 v18, 2, v18")
    a("s_lshl_b32 s62, s3, 7")
    a("v_add3_u32 v18, v18, v3, s62")
    a(f"ds_write_b32 v18, v64 offset:{L_FIN}")
    a("s_waitcnt lgkmcnt(0)")
    a("s_barrier")
    a("s_cmp_lg_u32 s3, 0")
    a("s_cbranch_scc1 L_done")
    a("s_mov_b64 exec, 0xffff")
    a("v_lshlrev_b32 v18, 3, v2")
    for w in range(8): a(f"ds_read_b64 v[{64+2*w}:{65+2*w}], v18 offset:{L_FIN+128*w}")
    unpack(17, 80, 81)
    a("s_waitcnt lgkmcnt(0)")
    for w in range(1, 8):
        a(f"v_add_f32 v64, v64, v{64+2*w}"); a(f"v_add_f32 v65, v65, v{65+2*w}")
    a("v_add_f32 v64, v64, v80"); a("v_add_f32 v65, v65, v81")
    a("v_cvt_pk_bf16_f32 v64, v64, v65")
    a(f"buffer_store_dword v64, v16, {OUT_}, s60 offen")
    a("s_mov_b64 exec, -1")
    a.label("L_done")
    if st == "wave":
        a("s_waitcnt lgkmcnt(0)")
        a("v_mov_b32 v64, s88"); a("v_mov_b32 v65, s89"); a("v_mov_b32 v66, s96"); a("v_mov_b32 v67, s97")
        a("s_lshl_b32 s63, s2, 7"); a("s_lshl_b32 s62, s3, 4"); a("s_add_u32 s63, s63, s62"); a(f"s_add_u32 s63, s63, {STAMP_OFF}")
        a("v_mov_b32 v15, 0"); a("s_mov_b64 exec, 1")
        a(f"buffer_store_dwordx4 v[64:67], v15, {WS_}, s63 offen")
    elif st:
        a("s_memrealtime s[86:87]")
        a("s_cmp_eq_u32 s3, 0"); a("s_cselect_b32 s62, 0, 1")
        a(f"s_cmp_eq_u32 s3, {AUX}"); a("s_cselect_b32 s63, 0, 1")
        a("s_and_b32 s63, s63, s62"); a("s_cmp_eq_u32 s63, 1"); a("s_cbranch_scc1 L_end")
        a("s_waitcnt lgkmcnt(0)")
        for i in range(7):
            a(f"v_mov_b32 v{64+2*i}, s{88+2*i}"); a(f"v_mov_b32 v{65+2*i}, s{89+2*i}")
        a("v_mov_b32 v78, s86"); a("v_mov_b32 v79, s87")
        a("s_lshl_b32 s63, s2, 7"); a("s_lshl_b32 s62, s62, 6"); a("s_add_u32 s63, s63, s62"); a(f"s_add_u32 s63, s63, {STAMP_OFF}")
        a("v_mov_b32 v15, 0"); a("s_mov_b64 exec, 1")
        for i in range(4): a(f"buffer_store_dwordx4 v[{64+4*i}:{67+4*i}], v15, {WS_}, s63 offen offset:{16*i}")
    a.label("L_end")
    a("s_endpgm")
    R('.section .rodata,"a"'); R(".p2align 6"); R(f".amdhsa_kernel {KN}")
    R("  .amdhsa_next_free_vgpr 256"); R("  .amdhsa_next_free_sgpr 102"); R("  .amdhsa_accum_offset 256")
    R("  .amdhsa_group_segment_fixed_size 0"); R("  .amdhsa_kernarg_size 96"); R("  .amdhsa_user_sgpr_count 2")
    R("  .amdhsa_user_sgpr_kernarg_segment_ptr 1"); R("  .amdhsa_system_sgpr_workgroup_id_x 1"); R(".end_amdhsa_kernel")
    open(fname, "w").write(a.text())

if __name__ == "__main__":
    gen("k7_i.s", NV=12, budget=1, wfirst=False, psleep=16, pre=4)
    gen("k7_j.s", NV=14, budget=1, wfirst=False, psleep=24, pre=6)
    gen("k7_k.s", NV=16, budget=1, wfirst=False, psleep=32, pre=8)
    gen("k7_l.s", NV=14, budget=1, wfirst=False, psleep=24, pre=6, cpos=1)
```

```python
import sys
from asmlib import Asm
KN = "parallel_sum__sliding_block_cached__glu_gated_swiglu__decode_kernel"

MBX_OFF, MB2_OFF, QX_OFF, QMB_OFF = 0x80000, 0x100000, 0x200000, 0x60000
STAMP_OFF = 64 << 20
L_P1 = 0
L_QB = 2816
L_HB = L_QB + 384
L_FLAG = 3328
L_OB = 3392
L_ML = 3584
L_OP = 3712
L_FIN = 16256
LDS_SIZE = 17408
OOB = 0x40000000
LOG2E = 0x3fb8aa3b
SCALE = 0x3d93cd3a
SPIN_MAX = 1 << 16
AUX = 7
CLR = 6

K_, V_, WS_, WQ_, WO_, W1_, W3_, W2_, X_, OUT_, DBG_ = [f"s[{i}:{i+3}]" for i in range(8, 52, 4)]
DPP3 = ("quad_perm:[1,0,3,2]", "quad_perm:[2,3,0,1]", "row_half_mirror")
KB, VB = 40, 148
DACC, MSK, AOP, WO, W2, PD = 40, 52, 56, 92, 116, 124
MF = "v_mfma_f32_16x16x32_bf16"

class VM:
    def __init__(self, a):
        self.a = a; self.n = 0; self.done = 0
    def issue(self, s):
        self.a(s); self.n += 1; return self.n - 1
    def wait_id(self, i):
        if i < self.done: return
        self.a(f"s_waitcnt vmcnt({self.n - 1 - i})"); self.done = i + 1
    def throttle(self, T):
        if self.n - self.done > T - 1:
            self.a(f"s_waitcnt vmcnt({T-1})"); self.done = self.n - (T - 1)
    def set(self, n, d):
        self.n = n; self.done = d

def gen(fname, T=4, TL=None, NV=2, budget=2, prio=1, st=None, wfirst=True, abl='', tlb=0, psleep=2, pre=0, cpos=0, cpol='sc1', cnum=5, h1pol='sc1', pupol='sc1', qppol='sc1', xcpos=5, forcex=0):
    TL = T if TL is None else TL
    a = Asm()
    R = a.raw
    R(f"; @launch grid=(256,1,1) block=(512,1,1) lds={LDS_SIZE}")
    R('.amdgcn_target "amdgcn-amd-amdhsa--gfx950"')
    R(".text"); R(f".globl {KN}"); R(".p2align 8"); R(f".type {KN},@function"); R(f"{KN}:")
    def stamp(i, kinds=("main", "wave")):
        if st in kinds: a(f"s_memrealtime s[{88+2*i}:{89+2*i}]")
    def tstamp(i): stamp(i, ("tail",))
    def unpack(src, dlo, dhi):
        a(f"v_lshlrev_b32 v{dlo}, 16, v{src}"); a(f"v_and_b32 v{dhi}, 0xffff0000, v{src}")
    def lohi(src, d):
        a(f"v_and_b32 v{d}, 0xffff, v{src}"); a(f"v_lshlrev_b32 v{d+1}, 16, v{src}")
        a(f"v_lshrrev_b32 v{d+2}, 16, v{src}"); a(f"v_and_b32 v{d+3}, 0xffff0000, v{src}")
    def exec_hi16():
        a("s_mov_b32 exec_lo, 0"); a("s_mov_b32 exec_hi, 0xffff0000")
    def exec_valid():
        a("s_mov_b32 exec_lo, 0x00ff00ff"); a("s_mov_b32 exec_hi, 0xff00ff00")
    def srd(base, ptr, size):
        a(f"s_mov_b32 s{base}, s{ptr}"); a(f"s_mov_b32 s{base+1}, s{ptr+1}")
        a(f"s_mov_b32 s{base+2}, {size}"); a(f"s_mov_b32 s{base+3}, 0x00020000")
    def masks(d, t0, t1):
        a(f"v_and_b32 v{t0}, 1, v2"); a(f"v_lshlrev_b32 v{t0}, 4, v{t0}")
        a(f"v_mov_b32 v{t1}, 0xffff"); a(f"v_lshlrev_b32 v{t1}, v{t0}, v{t1}")
        a(f"v_bfe_u32 v{t0}, v2, 1, 2")
        for r in range(4):
            a(f"v_cmp_eq_u32 vcc, {r}, v{t0}")
            a(f"v_cndmask_b32 v{d+r}, 0, v{t1}, vcc")
    vm = VM(a)
    a("s_cmp_ge_u32 s2, 256")
    a("s_cbranch_scc1 L_end")
    stamp(0, ("main", "wave", "tail"))
    a("s_load_dwordx16 s[52:67], s[0:1], 0")
    a("s_load_dwordx8 s[68:75], s[0:1], 64")
    a("v_lshrrev_b32 v15, 6, v0")
    a("v_and_b32 v2, 63, v0")
    a("v_readfirstlane_b32 s3, v15")
    a("s_and_b32 s4, s2, 31")
    a("s_lshr_b32 s5, s2, 5")
    a("s_lshr_b32 s6, s5, 1")
    a("s_and_b32 s7, s5, 1")
    a("v_lshrrev_b32 v15, 3, v2")
    a("v_and_b32 v3, 7, v2"); a("v_lshlrev_b32 v3, 4, v3")
    a("v_mul_u32_u24 v1, 384, v15"); a("v_add_u32 v1, v1, v3")
    a("v_lshlrev_b32 v6, 4, v2")
    a("s_mul_i32 s76, s4, 12582912"); a("s_mul_i32 s77, s5, %d" % (512 * 384))
    a("s_add_u32 s76, s76, s77"); a("s_add_u32 s76, s76, %d" % (28672 * 384))
    a(f"s_cmp_eq_u32 s3, {AUX}")
    a("s_cbranch_scc1 L_aux")

    SO = 78
    def kload(n, base=KB):
        i, j = divmod(n, 3); r = base + 4 * n
        return vm.issue(f"buffer_load_dwordx4 v[{r}:{r+3}], v1, {K_}, s{SO+i} offen offset:{j*128} nt")
    def vload(n, base=VB):
        i, j = divmod(n, 3); r = base + 4 * n
        return vm.issue(f"buffer_load_dwordx4 v[{r}:{r+3}], v1, {V_}, s{SO+i} offen offset:{j*128} nt")

    def setup_common():
        srd(16, 74, 1610612736); srd(24, 60, 7864320); srd(36, 68, 1966080); srd(44, 70, 1280); srd(48, 72, 256)
        srd(40, 52, 1280)
        a("s_mul_i32 s52, s4, 192"); a("s_mul_i32 s63, s6, 48"); a("s_add_u32 s52, s52, s63"); a("s_mul_i32 s52, s52, 1280")
        a("s_mul_i32 s63, s7, 640"); a("s_add_u32 s52, s52, s63")
        a("s_lshl_b32 s53, s4, 6"); a("s_lshl_b32 s62, s6, 4"); a("s_add_u32 s53, s53, s62"); a("s_mul_i32 s53, s53, 1280")
        a("s_add_u32 s53, s53, s63")
        a("s_cmp_lt_u32 s4, 24"); a("s_cselect_b32 s53, s53, %d" % OOB)
        a("s_sub_u32 s62, s3, 1"); a("s_cmp_lt_u32 s62, 4"); a("s_cselect_b32 s62, s62, 8"); a("s_cmp_eq_u32 s3, 7"); a("s_cselect_b32 s62, 4, s62")
        a("s_lshl_b32 s63, s62, 7"); a("s_cmp_lt_u32 s62, 5"); a("s_cselect_b32 s63, s63, %d" % OOB)
        a("s_add_u32 s52, s52, s63"); a("s_add_u32 s53, s53, s63"); a("s_add_u32 s64, s52, 5120")
        a("s_lshl_b32 s65, s62, 8")
        a("s_lshl_b32 s54, s4, 13"); a("s_add_u32 s54, s54, %d" % MBX_OFF)
        a("s_lshl_b32 s62, s6, 11"); a("s_add_u32 s55, s54, s62")
        a("s_lshl_b32 s62, s5, 8"); a("s_add_u32 s56, s54, s62")
        a("s_mul_i32 s57, s4, 10240"); a("s_add_u32 s57, s57, %d" % QX_OFF)
        a("s_lshl_b32 s58, s4, 2"); a("s_add_u32 s58, s58, s6"); a("s_mul_i32 s58, s58, 2560")
        a("s_mul_i32 s62, s7, 1280"); a("s_add_u32 s58, s58, s62"); a("s_add_u32 s58, s58, %d" % MB2_OFF); a("s_add_u32 s58, s58, s65")
        a("s_mul_i32 s59, s4, 10240"); a("s_mul_i32 s62, s5, 1280"); a("s_add_u32 s59, s59, s62"); a("s_add_u32 s59, s59, %d" % QX_OFF)
    def setup_proj():
        a("v_lshrrev_b32 v15, 3, v2")
        a("v_mul_u32_u24 v4, 7680, v15"); a("v_add_u32 v4, v4, v3")
        a("v_mul_u32_u24 v5, 2560, v15"); a("v_add_u32 v5, v5, v3")
        a("v_lshlrev_b32 v9, 2, v15"); a("s_lshl_b32 s87, s6, 5"); a("v_add_u32 v9, s87, v9")
        a("v_lshlrev_b32 v8, 4, v3")
        a("v_mul_u32_u24 v7, 24, v15")
        a("v_and_b32 v16, 16, v2")
        a("v_lshl_add_u32 v11, v3, 1, v16")
        a("v_lshrrev_b32 v15, 5, v2"); a("v_mul_u32_u24 v15, 768, v15")
        a("s_mul_i32 s87, s3, 1536")
        a("v_add3_u32 v14, v11, v15, s87")

    late = [f"buffer_load_dwordx4 v[{W2+4*i}:{W2+3+4*i}], v5, {W2_}, s53 offen offset:{1280*i} nt" for i in range(2)]
    late += [f"buffer_load_dwordx4 v[{WO+4*i}:{WO+3+4*i}], v4, {WO_}, {'s52' if i < 4 else 's64'} offen offset:{1280*(i%4)} nt" for i in range(6)]

    def read_q():
        for j in range(3):
            a(f"ds_read_b128 v[{20+4*j}:{23+4*j}], v3 offset:{L_QB+128*j}")
        a(f"ds_read_b32 v10, v9 offset:{L_HB}")
    def t_score(groups, sc, kb, first):
        def f():
            if first: a("s_waitcnt lgkmcnt(0)")
            for i in groups: a(f"v_mov_b32 v{sc[i]}, 0")
            for j in range(3):
                for r in range(4):
                    for i in groups:
                        a(f"v_dot2c_f32_bf16 v{sc[i]}, v{kb+12*i+4*j+r}, v{20+4*j+r}")
            for m in DPP3:
                for i in groups:
                    a(f"v_add_f32_dpp v{sc[i]}, v{sc[i]}, v{sc[i]} {m} row_mask:0xf bank_mask:0xf")
            s0 = sc[groups[0]]; s1 = sc[groups[-1]]
            for rnd in range(2):
                a(f"v_cvt_pk_bf16_f32 v15, v{s0}, v{s1}")
                a(f"v_lshlrev_b32 v{s0}, 16, v15")
                if s1 != s0: a(f"v_and_b32 v{s1}, 0xffff0000, v15")
                if rnd == 0:
                    for i in groups: a(f"v_mul_f32 v{sc[i]}, {SCALE:#x}, v{sc[i]}")
        return f
    def t_softmax(G, sc):
        def f1():
            a(f"v_mov_b32 v15, v{sc[0]}")
            rest = list(range(1, G))
            for k in range(0, len(rest), 2): a(f"v_max3_f32 v15, v15, v{sc[rest[k]]}, v{sc[rest[k+1]]}")
            a("v_max_f32_dpp v15, v15, v15 row_ror:8 row_mask:0xf bank_mask:0xf")
            for r in range(DACC, DACC + 12): a(f"v_mov_b32 v{r}, 0")
            a("v_mov_b32 v16, v15"); a("v_permlane16_swap_b32 v15, v16"); a("v_max_f32 v15, v15, v16")
            a("v_mov_b32 v16, v15"); a("v_permlane32_swap_b32 v15, v16"); a("v_max_f32 v15, v15, v16")
            a(f"v_mul_f32 v12, {LOG2E:#x}, v15")
            masks(MSK, 17, 18)
        def f2():
            a(f"s_mov_b32 s62, {LOG2E:#x}")
            for i in range(G): a(f"v_fma_f32 v{sc[i]}, v{sc[i]}, s62, -v12")
            for i in range(G): a(f"v_exp_f32 v{sc[i]}, v{sc[i]}")
            for i in range(G): a(f"v_cvt_pk_bf16_f32 v{sc[i]}, v{sc[i]}, v{sc[i]}")
        def f3():
            for i in range(G):
                for r in range(4): a(f"v_and_b32 v{AOP+4*i+r}, v{MSK+r}, v{sc[i]}")
        def f4():
            a(f"v_and_b32 v13, 0xffff0000, v{sc[0]}")
            for i in range(1, G):
                a(f"v_and_b32 v15, 0xffff0000, v{sc[i]}"); a("v_add_f32 v13, v13, v15")
            a("v_add_f32_dpp v13, v13, v13 row_ror:8 row_mask:0xf bank_mask:0xf")
            a("v_mov_b32 v16, v13"); a("v_permlane16_swap_b32 v13, v16"); a("v_add_f32 v13, v13, v16")
            a("v_mov_b32 v16, v13"); a("v_permlane32_swap_b32 v13, v16"); a("v_add_f32 v13, v13, v16")
            a("s_lshl_b32 s62, s3, 3"); a("v_mov_b32 v16, s62")
            a(f"ds_write_b64 v16, v[12:13] offset:{L_ML}")
        return [f1, f2, f3, f4]
    def t_pv(n, vb):
        def f():
            i, j = divmod(n, 3)
            d = DACC + 4 * j
            a(f"{MF} v[{d}:{d+3}], v[{AOP+4*i}:{AOP+3+4*i}], v[{vb+4*n}:{vb+3+4*n}], v[{d}:{d+3}]")
        return f

    a("s_lshr_b32 s77, s2, 3"); a("s_add_u32 s77, s77, s3"); a("s_add_u32 s77, s77, s2")
    a("s_mul_i32 s87, s77, 57"); a("s_lshr_b32 s87, s87, 9"); a("s_mul_i32 s87, s87, 9"); a("s_sub_u32 s77, s77, s87")
    a("s_mul_i32 s87, s3, 3072"); a("s_add_u32 s76, s76, s87")
    for i in range(9):
        a(f"s_add_u32 s{SO+i}, s77, {i}"); a(f"s_sub_u32 s87, s{SO+i}, 9"); a(f"s_cmp_ge_u32 s{SO+i}, 9")
        a(f"s_cselect_b32 s{SO+i}, s87, s{SO+i}"); a(f"s_mul_i32 s{SO+i}, s{SO+i}, {7*3072}"); a(f"s_add_u32 s{SO+i}, s{SO+i}, s76")
    if prio:
        a("s_cmp_lt_u32 s3, 4"); a("s_cbranch_scc1 L_noprio"); a(f"s_setprio {prio}"); a.label("L_noprio")
    setup_proj()
    a("s_waitcnt lgkmcnt(0)")
    srd(8, 54, 402653184); srd(12, 56, 402653184)
    setup_common()
    if tlb:
        a("s_cmp_lg_u32 s3, 5"); a("s_cbranch_scc1 L_notlb")
        a("s_mov_b64 exec, 1"); a("v_mov_b32 v20, 0")
        a("s_add_u32 s62, s76, %d" % (196608 - 5 * 3072 - 64))
        a(f"buffer_load_dword v21, v20, {V_}, s76 offen nt")
        a(f"buffer_load_dword v22, v20, {V_}, s62 offen nt")
        a(f"buffer_load_dword v23, v20, {K_}, s62 offen nt")
        a(f"buffer_load_dword v24, v20, {WO_}, s52 offen nt")
        a(f"buffer_load_dword v25, v20, {W2_}, s53 offen nt")
        a(f"buffer_load_dword v26, v20, {WS_}, s57 offen nt")
        a(f"buffer_load_dword v27, v20, {OUT_}, 0 offen nt")
        a("s_mov_b64 exec, -1")
        a.label("L_notlb")
    kid = {}
    if wfirst: a("s_barrier")
    for n in range(T): kid[n] = kload(n)
    if not wfirst: a("s_barrier")
    for n in range(T, 27):
        vm.throttle(T); kid[n] = kload(n)
    vid = {}
    for n in range(NV):
        vm.throttle(T); vid[n] = vload(n)
    stamp(2)
    a(f"v_mov_b32 v15, {L_FLAG}")
    a(f"s_mov_b32 s63, {SPIN_MAX}")
    a.label("L_flag")
    a("ds_read_b32 v16, v15")
    a("s_waitcnt lgkmcnt(0)")
    a("v_readfirstlane_b32 s66, v16")
    a("s_cmp_lg_u32 s66, 0")
    a("s_cbranch_scc1 L_flagok")
    a("s_sleep 2")
    a("s_sub_u32 s63, s63, 1")
    a("s_cmp_lg_u32 s63, 0")
    a("s_cbranch_scc1 L_flag")
    a.label("L_flagok")
    stamp(3)
    read_q()
    sc = [32 + i for i in range(8)] + [19]
    tasks = [(lambda g=g: kid[3 * g[-1] + 2], t_score(g, sc, KB, g[0] == 0), 4) for g in ((0, 1), (2, 3), (4, 5), (6, 7), (8,))]
    tasks += [(lambda: -1, f, 4) for f in t_softmax(9, sc)]
    tasks += [(lambda n=n: vid.get(n, 10**9), t_pv(n, VB), 0.5) for n in range(27)]
    ndone = 0
    for n in range(NV, 35):
        if n < 27 + TL - 1: vm.throttle(TL)
        if n < 27: vid[n] = vload(n)
        else:
            assert ndone >= 8
            vm.issue(late[n - 27])
        b = budget * 4
        while b > 0 and tasks and tasks[0][0]() < vm.done:
            t = tasks.pop(0); t[1](); b -= t[2]; ndone += 1
    while tasks:
        req, f, c = tasks.pop(0)
        if req() >= 0: vm.wait_id(req())
        f()
    stamp(4)
    a("s_branch L_tail")

    a.label("L_aux")
    vm.set(0, 0)
    a("s_setprio 2")
    a(f"v_mov_b32 v16, {L_FLAG}"); a("v_mov_b32 v17, 0")
    a("ds_write_b32 v16, v17")
    a("v_mul_u32_u24 v4, 122880, v15"); a("v_add_u32 v4, v4, v3")
    a("v_mul_u32_u24 v5, 30720, v15"); a("v_add_u32 v5, v5, v3")
    a("v_mul_u32_u24 v7, 20, v15")
    a(f"s_add_u32 s{SO}, s76, {63*3072}")
    a("s_mul_i32 s79, s5, 160")
    a("s_mul_i32 s80, s5, %d" % (80 * 12288)); a("s_mul_i32 s77, s4, 384"); a("s_add_u32 s80, s80, s77")
    a("s_mul_i32 s81, s5, %d" % (80 * 3072)); a("s_lshl_b32 s77, s4, 7"); a("s_add_u32 s81, s81, s77")
    a("s_cmp_lt_u32 s4, 24"); a("s_cselect_b32 s81, s81, %d" % OOB)
    a("s_lshl_b32 s82, s2, 9"); a("s_add_u32 s82, s82, %d" % QMB_OFF)
    a("v_lshlrev_b32 v14, 3, v2")
    a("s_lshl_b32 s83, s4, 13"); a("s_lshl_b32 s77, s5, 8"); a("s_add_u32 s83, s83, s77"); a("s_add_u32 s83, s83, %d" % MBX_OFF)
    a("v_lshrrev_b32 v12, 4, v2"); a("v_lshlrev_b32 v12, 11, v12"); a("v_and_b32 v13, 15, v2"); a("v_lshl_add_u32 v12, v13, 4, v12")
    a("s_lshl_b32 s84, s4, 2"); a("s_add_u32 s84, s84, s6"); a("s_mul_i32 s84, s84, 2560")
    a("s_mul_i32 s77, s7, 1280"); a("s_add_u32 s84, s84, s77"); a("s_add_u32 s84, s84, %d" % MB2_OFF)
    a("s_getreg_b32 s85, hwreg(HW_REG_XCC_ID)"); a("s_and_b32 s85, s85, 15")
    a("s_mul_i32 s77, s85, s85"); a("s_lshl_b32 s77, s77, 12"); a("s_lshl_b32 s85, s85, 4"); a("s_add_u32 s85, s85, s77"); a("s_add_u32 s85, s85, 1")
    masks(8, 16, 17)
    for r in range(52, 56): a(f"v_mov_b32 v{r}, -1")
    a("s_waitcnt lgkmcnt(0)")
    srd(16, 74, 1610612736); srd(48, 72, 256)
    def clears():
        if 'a' in abl: return
        vm.issue(f"buffer_store_dwordx2 v[52:53], v14, {WS_}, s82 offen {cpol}")
        if cnum < 2: return
        vm.issue(f"buffer_store_dwordx4 v[52:55], v12, {WS_}, s83 offen {cpol}")
        vm.issue(f"buffer_store_dwordx4 v[52:55], v6, {WS_}, s84 offen {cpol}")
        a("s_mov_b64 exec, 0xffff")
        vm.issue(f"buffer_store_dwordx4 v[52:55], v6, {WS_}, s84 offen offset:1024 {cpol}")
        a("s_mov_b64 exec, -1")
    if cpos == 0: clears()
    srd(40, 52, 1280); srd(20, 58, 7864320)
    ix0 = vm.issue(f"buffer_load_dwordx4 v[32:35], v6, {X_}, 0 offen")
    ix1 = vm.issue(f"buffer_load_dwordx4 v[36:39], v6, {X_}, 0 offen offset:1024")
    vm.issue(f"buffer_load_dwordx4 v[16:19], v7, {X_}, s79 offen")
    ixo = vm.issue(f"buffer_load_dword v15, v7, {X_}, s79 offen offset:16")
    srd(28, 64, 1966080); srd(32, 66, 1966080)
    iw = {}
    for i in range(10):
        b = 56 + 20 * i
        for j in range(3):
            vm.issue(f"buffer_load_dwordx4 v[{b+4*j}:{b+3+4*j}], v4, {WQ_}, s80 offen offset:{128*j} nt")
        vm.issue(f"buffer_load_dwordx4 v[{b+12}:{b+15}], v5, {W1_}, s81 offen nt")
        iw[i] = vm.issue(f"buffer_load_dwordx4 v[{b+16}:{b+19}], v5, {W3_}, s81 offen nt")
        if i < 9:
            a("s_add_u32 s80, s80, 12288"); a("s_add_u32 s81, s81, 3072")
    a("s_barrier")
    if cpos == 1: clears()
    srd(8, 54, 402653184); srd(12, 56, 402653184)
    setup_common()
    a("s_and_b32 s62, s4, 16"); a("s_add_u32 s62, s62, s4"); a("s_lshl_b32 s62, s62, 2"); a("v_mov_b32 v12, s62")
    a("v_mov_b32 v13, s85")
    vm.wait_id(ixo)
    for k in range(4): unpack(16 + k, 20 + 2 * k, 21 + 2 * k)
    unpack(15, 28, 29)
    for r in range(8): unpack(32 + r, 40 + 2 * r, 41 + 2 * r)
    def wave_sum(v, sdst):
        for m in DPP3 + ("row_mirror",):
            a(f"v_add_f32_dpp v{v}, v{v}, v{v} {m} row_mask:0xf bank_mask:0xf")
        for k in range(4): a(f"v_readlane_b32 s{sdst+k}, v{v}, {16*k}")
        a(f"v_mov_b32 v{v}, s{sdst}")
        for k in range(1, 4): a(f"v_add_f32 v{v}, s{sdst+k}, v{v}")
    a("v_add_f32 v15, v40, v41")
    for r in range(42, 56): a(f"v_add_f32 v15, v15, v{r}")
    wave_sum(15, 60)
    a("v_mul_f32 v15, 0x3acccccd, v15")
    a("v_mov_b32 v16, 0")
    for r in range(40, 48):
        a(f"v_sub_f32 v17, v{r}, v15"); a("v_fmac_f32 v16, v17, v17")
    a("s_mov_b64 exec, 0xffff")
    for r in range(48, 56):
        a(f"v_sub_f32 v17, v{r}, v15"); a("v_fmac_f32 v16, v17, v17")
    a("s_mov_b64 exec, -1")
    wave_sum(16, 60)
    a("v_mul_f32 v16, 0x3acccccd, v16")
    a("v_cvt_pk_bf16_f32 v17, v15, v16")
    a("v_lshlrev_b32 v15, 16, v17")
    a("v_and_b32 v16, 0xffff0000, v17")
    a("v_add_f32 v16, 0x3727c5ac, v16")
    a("v_cvt_pk_bf16_f32 v16, v16, v16")
    a("v_lshlrev_b32 v16, 16, v16")
    a("v_sqrt_f32 v16, v16")
    a("v_cvt_pk_bf16_f32 v16, v16, v16")
    a("v_lshlrev_b32 v16, 16, v16")
    a("v_rcp_f32 v17, v16")
    for i in range(10): a(f"v_sub_f32 v{20+i}, v{20+i}, v15")
    for i in range(0, 10, 2):
        a(f"v_cvt_pk_bf16_f32 v18, v{20+i}, v{21+i}"); unpack(18, 20 + i, 21 + i)
    for i in range(10):
        a(f"v_mul_f32 v18, v{20+i}, v17")
        a(f"v_fma_f32 v19, -v18, v16, v{20+i}")
        a(f"v_fma_f32 v{20+i}, v19, v17, v18")
    for i in range(10): a(f"v_cvt_pk_bf16_f32 v{20+i}, v{20+i}, v{20+i}")
    for r in range(32, 52): a(f"v_mov_b32 v{r}, 0")
    a("v_lshrrev_b32 v15, 5, v2"); a("v_mul_u32_u24 v15, 1280, v15")
    a("v_and_b32 v16, 16, v2"); a("v_lshl_add_u32 v16, v3, 1, v16"); a("v_add_u32 v15, v15, v16")
    a("v_lshlrev_b32 v14, 3, v2")
    for i in range(10):
        for r in range(4): a(f"v_and_b32 v{52+r}, v{8+r}, v{20+i}")
        vm.wait_id(iw[i])
        b = 56 + 20 * i
        for c in range(5):
            a(f"{MF} v[{32+4*c}:{35+4*c}], v[52:55], v[{b+4*c}:{b+3+4*c}], v[{32+4*c}:{35+4*c}]")
    stamp(1)
    exec_valid()
    for c in range(5): a(f"ds_write_b128 v15, v[{32+4*c}:{35+4*c}] offset:{L_P1+256*c}")
    a("s_mov_b64 exec, -1")
    a("s_waitcnt lgkmcnt(0)")
    a(f"ds_read_b128 v[64:67], v6 offset:{L_P1}")
    a(f"ds_read_b128 v[68:71], v6 offset:{L_P1+1280}")
    a(f"ds_read_b128 v[72:75], v6 offset:{L_P1+256}")
    a(f"ds_read_b128 v[76:79], v6 offset:{L_P1+1280+256}")
    a("s_waitcnt lgkmcnt(0)")
    for r in range(4):
        a(f"v_add_f32 v{64+r}, v{64+r}, v{68+r}"); a(f"v_add_f32 v{72+r}, v{72+r}, v{76+r}")
    for r in range(4):
        a(f"v_min_u32 v{64+r}, -2, v{64+r}"); a(f"v_min_u32 v{72+r}, -2, v{72+r}")
    if 'b' in abl: a("s_branch L_atake")
    a(f"buffer_store_dwordx4 v[64:67], v6, {WS_}, s59 offen sc1")
    exec_hi16()
    a(f"buffer_store_dwordx4 v[72:75], v6, {WS_}, s59 offen offset:256 sc1")
    a("s_mov_b64 exec, -1")
    a("s_mov_b64 exec, 1")
    a("s_waitcnt vmcnt(0)")
    if 'n' in abl: pass
    elif 'r' in abl: a(f"buffer_atomic_add v13, v12, {DBG_}, 0 offen")
    elif 'w' in abl: a(f"buffer_atomic_add v13, v12, {WS_}, s82 offen sc0")
    else: a(f"buffer_atomic_add v13, v12, {DBG_}, 0 offen sc0")
    a("s_waitcnt vmcnt(0)")
    a("v_readfirstlane_b32 s62, v13")
    a("s_mov_b64 exec, -1")
    stamp(5)
    if 'c' in abl: a("s_branch L_atake")
    if st == "main":
        a("s_and_b32 s92, s62, 7"); a("s_mov_b32 s93, 0")
    a("s_mul_i32 s63, s85, 7"); a("s_cmp_eq_u32 s62, s63"); a("s_cselect_b32 s66, 2, 1")
    if forcex: a("s_mov_b32 s66, 1")
    a("s_add_u32 s67, s6, 1"); a("s_and_b32 s67, s67, 3"); a("s_lshl_b32 s67, s67, 2"); a("s_add_u32 s67, s67, 48")
    a("s_and_b32 s62, s62, 7"); a("s_cmp_eq_u32 s62, 7")
    a("s_cbranch_scc0 L_await")
    a("s_add_u32 s60, s57, 3840"); a("s_add_u32 s61, s57, 7680")
    if 'g' not in abl:
        for s in range(8):
            so = ("s57", "s60", "s61")[s // 3]
            a(f"buffer_load_dwordx4 v[{96+4*s}:{99+4*s}], v6, {WS_}, {so} offen offset:{(s%3)*1280} sc1")
        exec_hi16()
        for s in range(8):
            so = ("s57", "s60", "s61")[s // 3]
            a(f"buffer_load_dwordx4 v[{160+4*s}:{163+4*s}], v6, {WS_}, {so} offen offset:{(s%3)*1280+256} sc1")
        a("s_mov_b64 exec, -1")
        a("s_waitcnt vmcnt(0)")
    a.label("L_agot")
    for s in range(1, 8):
        for r in range(4):
            a(f"v_add_f32 v{96+r}, v{96+r}, v{96+4*s+r}")
            a(f"v_add_f32 v{160+r}, v{160+r}, v{160+4*s+r}")
    a("v_cvt_pk_bf16_f32 v20, v96, v97"); a("v_cvt_pk_bf16_f32 v21, v98, v99")
    a("v_cvt_pk_bf16_f32 v22, v160, v161"); a("v_cvt_pk_bf16_f32 v23, v162, v163")
    exec_hi16()
    unpack(20, 64, 65); unpack(21, 66, 67); unpack(22, 160, 161); unpack(23, 162, 163)
    for r in range(4): a(f"v_mul_f32 v{68+r}, {LOG2E|0x80000000:#x}, v{64+r}")
    for r in range(4): a(f"v_exp_f32 v{68+r}, v{68+r}")
    for r in range(4): a(f"v_add_f32 v{68+r}, 1.0, v{68+r}")
    for r in range(4): a(f"v_rcp_f32 v{72+r}, v{68+r}")
    for r in range(4): a(f"v_mul_f32 v{76+r}, v{64+r}, v{72+r}")
    a("v_cvt_pk_bf16_f32 v20, v76, v77"); a("v_cvt_pk_bf16_f32 v21, v78, v79")
    unpack(20, 64, 65); unpack(21, 66, 67)
    for r in range(4): a(f"v_mul_f32 v{64+r}, v{64+r}, v{160+r}")
    a("v_cvt_pk_bf16_f32 v20, v64, v65"); a("v_cvt_pk_bf16_f32 v21, v66, v67")
    a("s_mov_b64 exec, -1")
    a("v_min_u32 v20, -2, v20"); a("v_min_u32 v21, -2, v21")
    a("s_lshl_b32 s62, s4, 9"); a("s_add_u32 s62, s62, %d" % QMB_OFF)
    for rq in range(4):
        a(f"v_mov_b32 v{24+2*rq}, v20"); a(f"v_mov_b32 v{25+2*rq}, v21")
        a(f"v_writelane_b32 v{24+2*rq}, s66, {48 + 4 * ((rq + 1) & 3)}")
    a("s_cmp_eq_u32 s66, 2"); a("s_cbranch_scc1 L_pushL")
    for pol in ("sc1", ""):
        for s in range(8):
            a(f"buffer_store_dwordx2 v[{24+2*(s>>1)}:{25+2*(s>>1)}], v14, {WS_}, s62 offen {pol}")
            if s < 7: a("s_add_u32 s62, s62, %d" % (32 * 512))
        a("s_branch L_atake")
        if pol: a.label("L_pushL")
    a.label("L_await")
    if 'q' in abl: a("s_branch L_atake")
    for _ in range(pre): a("s_sleep 16")
    a(f"s_mov_b32 s63, {SPIN_MAX}")
    a.label("L_aspin")
    a(f"buffer_load_dwordx2 v[20:21], v14, {WS_}, s82 offen sc1")
    a("s_waitcnt vmcnt(0)")
    a("v_max_u32 v22, v20, v21")
    a("v_cmp_eq_u32 vcc, -1, v22")
    a("s_cmp_eq_u64 vcc, 0")
    a("s_cbranch_scc1 L_agotq")
    a("s_sub_u32 s63, s63, 1"); a("s_cmp_eq_u32 s63, 0")
    a("s_cbranch_scc1 L_agotq")
    a(f"s_sleep {psleep}")
    a("s_branch L_aspin")
    a.label("L_agotq")
    a("v_readlane_b32 s66, v20, s67")
    a("s_cmp_eq_u32 s66, 2"); a("s_cselect_b32 s66, 2, 1")
    a.label("L_atake")
    a(f"ds_write_b64 v14, v[20:21] offset:{L_QB}")
    a(f"v_mov_b32 v22, {L_FLAG}"); a("v_mov_b32 v23, s66")
    a("s_waitcnt lgkmcnt(0)")
    a("ds_write_b32 v22, v23")
    stamp(3)
    a("s_setprio 0")
    vm.set(0, 0)
    AK, AV = 160, 148
    kida = [kload(n, AK) for n in range(3)]
    vida = [vload(n, AV) for n in range(3)]
    setup_proj()
    for l in late: vm.issue(l)
    read_q()
    vm.wait_id(kida[2])
    t_score((0,), [32], AK, True)()
    for f in t_softmax(1, [32]): f()
    vm.wait_id(vida[2])
    for n in range(3): t_pv(n, AV)()
    if 'f' in abl: a("s_branch L_acntok")
    a("s_cmp_ge_u32 s2, 20"); a("s_cbranch_scc1 L_acntok")
    a("v_and_b32 v15, 15, v2"); a("v_and_b32 v16, 16, v2"); a("v_lshl_add_u32 v15, v16, 1, v15"); a("v_lshlrev_b32 v15, 2, v15")
    a(f"s_mov_b32 s63, {SPIN_MAX}")
    a.label("L_cnt")
    a(f"buffer_load_dword v16, v15, {DBG_}, 0 offen sc1")
    a("s_waitcnt vmcnt(0)")
    a("v_and_b32 v16, 15, v16")
    a("v_cmp_gt_u32 vcc, 8, v16")
    a("s_cmp_eq_u64 vcc, 0")
    a("s_cbranch_scc1 L_acntok")
    a("s_sub_u32 s63, s63, 1"); a("s_cmp_eq_u32 s63, 0")
    a("s_cbranch_scc1 L_acntok")
    a("s_sleep 16")
    a("s_branch L_cnt")
    a.label("L_acntok")
    stamp(4)

    a.label("L_tail")
    if 't' in abl:
        a("s_waitcnt vmcnt(0)"); a("s_branch L_done")
    exec_valid()
    for j in range(3): a(f"ds_write_b128 v14, v[{DACC+4*j}:{DACC+3+4*j}] offset:{L_OP+256*j}")
    a("s_mov_b64 exec, -1")
    def mlp_part(wait):
        a("v_and_b32 v16, 0xffff, v10"); a("v_lshl_or_b32 v16, v16, 16, v16")
        a("v_lshrrev_b32 v17, 16, v10"); a("v_lshl_or_b32 v17, v17, 16, v17")
        for r in range(4): a(f"v_mov_b32 v{PD+r}, 0")
        for i in range(2):
            for r in range(4): a(f"v_and_b32 v{28+4*i+r}, v{MSK+r}, v{16+i}")
        a(wait)
        for i in range(2):
            a(f"{MF} v[{PD}:{PD+3}], v[{28+4*i}:{31+4*i}], v[{W2+4*i}:{W2+3+4*i}], v[{PD}:{PD+3}]")
    a("s_cmp_eq_u32 s3, 0")
    a("s_cbranch_scc1 L_w0")
    a(f"s_cmp_eq_u32 s3, {AUX}")
    a("s_cbranch_scc1 L_w7")
    a("s_waitcnt lgkmcnt(0)")
    a("s_barrier")
    mlp_part("s_waitcnt vmcnt(0)")
    a("s_branch L_b3b")
    a.label("L_w7")
    mlp_part("s_waitcnt vmcnt(0)")
    a("v_lshrrev_b32 v20, 3, v2"); a("v_lshlrev_b32 v20, 8, v20")
    a("v_add_u32 v21, v20, v3")
    a("v_and_b32 v22, 48, v3"); a("v_add_u32 v22, v20, v22")
    a("v_and_b32 v24, 48, v3"); a("v_add_u32 v24, 128, v24")
    a("v_cmp_gt_u32 vcc, 32, v2")
    a("v_cndmask_b32 v23, v24, v3, vcc")
    a("v_bfe_u32 v24, v2, 4, 1"); a("v_lshl_add_u32 v23, v24, 3, v23")
    a(f"s_mov_b32 s63, {SPIN_MAX}")
    a("s_waitcnt lgkmcnt(0)")
    a("s_barrier")
    tstamp(1)
    a.label("L_chk1")
    a(f"buffer_load_dwordx4 v[128:131], v21, {WS_}, s55 offen sc1")
    a(f"buffer_load_dwordx4 v[132:135], v22, {WS_}, s55 offen offset:128 sc1")
    a(f"buffer_load_dwordx2 v[136:137], v20, {WS_}, s55 offen offset:192 sc1")
    a("s_waitcnt vmcnt(0)")
    a("v_max3_u32 v64, v128, v129, v130"); a("v_max3_u32 v64, v64, v131, v132"); a("v_max3_u32 v64, v64, v133, v134")
    a("v_max3_u32 v64, v64, v135, v136"); a("v_max_u32 v64, v64, v137")
    a("v_cmp_eq_u32 vcc, -1, v64")
    a("s_cmp_eq_u64 vcc, 0")
    a("s_cbranch_scc1 L_go1")
    a("s_sub_u32 s63, s63, 1"); a("s_cmp_lg_u32 s63, 0")
    a("s_cbranch_scc1 L_chk1")
    a.label("L_go1")
    tstamp(2)
    a("v_max_f32_dpp v64, v136, v136 row_ror:8 row_mask:0xf bank_mask:0xf")
    a("v_mov_b32 v65, v64"); a("v_permlane16_swap_b32 v64, v65"); a("v_max_f32 v64, v64, v65")
    a("v_mov_b32 v65, v64"); a("v_permlane32_swap_b32 v64, v65"); a("v_max_f32 v64, v64, v65")
    a("v_sub_f32 v64, v136, v64"); a("v_exp_f32 v64, v64")
    a("v_mul_f32 v66, v64, v137")
    for r in range(8): a(f"v_mul_f32 v{128+r}, v64, v{128+r}")
    a("v_add_f32_dpp v66, v66, v66 row_ror:8 row_mask:0xf bank_mask:0xf")
    for r in range(4): a(f"v_permlane32_swap_b32 v{128+r}, v{132+r}")
    a("v_mov_b32 v65, v66"); a("v_permlane16_swap_b32 v66, v65"); a("v_add_f32 v66, v66, v65")
    for r in range(4): a(f"v_add_f32 v{128+r}, v{128+r}, v{132+r}")
    a("v_mov_b32 v65, v66"); a("v_permlane32_swap_b32 v66, v65"); a("v_add_f32 v66, v66, v65")
    a("v_permlane16_swap_b32 v128, v130"); a("v_permlane16_swap_b32 v129, v131")
    a("v_rcp_f32 v66, v66")
    a("v_add_f32 v128, v128, v130"); a("v_add_f32 v129, v129, v131")
    a("v_add_f32_dpp v128, v128, v128 row_ror:8 row_mask:0xf bank_mask:0xf")
    a("v_add_f32_dpp v129, v129, v129 row_ror:8 row_mask:0xf bank_mask:0xf")
    a("v_mul_f32 v128, v128, v66"); a("v_mul_f32 v129, v129, v66")
    a("v_cvt_pk_bf16_f32 v128, v128, v128"); a("v_cvt_pk_bf16_f32 v129, v129, v129")
    a(f"ds_write_b64 v23, v[128:129] offset:{L_OB}")
    a("s_waitcnt lgkmcnt(0)")
    a.label("L_b3b")
    a("s_barrier")
    a("s_cmp_ge_u32 s65, 2048")
    a("s_cbranch_scc1 L_fin")
    for k in range(3): a(f"ds_read_b64 v[{128+2*k}:{129+2*k}], v7 offset:{L_OB+8*k}")
    a("s_waitcnt lgkmcnt(0)")
    for i in range(6):
        for r in range(4): a(f"v_and_b32 v{64+4*i+r}, v{MSK+r}, v{128+i}")
        if i >= 1:
            a(f"{MF} v[{PD}:{PD+3}], v[{64+4*(i-1)}:{67+4*(i-1)}], v[{WO+4*(i-1)}:{WO+3+4*(i-1)}], v[{PD}:{PD+3}]")
    a(f"{MF} v[{PD}:{PD+3}], v[84:87], v[{WO+20}:{WO+23}], v[{PD}:{PD+3}]")
    for r in range(4): a(f"v_mov_b32 v{20+r}, v{PD+r}")
    for r in range(4): a(f"v_permlane32_swap_b32 v{PD+r}, v{20+r}")
    for r in range(4): a(f"v_add_f32_dpp v{24+r}, v{20+r}, v{PD+r} row_ror:8 row_mask:0xf bank_mask:0xf")
    for r in range(4): a(f"v_min_u32 v{24+r}, -2, v{24+r}")
    a("s_mov_b64 exec, 0x00ff00ff")
    a(f"buffer_store_dwordx4 v[24:27], v11, {WS_}, s58 offen sc1")
    a("s_mov_b64 exec, -1")
    tstamp(3)
    a("s_branch L_fin")
    a.label("L_w0")
    a("v_mov_b32 v65, 0")
    a("v_mul_u32_u24 v66, 43, v2"); a("v_lshrrev_b32 v66, 9, v66")
    a("v_mul_u32_u24 v67, 12, v66"); a("v_sub_u32 v67, v2, v67")
    a("v_lshlrev_b32 v66, 11, v66"); a("v_lshl_add_u32 v66, v67, 4, v66")
    a("v_subrev_u32 v67, 48, v2"); a("v_lshlrev_b32 v67, 11, v67"); a("v_add_u32 v67, 192, v67")
    a("v_cmp_gt_u32 vcc, 48, v2")
    a("v_cndmask_b32 v66, v67, v66, vcc")
    a("s_mov_b32 s62, 0"); a("s_mov_b32 s63, 0xffff0000")
    a("s_waitcnt lgkmcnt(0)")
    a("s_barrier")
    tstamp(1)
    for k in range(4): a(f"ds_read_b128 v[{20+4*k}:{23+4*k}], v65 offset:{L_ML+16*k}")
    for w in range(10): a(f"ds_read_b128 v[{148+4*w}:{151+4*w}], v6 offset:{L_OP+768*w}")
    a("s_waitcnt lgkmcnt(0)" if st == "tail" else "s_waitcnt lgkmcnt(9)")
    for w in range(10, 16): a(f"ds_read_b128 v[{148+4*w}:{151+4*w}], v6 offset:{L_OP+768*w}")
    a("v_max3_f32 v68, v20, v22, v24"); a("v_max3_f32 v68, v68, v26, v28")
    a("v_max3_f32 v68, v68, v30, v32"); a("v_max_f32 v68, v68, v34")
    for w in range(8): a(f"v_sub_f32 v{20+2*w}, v{20+2*w}, v68")
    for w in range(8): a(f"v_exp_f32 v{20+2*w}, v{20+2*w}")
    a("v_mul_f32 v69, v20, v21")
    for w in range(1, 8): a(f"v_fmac_f32 v69, v{20+2*w}, v{21+2*w}")
    a("s_waitcnt lgkmcnt(0)")
    for w in range(8):
        a(f"v_pk_add_f32 v[{148+8*w}:{149+8*w}], v[{148+8*w}:{149+8*w}], v[{152+8*w}:{153+8*w}]")
        a(f"v_pk_add_f32 v[{150+8*w}:{151+8*w}], v[{150+8*w}:{151+8*w}], v[{154+8*w}:{155+8*w}]")
    for r in range(4): a(f"v_mul_f32 v{72+r}, v20, v{148+r}")
    for w in range(1, 8):
        for r in range(4): a(f"v_fmac_f32 v{72+r}, v{20+2*w}, v{148+8*w+r}")
    a("v_cndmask_b32 v72, v72, v68, s[62:63]"); a("v_cndmask_b32 v73, v73, v69, s[62:63]")
    a("v_cndmask_b32 v74, v74, v68, s[62:63]"); a("v_cndmask_b32 v75, v75, v69, s[62:63]")
    for r in range(4): a(f"v_min_u32 v{72+r}, -2, v{72+r}")
    a("s_mov_b32 exec_lo, -1"); a("s_mov_b32 exec_hi, 0xfffff")
    a("s_cmp_eq_u32 s66, 2"); a("s_cbranch_scc1 L_h1L")
    a(f"buffer_store_dwordx4 v[72:75], v66, {WS_}, s56 offen sc1")
    a("s_mov_b64 exec, -1")
    a("s_branch L_b3b")
    a.label("L_h1L")
    a(f"buffer_store_dwordx4 v[72:75], v66, {WS_}, s56 offen")
    a("s_mov_b64 exec, -1")
    tstamp(2)
    a("s_branch L_b3b")
    a.label("L_fin")
    tstamp(5); tstamp(6); stamp(6)
    a("s_cmp_ge_u32 s2, 20")
    a("s_cbranch_scc1 L_done")
    a("v_lshrrev_b32 v15, 3, v0"); a("v_mul_u32_u24 v15, 2560, v15")
    a("v_add_u32 v15, v15, v3")
    a("s_lshl_b32 s62, s2, 7"); a("s_add_u32 s62, s62, %d" % MB2_OFF); a("s_add_u32 s61, s62, %d" % (64 * 2560))
    a("v_lshlrev_b32 v16, 2, v2"); a("s_lshl_b32 s60, s2, 6")
    a(f"buffer_load_dword v17, v16, {X_}, s60 offen")
    a(f"s_mov_b32 s63, {SPIN_MAX}")
    a.label("L_poll2")
    a(f"buffer_load_dwordx4 v[64:67], v15, {WS_}, s62 offen sc1")
    a(f"buffer_load_dwordx4 v[68:71], v15, {WS_}, s61 offen sc1")
    a("s_waitcnt vmcnt(0)")
    a("v_max3_u32 v18, v64, v65, v66"); a("v_max3_u32 v18, v18, v67, v68"); a("v_max3_u32 v18, v18, v69, v70"); a("v_max_u32 v18, v18, v71")
    a("v_cmp_eq_u32 vcc, -1, v18")
    a("s_cmp_eq_u64 vcc, 0")
    a("s_cbranch_scc1 L_go2")
    a("s_sub_u32 s63, s63, 1"); a("s_cmp_lg_u32 s63, 0")
    a("s_cbranch_scc1 L_poll2")
    a.label("L_go2")
    tstamp(6)
    for r in range(4): a(f"v_add_f32 v{64+r}, v{64+r}, v{68+r}")
    a("v_permlane32_swap_b32 v64, v66"); a("v_permlane32_swap_b32 v65, v67")
    a("v_add_f32 v64, v64, v66"); a("v_add_f32 v65, v65, v67")
    a("v_permlane16_swap_b32 v64, v65"); a("v_add_f32 v64, v64, v65")
    a("v_add_f32_dpp v64, v64, v64 row_ror:8 row_mask:0xf bank_mask:0xf")
    a("v_lshrrev_b32 v18, 4, v2"); a("v_lshlrev_b32 v18, 2, v18")
    a("s_lshl_b32 s62, s3, 7")
    a("v_add3_u32 v18, v18, v3, s62")
    a(f"ds_write_b32 v18, v64 offset:{L_FIN}")
    a("s_waitcnt lgkmcnt(0)")
    a("s_barrier")
    a("s_cmp_lg_u32 s3, 0")
    a("s_cbranch_scc1 L_done")
    a("s_mov_b64 exec, 0xffff")
    a("v_lshlrev_b32 v18, 3, v2")
    for w in range(8): a(f"ds_read_b64 v[{64+2*w}:{65+2*w}], v18 offset:{L_FIN+128*w}")
    unpack(17, 80, 81)
    a("s_waitcnt lgkmcnt(0)")
    for w in range(1, 8):
        a(f"v_add_f32 v64, v64, v{64+2*w}"); a(f"v_add_f32 v65, v65, v{65+2*w}")
    a("v_add_f32 v64, v64, v80"); a("v_add_f32 v65, v65, v81")
    a("v_cvt_pk_bf16_f32 v64, v64, v65")
    a(f"buffer_store_dword v64, v16, {OUT_}, s60 offen")
    a("s_mov_b64 exec, -1")
    a.label("L_done")
    if st == "wave":
        a("s_waitcnt lgkmcnt(0)")
        a("v_mov_b32 v64, s88"); a("v_mov_b32 v65, s89"); a("v_mov_b32 v66, s96"); a("v_mov_b32 v67, s97")
        a("s_lshl_b32 s63, s2, 7"); a("s_lshl_b32 s62, s3, 4"); a("s_add_u32 s63, s63, s62"); a(f"s_add_u32 s63, s63, {STAMP_OFF}")
        a("v_mov_b32 v15, 0"); a("s_mov_b64 exec, 1")
        a(f"buffer_store_dwordx4 v[64:67], v15, {WS_}, s63 offen")
    elif st:
        a("s_memrealtime s[86:87]")
        a("s_cmp_eq_u32 s3, 0"); a("s_cselect_b32 s62, 0, 1")
        a(f"s_cmp_eq_u32 s3, {AUX}"); a("s_cselect_b32 s63, 0, 1")
        a("s_and_b32 s63, s63, s62"); a("s_cmp_eq_u32 s63, 1"); a("s_cbranch_scc1 L_end")
        a("s_waitcnt lgkmcnt(0)")
        for i in range(7):
            a(f"v_mov_b32 v{64+2*i}, s{88+2*i}"); a(f"v_mov_b32 v{65+2*i}, s{89+2*i}")
        a("v_mov_b32 v78, s86"); a("v_mov_b32 v79, s87")
        a("s_lshl_b32 s63, s2, 7"); a("s_lshl_b32 s62, s62, 6"); a("s_add_u32 s63, s63, s62"); a(f"s_add_u32 s63, s63, {STAMP_OFF}")
        a("v_mov_b32 v15, 0"); a("s_mov_b64 exec, 1")
        for i in range(4): a(f"buffer_store_dwordx4 v[{64+4*i}:{67+4*i}], v15, {WS_}, s63 offen offset:{16*i}")
    a.label("L_end")
    a("s_endpgm")
    R('.section .rodata,"a"'); R(".p2align 6"); R(f".amdhsa_kernel {KN}")
    R("  .amdhsa_next_free_vgpr 256"); R("  .amdhsa_next_free_sgpr 102"); R("  .amdhsa_accum_offset 256")
    R("  .amdhsa_group_segment_fixed_size 0"); R("  .amdhsa_kernarg_size 96"); R("  .amdhsa_user_sgpr_count 2")
    R("  .amdhsa_user_sgpr_kernarg_segment_ptr 1"); R("  .amdhsa_system_sgpr_workgroup_id_x 1"); R(".end_amdhsa_kernel")
    open(fname, "w").write(a.text())

if __name__ == "__main__":
    base = dict(NV=14, budget=1, wfirst=False, psleep=24, pre=6)
    gen("k10.s", **base)
    gen("k10_c.s", NV=16, budget=1, wfirst=False, psleep=32, pre=8)
    gen("k10_d.s", NV=14, budget=1, wfirst=False, psleep=24, pre=6, T=5)
    gen("k10_e.s", NV=14, budget=1, wfirst=False, psleep=24, pre=6, prio=0)
    gen("k10_f.s", NV=17, budget=2, wfirst=False, psleep=32, pre=10)
    gen("k10_g.s", NV=14, budget=1, wfirst=False, psleep=24, pre=6, TL=5)
    gen("k10_st.s", st="main", **base)
    gen("k10_ts.s", st="tail", **base)
```

```python
import sys
from asmlib import Asm
KN = "parallel_sum__sliding_block_cached__glu_gated_swiglu__decode_kernel"

MBX_OFF, MB2_OFF, QX_OFF, QMB_OFF = 0x80000, 0x100000, 0x200000, 0x60000
STAMP_OFF = 64 << 20
L_P1 = 0
L_QB = 2816
L_HB = L_QB + 384
L_FLAG = 3328
L_OB = 3392
L_ML = 3584
L_OP = 3712
L_FIN = 16256
LDS_SIZE = 17408
OOB = 0x40000000
LOG2E = 0x3fb8aa3b
SCALE = 0x3d93cd3a
SPIN_MAX = 1 << 16
AUX = 7
CLR = 6

K_, V_, WS_, WQ_, WO_, W1_, W3_, W2_, X_, OUT_, DBG_ = [f"s[{i}:{i+3}]" for i in range(8, 52, 4)]
DPP3 = ("quad_perm:[1,0,3,2]", "quad_perm:[2,3,0,1]", "row_half_mirror")
KB, VB = 40, 148
DACC, MSK, AOP, WO, W2, PD = 40, 52, 56, 92, 116, 124
MF = "v_mfma_f32_16x16x32_bf16"

class VM:
    def __init__(self, a):
        self.a = a; self.n = 0; self.done = 0
    def issue(self, s):
        self.a(s); self.n += 1; return self.n - 1
    def wait_id(self, i):
        if i < self.done: return
        self.a(f"s_waitcnt vmcnt({self.n - 1 - i})"); self.done = i + 1
    def throttle(self, T):
        if self.n - self.done > T - 1:
            self.a(f"s_waitcnt vmcnt({T-1})"); self.done = self.n - (T - 1)
    def set(self, n, d):
        self.n = n; self.done = d

def gen(fname, T=4, TL=None, NV=2, budget=2, prio=1, st=None, wfirst=True, abl='', tlb=0, psleep=2, pre=0, cpos=0, cpol='sc1', cnum=5, h1pol='sc1', pupol='sc1', qppol='sc1', xcpos=5, forcex=0, NP2=1, gap2=4, NP1=1, gap1=2, lpos=0, rot=2):
    TL = T if TL is None else TL
    a = Asm()
    R = a.raw
    R(f"; @launch grid=(256,1,1) block=(512,1,1) lds={LDS_SIZE}")
    R('.amdgcn_target "amdgcn-amd-amdhsa--gfx950"')
    R(".text"); R(f".globl {KN}"); R(".p2align 8"); R(f".type {KN},@function"); R(f"{KN}:")
    def stamp(i, kinds=("main", "wave")):
        if st in kinds: a(f"s_memrealtime s[{88+2*i}:{89+2*i}]")
    def tstamp(i): stamp(i, ("tail",))
    def unpack(src, dlo, dhi):
        a(f"v_lshlrev_b32 v{dlo}, 16, v{src}"); a(f"v_and_b32 v{dhi}, 0xffff0000, v{src}")
    def lohi(src, d):
        a(f"v_and_b32 v{d}, 0xffff, v{src}"); a(f"v_lshlrev_b32 v{d+1}, 16, v{src}")
        a(f"v_lshrrev_b32 v{d+2}, 16, v{src}"); a(f"v_and_b32 v{d+3}, 0xffff0000, v{src}")
    def exec_hi16():
        a("s_mov_b32 exec_lo, 0"); a("s_mov_b32 exec_hi, 0xffff0000")
    def exec_valid():
        a("s_mov_b32 exec_lo, 0x00ff00ff"); a("s_mov_b32 exec_hi, 0xff00ff00")
    def srd(base, ptr, size):
        a(f"s_mov_b32 s{base}, s{ptr}"); a(f"s_mov_b32 s{base+1}, s{ptr+1}")
        a(f"s_mov_b32 s{base+2}, {size}"); a(f"s_mov_b32 s{base+3}, 0x00020000")
    def masks(d, t0, t1):
        a(f"v_and_b32 v{t0}, 1, v2"); a(f"v_lshlrev_b32 v{t0}, 4, v{t0}")
        a(f"v_mov_b32 v{t1}, 0xffff"); a(f"v_lshlrev_b32 v{t1}, v{t0}, v{t1}")
        a(f"v_bfe_u32 v{t0}, v2, 1, 2")
        for r in range(4):
            a(f"v_cmp_eq_u32 vcc, {r}, v{t0}")
            a(f"v_cndmask_b32 v{d+r}, 0, v{t1}, vcc")
    vm = VM(a)
    a("s_cmp_ge_u32 s2, 256")
    a("s_cbranch_scc1 L_end")
    stamp(0, ("main", "wave", "tail"))
    a("s_load_dwordx16 s[52:67], s[0:1], 0")
    a("s_load_dwordx8 s[68:75], s[0:1], 64")
    a("v_lshrrev_b32 v15, 6, v0")
    a("v_and_b32 v2, 63, v0")
    a("v_readfirstlane_b32 s3, v15")
    a("s_and_b32 s4, s2, 31")
    a("s_lshr_b32 s5, s2, 5")
    a("s_lshr_b32 s6, s5, 1")
    a("s_and_b32 s7, s5, 1")
    a("v_lshrrev_b32 v15, 3, v2")
    a("v_and_b32 v3, 7, v2"); a("v_lshlrev_b32 v3, 4, v3")
    a("v_mul_u32_u24 v1, 384, v15"); a("v_add_u32 v1, v1, v3")
    a("v_lshlrev_b32 v6, 4, v2")
    a("s_mul_i32 s76, s4, 12582912"); a("s_mul_i32 s77, s5, %d" % (512 * 384))
    a("s_add_u32 s76, s76, s77"); a("s_add_u32 s76, s76, %d" % (28672 * 384))
    a(f"s_cmp_eq_u32 s3, {AUX}")
    a("s_cbranch_scc1 L_aux")

    SO = 78
    def kload(n, base=KB):
        i, j = divmod(n, 3); r = base + 4 * n
        return vm.issue(f"buffer_load_dwordx4 v[{r}:{r+3}], v1, {K_}, s{SO+i} offen offset:{j*128} nt")
    def vload(n, base=VB):
        i, j = divmod(n, 3); r = base + 4 * n
        return vm.issue(f"buffer_load_dwordx4 v[{r}:{r+3}], v1, {V_}, s{SO+i} offen offset:{j*128} nt")

    def setup_common():
        srd(16, 74, 1610612736); srd(24, 60, 7864320); srd(36, 68, 1966080); srd(44, 70, 1280); srd(48, 72, 256)
        srd(40, 52, 1280)
        a("s_mul_i32 s52, s4, 192"); a("s_mul_i32 s63, s6, 48"); a("s_add_u32 s52, s52, s63"); a("s_mul_i32 s52, s52, 1280")
        a("s_mul_i32 s63, s7, 640"); a("s_add_u32 s52, s52, s63")
        a("s_lshl_b32 s53, s4, 6"); a("s_lshl_b32 s62, s6, 4"); a("s_add_u32 s53, s53, s62"); a("s_mul_i32 s53, s53, 1280")
        a("s_add_u32 s53, s53, s63")
        a("s_cmp_lt_u32 s4, 24"); a("s_cselect_b32 s53, s53, %d" % OOB)
        a("s_sub_u32 s62, s3, 1"); a("s_cmp_lt_u32 s62, 4"); a("s_cselect_b32 s62, s62, 8"); a("s_cmp_eq_u32 s3, 7"); a("s_cselect_b32 s62, 4, s62")
        a("s_lshl_b32 s63, s62, 7"); a("s_cmp_lt_u32 s62, 5"); a("s_cselect_b32 s63, s63, %d" % OOB)
        a("s_add_u32 s52, s52, s63"); a("s_add_u32 s53, s53, s63"); a("s_add_u32 s64, s52, 5120")
        a("s_lshl_b32 s65, s62, 8")
        a("s_lshl_b32 s54, s4, 13"); a("s_add_u32 s54, s54, %d" % MBX_OFF)
        a("s_lshl_b32 s62, s6, 11"); a("s_add_u32 s55, s54, s62")
        a("s_lshl_b32 s62, s5, 8"); a("s_add_u32 s56, s54, s62")
        a("s_mul_i32 s57, s4, 10240"); a("s_add_u32 s57, s57, %d" % QX_OFF)
        a("s_lshl_b32 s58, s4, 2"); a("s_add_u32 s58, s58, s6"); a("s_mul_i32 s58, s58, 2560")
        a("s_mul_i32 s62, s7, 1280"); a("s_add_u32 s58, s58, s62"); a("s_add_u32 s58, s58, %d" % MB2_OFF); a("s_add_u32 s58, s58, s65")
        a("s_mul_i32 s59, s4, 10240"); a("s_mul_i32 s62, s5, 1280"); a("s_add_u32 s59, s59, s62"); a("s_add_u32 s59, s59, %d" % QX_OFF)
    def setup_proj():
        a("v_lshrrev_b32 v15, 3, v2")
        a("v_mul_u32_u24 v4, 7680, v15"); a("v_add_u32 v4, v4, v3")
        a("v_mul_u32_u24 v5, 2560, v15"); a("v_add_u32 v5, v5, v3")
        a("v_lshlrev_b32 v9, 2, v15"); a("s_lshl_b32 s87, s6, 5"); a("v_add_u32 v9, s87, v9")
        a("v_lshlrev_b32 v8, 4, v3")
        a("v_mul_u32_u24 v7, 24, v15")
        a("v_and_b32 v16, 16, v2")
        a("v_lshl_add_u32 v11, v3, 1, v16")
        a("v_lshrrev_b32 v15, 5, v2"); a("v_mul_u32_u24 v15, 768, v15")
        a("s_mul_i32 s87, s3, 1536")
        a("v_add3_u32 v14, v11, v15, s87")

    late = [f"buffer_load_dwordx4 v[{W2+4*i}:{W2+3+4*i}], v5, {W2_}, s53 offen offset:{1280*i} nt" for i in range(2)]
    late += [f"buffer_load_dwordx4 v[{WO+4*i}:{WO+3+4*i}], v4, {WO_}, {'s52' if i < 4 else 's64'} offen offset:{1280*(i%4)} nt" for i in range(6)]

    def read_q():
        for j in range(3):
            a(f"ds_read_b128 v[{20+4*j}:{23+4*j}], v3 offset:{L_QB+128*j}")
        a(f"ds_read_b32 v10, v9 offset:{L_HB}")
    def t_score(groups, sc, kb, first):
        def f():
            if first: a("s_waitcnt lgkmcnt(0)")
            for i in groups: a(f"v_mov_b32 v{sc[i]}, 0")
            for j in range(3):
                for r in range(4):
                    for i in groups:
                        a(f"v_dot2c_f32_bf16 v{sc[i]}, v{kb+12*i+4*j+r}, v{20+4*j+r}")
            for m in DPP3:
                for i in groups:
                    a(f"v_add_f32_dpp v{sc[i]}, v{sc[i]}, v{sc[i]} {m} row_mask:0xf bank_mask:0xf")
            s0 = sc[groups[0]]; s1 = sc[groups[-1]]
            for rnd in range(2):
                a(f"v_cvt_pk_bf16_f32 v15, v{s0}, v{s1}")
                a(f"v_lshlrev_b32 v{s0}, 16, v15")
                if s1 != s0: a(f"v_and_b32 v{s1}, 0xffff0000, v15")
                if rnd == 0:
                    for i in groups: a(f"v_mul_f32 v{sc[i]}, {SCALE:#x}, v{sc[i]}")
        return f
    def t_softmax(G, sc):
        def f1():
            a(f"v_mov_b32 v15, v{sc[0]}")
            rest = list(range(1, G))
            for k in range(0, len(rest), 2): a(f"v_max3_f32 v15, v15, v{sc[rest[k]]}, v{sc[rest[k+1]]}")
            a("v_max_f32_dpp v15, v15, v15 row_ror:8 row_mask:0xf bank_mask:0xf")
            for r in range(DACC, DACC + 12): a(f"v_mov_b32 v{r}, 0")
            a("v_mov_b32 v16, v15"); a("v_permlane16_swap_b32 v15, v16"); a("v_max_f32 v15, v15, v16")
            a("v_mov_b32 v16, v15"); a("v_permlane32_swap_b32 v15, v16"); a("v_max_f32 v15, v15, v16")
            a(f"v_mul_f32 v12, {LOG2E:#x}, v15")
            masks(MSK, 17, 18)
        def f2():
            a(f"s_mov_b32 s62, {LOG2E:#x}")
            for i in range(G): a(f"v_fma_f32 v{sc[i]}, v{sc[i]}, s62, -v12")
            for i in range(G): a(f"v_exp_f32 v{sc[i]}, v{sc[i]}")
            for i in range(G): a(f"v_cvt_pk_bf16_f32 v{sc[i]}, v{sc[i]}, v{sc[i]}")
        def f3():
            for i in range(G):
                for r in range(4): a(f"v_and_b32 v{AOP+4*i+r}, v{MSK+r}, v{sc[i]}")
        def f4():
            a(f"v_and_b32 v13, 0xffff0000, v{sc[0]}")
            for i in range(1, G):
                a(f"v_and_b32 v15, 0xffff0000, v{sc[i]}"); a("v_add_f32 v13, v13, v15")
            a("v_add_f32_dpp v13, v13, v13 row_ror:8 row_mask:0xf bank_mask:0xf")
            a("v_mov_b32 v16, v13"); a("v_permlane16_swap_b32 v13, v16"); a("v_add_f32 v13, v13, v16")
            a("v_mov_b32 v16, v13"); a("v_permlane32_swap_b32 v13, v16"); a("v_add_f32 v13, v13, v16")
            a("s_lshl_b32 s62, s3, 3"); a("v_mov_b32 v16, s62")
            a(f"ds_write_b64 v16, v[12:13] offset:{L_ML}")
        return [f1, f2, f3, f4]
    def t_pv(n, vb):
        def f():
            i, j = divmod(n, 3)
            d = DACC + 4 * j
            a(f"{MF} v[{d}:{d+3}], v[{AOP+4*i}:{AOP+3+4*i}], v[{vb+4*n}:{vb+3+4*n}], v[{d}:{d+3}]")
        return f

    if rot == 2:
        a("s_lshr_b32 s77, s2, 3"); a("s_add_u32 s77, s77, s3"); a("s_add_u32 s77, s77, s2")
    elif rot == 3:
        a("s_lshr_b32 s77, s2, 3"); a("s_add_u32 s77, s77, s2")
    else:
        a("s_mov_b32 s77, 0")
    a("s_mul_i32 s87, s77, 57"); a("s_lshr_b32 s87, s87, 9"); a("s_mul_i32 s87, s87, 9"); a("s_sub_u32 s77, s77, s87")
    a("s_mul_i32 s87, s3, 3072"); a("s_add_u32 s76, s76, s87")
    for i in range(9):
        a(f"s_add_u32 s{SO+i}, s77, {i}"); a(f"s_sub_u32 s87, s{SO+i}, 9"); a(f"s_cmp_ge_u32 s{SO+i}, 9")
        a(f"s_cselect_b32 s{SO+i}, s87, s{SO+i}"); a(f"s_mul_i32 s{SO+i}, s{SO+i}, {7*3072}"); a(f"s_add_u32 s{SO+i}, s{SO+i}, s76")
    if prio:
        a("s_cmp_lt_u32 s3, 4"); a("s_cbranch_scc1 L_noprio"); a(f"s_setprio {prio}"); a.label("L_noprio")
    setup_proj()
    a("s_waitcnt lgkmcnt(0)")
    srd(8, 54, 402653184); srd(12, 56, 402653184)
    setup_common()
    if tlb:
        a("s_cmp_lg_u32 s3, 5"); a("s_cbranch_scc1 L_notlb")
        a("s_mov_b64 exec, 1"); a("v_mov_b32 v20, 0")
        a("s_add_u32 s62, s76, %d" % (196608 - 5 * 3072 - 64))
        a(f"buffer_load_dword v21, v20, {V_}, s76 offen nt")
        a(f"buffer_load_dword v22, v20, {V_}, s62 offen nt")
        a(f"buffer_load_dword v23, v20, {K_}, s62 offen nt")
        a(f"buffer_load_dword v24, v20, {WO_}, s52 offen nt")
        a(f"buffer_load_dword v25, v20, {W2_}, s53 offen nt")
        a(f"buffer_load_dword v26, v20, {WS_}, s57 offen nt")
        a(f"buffer_load_dword v27, v20, {OUT_}, 0 offen nt")
        a("s_mov_b64 exec, -1")
        a.label("L_notlb")
    kid = {}
    if wfirst: a("s_barrier")
    for n in range(T): kid[n] = kload(n)
    if not wfirst: a("s_barrier")
    for n in range(T, 27):
        vm.throttle(T); kid[n] = kload(n)
    vid = {}
    for n in range(NV):
        vm.throttle(T); vid[n] = vload(n)
    stamp(2)
    a(f"v_mov_b32 v15, {L_FLAG}")
    a(f"s_mov_b32 s63, {SPIN_MAX}")
    a.label("L_flag")
    a("ds_read_b32 v16, v15")
    a("s_waitcnt lgkmcnt(0)")
    a("v_readfirstlane_b32 s66, v16")
    a("s_cmp_lg_u32 s66, 0")
    a("s_cbranch_scc1 L_flagok")
    a("s_sleep 2")
    a("s_sub_u32 s63, s63, 1")
    a("s_cmp_lg_u32 s63, 0")
    a("s_cbranch_scc1 L_flag")
    a.label("L_flagok")
    stamp(3)
    read_q()
    sc = [32 + i for i in range(8)] + [19]
    tasks = [(lambda g=g: kid[3 * g[-1] + 2], t_score(g, sc, KB, g[0] == 0), 4) for g in ((0, 1), (2, 3), (4, 5), (6, 7), (8,))]
    tasks += [(lambda: -1, f, 4) for f in t_softmax(9, sc)]
    tasks += [(lambda n=n: vid.get(n, 10**9), t_pv(n, VB), 0.5) for n in range(27)]
    ndone = 0
    for n in range(NV, 35):
        if n < 27 + TL - 1: vm.throttle(TL)
        if n < 27: vid[n] = vload(n)
        else:
            assert ndone >= 8
            if lpos == 0: vm.issue(late[n - 27])
        b = budget * 4
        while b > 0 and tasks and tasks[0][0]() < vm.done:
            t = tasks.pop(0); t[1](); b -= t[2]; ndone += 1
    while tasks:
        req, f, c = tasks.pop(0)
        if req() >= 0: vm.wait_id(req())
        f()
    stamp(4)
    a("s_branch L_tail")

    a.label("L_aux")
    vm.set(0, 0)
    a("s_setprio 2")
    a(f"v_mov_b32 v16, {L_FLAG}"); a("v_mov_b32 v17, 0")
    a("ds_write_b32 v16, v17")
    a("v_mul_u32_u24 v4, 122880, v15"); a("v_add_u32 v4, v4, v3")
    a("v_mul_u32_u24 v5, 30720, v15"); a("v_add_u32 v5, v5, v3")
    a("v_mul_u32_u24 v7, 20, v15")
    a(f"s_add_u32 s{SO}, s76, {63*3072}")
    a("s_mul_i32 s79, s5, 160")
    a("s_mul_i32 s80, s5, %d" % (80 * 12288)); a("s_mul_i32 s77, s4, 384"); a("s_add_u32 s80, s80, s77")
    a("s_mul_i32 s81, s5, %d" % (80 * 3072)); a("s_lshl_b32 s77, s4, 7"); a("s_add_u32 s81, s81, s77")
    a("s_cmp_lt_u32 s4, 24"); a("s_cselect_b32 s81, s81, %d" % OOB)
    a("s_lshl_b32 s82, s2, 9"); a("s_add_u32 s82, s82, %d" % QMB_OFF)
    a("v_lshlrev_b32 v14, 3, v2")
    a("s_lshl_b32 s83, s4, 13"); a("s_lshl_b32 s77, s5, 8"); a("s_add_u32 s83, s83, s77"); a("s_add_u32 s83, s83, %d" % MBX_OFF)
    a("v_lshrrev_b32 v12, 4, v2"); a("v_lshlrev_b32 v12, 11, v12"); a("v_and_b32 v13, 15, v2"); a("v_lshl_add_u32 v12, v13, 4, v12")
    a("s_lshl_b32 s84, s4, 2"); a("s_add_u32 s84, s84, s6"); a("s_mul_i32 s84, s84, 2560")
    a("s_mul_i32 s77, s7, 1280"); a("s_add_u32 s84, s84, s77"); a("s_add_u32 s84, s84, %d" % MB2_OFF)
    a("s_getreg_b32 s85, hwreg(HW_REG_XCC_ID)"); a("s_and_b32 s85, s85, 15")
    a("s_mul_i32 s77, s85, s85"); a("s_lshl_b32 s77, s77, 12"); a("s_lshl_b32 s85, s85, 4"); a("s_add_u32 s85, s85, s77"); a("s_add_u32 s85, s85, 1")
    masks(8, 16, 17)
    for r in range(52, 56): a(f"v_mov_b32 v{r}, -1")
    a("s_waitcnt lgkmcnt(0)")
    srd(16, 74, 1610612736); srd(48, 72, 256)
    def clears():
        if 'a' in abl: return
        vm.issue(f"buffer_store_dwordx2 v[52:53], v14, {WS_}, s82 offen {cpol}")
        if cnum < 2: return
        vm.issue(f"buffer_store_dwordx4 v[52:55], v12, {WS_}, s83 offen {cpol}")
        vm.issue(f"buffer_store_dwordx4 v[52:55], v6, {WS_}, s84 offen {cpol}")
        a("s_mov_b64 exec, 0xffff")
        vm.issue(f"buffer_store_dwordx4 v[52:55], v6, {WS_}, s84 offen offset:1024 {cpol}")
        a("s_mov_b64 exec, -1")
    if cpos == 0: clears()
    srd(40, 52, 1280); srd(20, 58, 7864320)
    ix0 = vm.issue(f"buffer_load_dwordx4 v[32:35], v6, {X_}, 0 offen")
    ix1 = vm.issue(f"buffer_load_dwordx4 v[36:39], v6, {X_}, 0 offen offset:1024")
    vm.issue(f"buffer_load_dwordx4 v[16:19], v7, {X_}, s79 offen")
    ixo = vm.issue(f"buffer_load_dword v15, v7, {X_}, s79 offen offset:16")
    srd(28, 64, 1966080); srd(32, 66, 1966080)
    iw = {}
    for i in range(10):
        b = 56 + 20 * i
        for j in range(3):
            vm.issue(f"buffer_load_dwordx4 v[{b+4*j}:{b+3+4*j}], v4, {WQ_}, s80 offen offset:{128*j} nt")
        vm.issue(f"buffer_load_dwordx4 v[{b+12}:{b+15}], v5, {W1_}, s81 offen nt")
        iw[i] = vm.issue(f"buffer_load_dwordx4 v[{b+16}:{b+19}], v5, {W3_}, s81 offen nt")
        if i < 9:
            a("s_add_u32 s80, s80, 12288"); a("s_add_u32 s81, s81, 3072")
    a("s_barrier")
    if cpos == 1: clears()
    srd(8, 54, 402653184); srd(12, 56, 402653184)
    setup_common()
    a("s_and_b32 s62, s4, 16"); a("s_add_u32 s62, s62, s4"); a("s_lshl_b32 s62, s62, 2"); a("v_mov_b32 v12, s62")
    a("v_mov_b32 v13, s85")
    vm.wait_id(ixo)
    for k in range(4): unpack(16 + k, 20 + 2 * k, 21 + 2 * k)
    unpack(15, 28, 29)
    for r in range(8): unpack(32 + r, 40 + 2 * r, 41 + 2 * r)
    def wave_sum(v, sdst):
        for m in DPP3 + ("row_mirror",):
            a(f"v_add_f32_dpp v{v}, v{v}, v{v} {m} row_mask:0xf bank_mask:0xf")
        for k in range(4): a(f"v_readlane_b32 s{sdst+k}, v{v}, {16*k}")
        a(f"v_mov_b32 v{v}, s{sdst}")
        for k in range(1, 4): a(f"v_add_f32 v{v}, s{sdst+k}, v{v}")
    a("v_add_f32 v15, v40, v41")
    for r in range(42, 56): a(f"v_add_f32 v15, v15, v{r}")
    wave_sum(15, 60)
    a("v_mul_f32 v15, 0x3acccccd, v15")
    a("v_mov_b32 v16, 0")
    for r in range(40, 48):
        a(f"v_sub_f32 v17, v{r}, v15"); a("v_fmac_f32 v16, v17, v17")
    a("s_mov_b64 exec, 0xffff")
    for r in range(48, 56):
        a(f"v_sub_f32 v17, v{r}, v15"); a("v_fmac_f32 v16, v17, v17")
    a("s_mov_b64 exec, -1")
    wave_sum(16, 60)
    a("v_mul_f32 v16, 0x3acccccd, v16")
    a("v_cvt_pk_bf16_f32 v17, v15, v16")
    a("v_lshlrev_b32 v15, 16, v17")
    a("v_and_b32 v16, 0xffff0000, v17")
    a("v_add_f32 v16, 0x3727c5ac, v16")
    a("v_cvt_pk_bf16_f32 v16, v16, v16")
    a("v_lshlrev_b32 v16, 16, v16")
    a("v_sqrt_f32 v16, v16")
    a("v_cvt_pk_bf16_f32 v16, v16, v16")
    a("v_lshlrev_b32 v16, 16, v16")
    a("v_rcp_f32 v17, v16")
    for i in range(10): a(f"v_sub_f32 v{20+i}, v{20+i}, v15")
    for i in range(0, 10, 2):
        a(f"v_cvt_pk_bf16_f32 v18, v{20+i}, v{21+i}"); unpack(18, 20 + i, 21 + i)
    for i in range(10):
        a(f"v_mul_f32 v18, v{20+i}, v17")
        a(f"v_fma_f32 v19, -v18, v16, v{20+i}")
        a(f"v_fma_f32 v{20+i}, v19, v17, v18")
    for i in range(10): a(f"v_cvt_pk_bf16_f32 v{20+i}, v{20+i}, v{20+i}")
    for r in range(32, 52): a(f"v_mov_b32 v{r}, 0")
    a("v_lshrrev_b32 v15, 5, v2"); a("v_mul_u32_u24 v15, 1280, v15")
    a("v_and_b32 v16, 16, v2"); a("v_lshl_add_u32 v16, v3, 1, v16"); a("v_add_u32 v15, v15, v16")
    a("v_lshlrev_b32 v14, 3, v2")
    for i in range(10):
        for r in range(4): a(f"v_and_b32 v{52+r}, v{8+r}, v{20+i}")
        vm.wait_id(iw[i])
        b = 56 + 20 * i
        for c in range(5):
            a(f"{MF} v[{32+4*c}:{35+4*c}], v[52:55], v[{b+4*c}:{b+3+4*c}], v[{32+4*c}:{35+4*c}]")
    stamp(1)
    exec_valid()
    for c in range(5): a(f"ds_write_b128 v15, v[{32+4*c}:{35+4*c}] offset:{L_P1+256*c}")
    a("s_mov_b64 exec, -1")
    a("s_waitcnt lgkmcnt(0)")
    a(f"ds_read_b128 v[64:67], v6 offset:{L_P1}")
    a(f"ds_read_b128 v[68:71], v6 offset:{L_P1+1280}")
    a(f"ds_read_b128 v[72:75], v6 offset:{L_P1+256}")
    a(f"ds_read_b128 v[76:79], v6 offset:{L_P1+1280+256}")
    a("s_waitcnt lgkmcnt(0)")
    for r in range(4):
        a(f"v_add_f32 v{64+r}, v{64+r}, v{68+r}"); a(f"v_add_f32 v{72+r}, v{72+r}, v{76+r}")
    for r in range(4):
        a(f"v_min_u32 v{64+r}, -2, v{64+r}"); a(f"v_min_u32 v{72+r}, -2, v{72+r}")
    if 'b' in abl: a("s_branch L_atake")
    a(f"buffer_store_dwordx4 v[64:67], v6, {WS_}, s59 offen sc1")
    exec_hi16()
    a(f"buffer_store_dwordx4 v[72:75], v6, {WS_}, s59 offen offset:256 sc1")
    a("s_mov_b64 exec, -1")
    a("s_mov_b64 exec, 1")
    a("s_waitcnt vmcnt(0)")
    if 'n' in abl: pass
    elif 'r' in abl: a(f"buffer_atomic_add v13, v12, {DBG_}, 0 offen")
    elif 'w' in abl: a(f"buffer_atomic_add v13, v12, {WS_}, s82 offen sc0")
    else: a(f"buffer_atomic_add v13, v12, {DBG_}, 0 offen sc0")
    a("s_waitcnt vmcnt(0)")
    a("v_readfirstlane_b32 s62, v13")
    a("s_mov_b64 exec, -1")
    stamp(5)
    if 'c' in abl: a("s_branch L_atake")
    if st == "main":
        a("s_and_b32 s92, s62, 7"); a("s_mov_b32 s93, 0")
    a("s_mul_i32 s63, s85, 7"); a("s_cmp_eq_u32 s62, s63"); a("s_cselect_b32 s66, 2, 1")
    if forcex: a("s_mov_b32 s66, 1")
    a("s_add_u32 s67, s6, 1"); a("s_and_b32 s67, s67, 3"); a("s_lshl_b32 s67, s67, 2"); a("s_add_u32 s67, s67, 48")
    a("s_and_b32 s62, s62, 7"); a("s_cmp_eq_u32 s62, 7")
    a("s_cbranch_scc0 L_await")
    a("s_add_u32 s60, s57, 3840"); a("s_add_u32 s61, s57, 7680")
    if 'g' not in abl:
        for s in range(8):
            so = ("s57", "s60", "s61")[s // 3]
            a(f"buffer_load_dwordx4 v[{96+4*s}:{99+4*s}], v6, {WS_}, {so} offen offset:{(s%3)*1280} sc1")
        exec_hi16()
        for s in range(8):
            so = ("s57", "s60", "s61")[s // 3]
            a(f"buffer_load_dwordx4 v[{160+4*s}:{163+4*s}], v6, {WS_}, {so} offen offset:{(s%3)*1280+256} sc1")
        a("s_mov_b64 exec, -1")
        a("s_waitcnt vmcnt(0)")
    a.label("L_agot")
    for s in range(1, 8):
        for r in range(4):
            a(f"v_add_f32 v{96+r}, v{96+r}, v{96+4*s+r}")
            a(f"v_add_f32 v{160+r}, v{160+r}, v{160+4*s+r}")
    a("v_cvt_pk_bf16_f32 v20, v96, v97"); a("v_cvt_pk_bf16_f32 v21, v98, v99")
    a("v_cvt_pk_bf16_f32 v22, v160, v161"); a("v_cvt_pk_bf16_f32 v23, v162, v163")
    exec_hi16()
    unpack(20, 64, 65); unpack(21, 66, 67); unpack(22, 160, 161); unpack(23, 162, 163)
    for r in range(4): a(f"v_mul_f32 v{68+r}, {LOG2E|0x80000000:#x}, v{64+r}")
    for r in range(4): a(f"v_exp_f32 v{68+r}, v{68+r}")
    for r in range(4): a(f"v_add_f32 v{68+r}, 1.0, v{68+r}")
    for r in range(4): a(f"v_rcp_f32 v{72+r}, v{68+r}")
    for r in range(4): a(f"v_mul_f32 v{76+r}, v{64+r}, v{72+r}")
    a("v_cvt_pk_bf16_f32 v20, v76, v77"); a("v_cvt_pk_bf16_f32 v21, v78, v79")
    unpack(20, 64, 65); unpack(21, 66, 67)
    for r in range(4): a(f"v_mul_f32 v{64+r}, v{64+r}, v{160+r}")
    a("v_cvt_pk_bf16_f32 v20, v64, v65"); a("v_cvt_pk_bf16_f32 v21, v66, v67")
    a("s_mov_b64 exec, -1")
    a("v_min_u32 v20, -2, v20"); a("v_min_u32 v21, -2, v21")
    a("s_lshl_b32 s62, s4, 9"); a("s_add_u32 s62, s62, %d" % QMB_OFF)
    for rq in range(4):
        a(f"v_mov_b32 v{24+2*rq}, v20"); a(f"v_mov_b32 v{25+2*rq}, v21")
        a(f"v_writelane_b32 v{24+2*rq}, s66, {48 + 4 * ((rq + 1) & 3)}")
    a("s_cmp_eq_u32 s66, 2"); a("s_cbranch_scc1 L_pushL")
    for pol in ("sc1", ""):
        for s in range(8):
            a(f"buffer_store_dwordx2 v[{24+2*(s>>1)}:{25+2*(s>>1)}], v14, {WS_}, s62 offen {pol}")
            if s < 7: a("s_add_u32 s62, s62, %d" % (32 * 512))
        a("s_branch L_atake")
        if pol: a.label("L_pushL")
    a.label("L_await")
    if 'q' in abl: a("s_branch L_atake")
    for _ in range(pre): a("s_sleep 16")
    a(f"s_mov_b32 s63, {SPIN_MAX}")
    a.label("L_aspin")
    a(f"buffer_load_dwordx2 v[20:21], v14, {WS_}, s82 offen sc1")
    a("s_waitcnt vmcnt(0)")
    a("v_max_u32 v22, v20, v21")
    a("v_cmp_eq_u32 vcc, -1, v22")
    a("s_cmp_eq_u64 vcc, 0")
    a("s_cbranch_scc1 L_agotq")
    a("s_sub_u32 s63, s63, 1"); a("s_cmp_eq_u32 s63, 0")
    a("s_cbranch_scc1 L_agotq")
    a(f"s_sleep {psleep}")
    a("s_branch L_aspin")
    a.label("L_agotq")
    a("v_readlane_b32 s66, v20, s67")
    a("s_cmp_eq_u32 s66, 2"); a("s_cselect_b32 s66, 2, 1")
    a.label("L_atake")
    a(f"ds_write_b64 v14, v[20:21] offset:{L_QB}")
    a(f"v_mov_b32 v22, {L_FLAG}"); a("v_mov_b32 v23, s66")
    a("s_waitcnt lgkmcnt(0)")
    a("ds_write_b32 v22, v23")
    stamp(3)
    a("s_setprio 0")
    vm.set(0, 0)
    AK, AV = 160, 148
    kida = [kload(n, AK) for n in range(3)]
    vida = [vload(n, AV) for n in range(3)]
    setup_proj()
    if lpos == 0:
        for l in late: vm.issue(l)
    read_q()
    vm.wait_id(kida[2])
    t_score((0,), [32], AK, True)()
    for f in t_softmax(1, [32]): f()
    vm.wait_id(vida[2])
    for n in range(3): t_pv(n, AV)()
    if 'f' in abl: a("s_branch L_acntok")
    a("s_cmp_ge_u32 s2, 20"); a("s_cbranch_scc1 L_acntok")
    a("v_and_b32 v15, 15, v2"); a("v_and_b32 v16, 16, v2"); a("v_lshl_add_u32 v15, v16, 1, v15"); a("v_lshlrev_b32 v15, 2, v15")
    a(f"s_mov_b32 s63, {SPIN_MAX}")
    a.label("L_cnt")
    a(f"buffer_load_dword v16, v15, {DBG_}, 0 offen sc1")
    a("s_waitcnt vmcnt(0)")
    a("v_and_b32 v16, 15, v16")
    a("v_cmp_gt_u32 vcc, 8, v16")
    a("s_cmp_eq_u64 vcc, 0")
    a("s_cbranch_scc1 L_acntok")
    a("s_sub_u32 s63, s63, 1"); a("s_cmp_eq_u32 s63, 0")
    a("s_cbranch_scc1 L_acntok")
    a("s_sleep 16")
    a("s_branch L_cnt")
    a.label("L_acntok")
    stamp(4)

    a.label("L_tail")
    if 't' in abl:
        a("s_waitcnt vmcnt(0)"); a("s_branch L_done")
    exec_valid()
    for j in range(3): a(f"ds_write_b128 v14, v[{DACC+4*j}:{DACC+3+4*j}] offset:{L_OP+256*j}")
    a("s_mov_b64 exec, -1")
    def mlp_part(wait):
        a("v_and_b32 v16, 0xffff, v10"); a("v_lshl_or_b32 v16, v16, 16, v16")
        a("v_lshrrev_b32 v17, 16, v10"); a("v_lshl_or_b32 v17, v17, 16, v17")
        for r in range(4): a(f"v_mov_b32 v{PD+r}, 0")
        for i in range(2):
            for r in range(4): a(f"v_and_b32 v{28+4*i+r}, v{MSK+r}, v{16+i}")
        a(wait)
        for i in range(2):
            a(f"{MF} v[{PD}:{PD+3}], v[{28+4*i}:{31+4*i}], v[{W2+4*i}:{W2+3+4*i}], v[{PD}:{PD+3}]")
    a("s_cmp_eq_u32 s3, 0")
    a("s_cbranch_scc1 L_w0")
    a(f"s_cmp_eq_u32 s3, {AUX}")
    a("s_cbranch_scc1 L_w7")
    a("s_waitcnt lgkmcnt(0)")
    a("s_barrier")
    if lpos == 1:
        for l in late: a(l)
    if lpos < 2: mlp_part("s_waitcnt vmcnt(0)")
    a("s_branch L_b3b")
    a.label("L_w7")
    if lpos == 0: mlp_part("s_waitcnt vmcnt(0)")
    a("v_lshrrev_b32 v20, 3, v2"); a("v_lshlrev_b32 v20, 8, v20")
    a("v_add_u32 v21, v20, v3")
    a("v_and_b32 v22, 48, v3"); a("v_add_u32 v22, v20, v22")
    a("v_and_b32 v24, 48, v3"); a("v_add_u32 v24, 128, v24")
    a("v_cmp_gt_u32 vcc, 32, v2")
    a("v_cndmask_b32 v23, v24, v3, vcc")
    a("v_bfe_u32 v24, v2, 4, 1"); a("v_lshl_add_u32 v23, v24, 3, v23")
    a(f"s_mov_b32 s63, {SPIN_MAX}")
    a("s_waitcnt lgkmcnt(0)")
    a("s_barrier")
    tstamp(1)
    if lpos == 1:
        for l in late: a(l)
        mlp_part("s_waitcnt vmcnt(0)")
    a.label("L_chk1")
    a(f"buffer_load_dwordx4 v[128:131], v21, {WS_}, s55 offen sc1")
    a(f"buffer_load_dwordx4 v[132:135], v22, {WS_}, s55 offen offset:128 sc1")
    a(f"buffer_load_dwordx2 v[136:137], v20, {WS_}, s55 offen offset:192 sc1")
    a("s_waitcnt vmcnt(0)")
    a("v_max3_u32 v64, v128, v129, v130"); a("v_max3_u32 v64, v64, v131, v132"); a("v_max3_u32 v64, v64, v133, v134")
    a("v_max3_u32 v64, v64, v135, v136"); a("v_max_u32 v64, v64, v137")
    a("v_cmp_eq_u32 vcc, -1, v64")
    a("s_cmp_eq_u64 vcc, 0")
    a("s_cbranch_scc1 L_go1")
    a("s_sub_u32 s63, s63, 1"); a("s_cmp_lg_u32 s63, 0")
    a("s_cbranch_scc1 L_chk1")
    a.label("L_go1")
    tstamp(2)
    a("v_max_f32_dpp v64, v136, v136 row_ror:8 row_mask:0xf bank_mask:0xf")
    a("v_mov_b32 v65, v64"); a("v_permlane16_swap_b32 v64, v65"); a("v_max_f32 v64, v64, v65")
    a("v_mov_b32 v65, v64"); a("v_permlane32_swap_b32 v64, v65"); a("v_max_f32 v64, v64, v65")
    a("v_sub_f32 v64, v136, v64"); a("v_exp_f32 v64, v64")
    a("v_mul_f32 v66, v64, v137")
    for r in range(8): a(f"v_mul_f32 v{128+r}, v64, v{128+r}")
    a("v_add_f32_dpp v66, v66, v66 row_ror:8 row_mask:0xf bank_mask:0xf")
    for r in range(4): a(f"v_permlane32_swap_b32 v{128+r}, v{132+r}")
    a("v_mov_b32 v65, v66"); a("v_permlane16_swap_b32 v66, v65"); a("v_add_f32 v66, v66, v65")
    for r in range(4): a(f"v_add_f32 v{128+r}, v{128+r}, v{132+r}")
    a("v_mov_b32 v65, v66"); a("v_permlane32_swap_b32 v66, v65"); a("v_add_f32 v66, v66, v65")
    a("v_permlane16_swap_b32 v128, v130"); a("v_permlane16_swap_b32 v129, v131")
    a("v_rcp_f32 v66, v66")
    a("v_add_f32 v128, v128, v130"); a("v_add_f32 v129, v129, v131")
    a("v_add_f32_dpp v128, v128, v128 row_ror:8 row_mask:0xf bank_mask:0xf")
    a("v_add_f32_dpp v129, v129, v129 row_ror:8 row_mask:0xf bank_mask:0xf")
    a("v_mul_f32 v128, v128, v66"); a("v_mul_f32 v129, v129, v66")
    a("v_cvt_pk_bf16_f32 v128, v128, v128"); a("v_cvt_pk_bf16_f32 v129, v129, v129")
    a(f"ds_write_b64 v23, v[128:129] offset:{L_OB}")
    a("s_waitcnt lgkmcnt(0)")
    a.label("L_b3b")
    a("s_barrier")
    a("s_cmp_ge_u32 s65, 2048")
    a("s_cbranch_scc1 L_fin")
    if lpos == 2:
        for l in late: a(l)
        mlp_part("s_waitcnt vmcnt(0)")
    for k in range(3): a(f"ds_read_b64 v[{128+2*k}:{129+2*k}], v7 offset:{L_OB+8*k}")
    a("s_waitcnt lgkmcnt(0)")
    for i in range(6):
        for r in range(4): a(f"v_and_b32 v{64+4*i+r}, v{MSK+r}, v{128+i}")
        if i >= 1:
            a(f"{MF} v[{PD}:{PD+3}], v[{64+4*(i-1)}:{67+4*(i-1)}], v[{WO+4*(i-1)}:{WO+3+4*(i-1)}], v[{PD}:{PD+3}]")
    a(f"{MF} v[{PD}:{PD+3}], v[84:87], v[{WO+20}:{WO+23}], v[{PD}:{PD+3}]")
    for r in range(4): a(f"v_mov_b32 v{20+r}, v{PD+r}")
    for r in range(4): a(f"v_permlane32_swap_b32 v{PD+r}, v{20+r}")
    for r in range(4): a(f"v_add_f32_dpp v{24+r}, v{20+r}, v{PD+r} row_ror:8 row_mask:0xf bank_mask:0xf")
    for r in range(4): a(f"v_min_u32 v{24+r}, -2, v{24+r}")
    a("s_mov_b64 exec, 0x00ff00ff")
    a(f"buffer_store_dwordx4 v[24:27], v11, {WS_}, s58 offen sc1")
    a("s_mov_b64 exec, -1")
    tstamp(3)
    a("s_branch L_fin")
    a.label("L_w0")
    a("v_mov_b32 v65, 0")
    a("v_mul_u32_u24 v66, 43, v2"); a("v_lshrrev_b32 v66, 9, v66")
    a("v_mul_u32_u24 v67, 12, v66"); a("v_sub_u32 v67, v2, v67")
    a("v_lshlrev_b32 v66, 11, v66"); a("v_lshl_add_u32 v66, v67, 4, v66")
    a("v_subrev_u32 v67, 48, v2"); a("v_lshlrev_b32 v67, 11, v67"); a("v_add_u32 v67, 192, v67")
    a("v_cmp_gt_u32 vcc, 48, v2")
    a("v_cndmask_b32 v66, v67, v66, vcc")
    a("s_mov_b32 s62, 0"); a("s_mov_b32 s63, 0xffff0000")
    a("s_waitcnt lgkmcnt(0)")
    a("s_barrier")
    tstamp(1)
    for k in range(4): a(f"ds_read_b128 v[{20+4*k}:{23+4*k}], v65 offset:{L_ML+16*k}")
    for w in range(10): a(f"ds_read_b128 v[{148+4*w}:{151+4*w}], v6 offset:{L_OP+768*w}")
    a("s_waitcnt lgkmcnt(0)" if st == "tail" else "s_waitcnt lgkmcnt(9)")
    for w in range(10, 16): a(f"ds_read_b128 v[{148+4*w}:{151+4*w}], v6 offset:{L_OP+768*w}")
    a("v_max3_f32 v68, v20, v22, v24"); a("v_max3_f32 v68, v68, v26, v28")
    a("v_max3_f32 v68, v68, v30, v32"); a("v_max_f32 v68, v68, v34")
    for w in range(8): a(f"v_sub_f32 v{20+2*w}, v{20+2*w}, v68")
    for w in range(8): a(f"v_exp_f32 v{20+2*w}, v{20+2*w}")
    a("v_mul_f32 v69, v20, v21")
    for w in range(1, 8): a(f"v_fmac_f32 v69, v{20+2*w}, v{21+2*w}")
    a("s_waitcnt lgkmcnt(0)")
    for w in range(8):
        a(f"v_pk_add_f32 v[{148+8*w}:{149+8*w}], v[{148+8*w}:{149+8*w}], v[{152+8*w}:{153+8*w}]")
        a(f"v_pk_add_f32 v[{150+8*w}:{151+8*w}], v[{150+8*w}:{151+8*w}], v[{154+8*w}:{155+8*w}]")
    for r in range(4): a(f"v_mul_f32 v{72+r}, v20, v{148+r}")
    for w in range(1, 8):
        for r in range(4): a(f"v_fmac_f32 v{72+r}, v{20+2*w}, v{148+8*w+r}")
    a("v_cndmask_b32 v72, v72, v68, s[62:63]"); a("v_cndmask_b32 v73, v73, v69, s[62:63]")
    a("v_cndmask_b32 v74, v74, v68, s[62:63]"); a("v_cndmask_b32 v75, v75, v69, s[62:63]")
    for r in range(4): a(f"v_min_u32 v{72+r}, -2, v{72+r}")
    a("s_mov_b32 exec_lo, -1"); a("s_mov_b32 exec_hi, 0xfffff")
    a("s_cmp_eq_u32 s66, 2"); a("s_cbranch_scc1 L_h1L")
    a(f"buffer_store_dwordx4 v[72:75], v66, {WS_}, s56 offen sc1")
    a("s_mov_b64 exec, -1")
    a("s_branch L_b3b")
    a.label("L_h1L")
    a(f"buffer_store_dwordx4 v[72:75], v66, {WS_}, s56 offen")
    a("s_mov_b64 exec, -1")
    tstamp(2)
    a("s_branch L_b3b")
    a.label("L_fin")
    tstamp(5); tstamp(6); stamp(6)
    a("s_cmp_ge_u32 s2, 20")
    a("s_cbranch_scc1 L_done")
    a("v_lshrrev_b32 v15, 3, v0"); a("v_mul_u32_u24 v15, 2560, v15")
    a("v_add_u32 v15, v15, v3")
    a("s_lshl_b32 s62, s2, 7"); a("s_add_u32 s62, s62, %d" % MB2_OFF); a("s_add_u32 s61, s62, %d" % (64 * 2560))
    a("v_lshlrev_b32 v16, 2, v2"); a("s_lshl_b32 s60, s2, 6")
    a(f"buffer_load_dword v17, v16, {X_}, s60 offen")
    a(f"s_mov_b32 s63, {SPIN_MAX}")
    def p2(k):
        b = 72 + 8 * k
        a(f"buffer_load_dwordx4 v[{b}:{b+3}], v15, {WS_}, s62 offen sc1")
        a(f"buffer_load_dwordx4 v[{b+4}:{b+7}], v15, {WS_}, s61 offen sc1")
    for k in range(NP2):
        p2(k)
        if k < NP2 - 1: a(f"s_sleep {gap2}")
    a.label("L_poll2")
    for k in range(NP2):
        b = 72 + 8 * k
        a(f"s_waitcnt vmcnt({2*(NP2-1)})")
        a(f"v_max3_u32 v18, v{b}, v{b+1}, v{b+2}"); a(f"v_max3_u32 v18, v18, v{b+3}, v{b+4}"); a(f"v_max3_u32 v18, v18, v{b+5}, v{b+6}"); a(f"v_max_u32 v18, v18, v{b+7}")
        for r in range(4): a(f"v_add_f32 v{64+r}, v{b+r}, v{b+4+r}")
        a("v_cmp_eq_u32 vcc, -1, v18")
        a("s_cmp_eq_u64 vcc, 0")
        a("s_cbranch_scc1 L_go2")
        p2(k)
    a("s_sub_u32 s63, s63, 1"); a("s_cmp_lg_u32 s63, 0")
    a("s_cbranch_scc1 L_poll2")
    a.label("L_go2")
    tstamp(6)
    a("v_permlane32_swap_b32 v64, v66"); a("v_permlane32_swap_b32 v65, v67")
    a("v_add_f32 v64, v64, v66"); a("v_add_f32 v65, v65, v67")
    a("v_permlane16_swap_b32 v64, v65"); a("v_add_f32 v64, v64, v65")
    a("v_add_f32_dpp v64, v64, v64 row_ror:8 row_mask:0xf bank_mask:0xf")
    a("v_lshrrev_b32 v18, 4, v2"); a("v_lshlrev_b32 v18, 2, v18")
    a("s_lshl_b32 s62, s3, 7")
    a("v_add3_u32 v18, v18, v3, s62")
    a(f"ds_write_b32 v18, v64 offset:{L_FIN}")
    a("s_waitcnt lgkmcnt(0)")
    a("s_barrier")
    a("s_cmp_lg_u32 s3, 0")
    a("s_cbranch_scc1 L_done")
    a("s_mov_b64 exec, 0xffff")
    a("v_lshlrev_b32 v18, 3, v2")
    for w in range(8): a(f"ds_read_b64 v[{160+2*w}:{161+2*w}], v18 offset:{L_FIN+128*w}")
    unpack(17, 64, 65)
    a("s_waitcnt lgkmcnt(0)")
    for w in range(8):
        a(f"v_add_f32 v64, v64, v{160+2*w}"); a(f"v_add_f32 v65, v65, v{161+2*w}")
    a("v_cvt_pk_bf16_f32 v64, v64, v65")
    a(f"buffer_store_dword v64, v16, {OUT_}, s60 offen")
    a("s_mov_b64 exec, -1")
    a.label("L_done")
    if st: a("s_waitcnt vmcnt(0)" if False else "s_nop 0")
    if st == "wave":
        a("s_waitcnt lgkmcnt(0)")
        a("v_mov_b32 v64, s88"); a("v_mov_b32 v65, s89"); a("v_mov_b32 v66, s96"); a("v_mov_b32 v67, s97")
        a("s_lshl_b32 s63, s2, 7"); a("s_lshl_b32 s62, s3, 4"); a("s_add_u32 s63, s63, s62"); a(f"s_add_u32 s63, s63, {STAMP_OFF}")
        a("v_mov_b32 v15, 0"); a("s_mov_b64 exec, 1")
        a(f"buffer_store_dwordx4 v[64:67], v15, {WS_}, s63 offen")
    elif st:
        a("s_memrealtime s[86:87]")
        a("s_cmp_eq_u32 s3, 0"); a("s_cselect_b32 s62, 0, 1")
        a(f"s_cmp_eq_u32 s3, {AUX}"); a("s_cselect_b32 s63, 0, 1")
        a("s_and_b32 s63, s63, s62"); a("s_cmp_eq_u32 s63, 1"); a("s_cbranch_scc1 L_end")
        a("s_waitcnt lgkmcnt(0)")
        for i in range(7):
            a(f"v_mov_b32 v{64+2*i}, s{88+2*i}"); a(f"v_mov_b32 v{65+2*i}, s{89+2*i}")
        a("v_mov_b32 v78, s86"); a("v_mov_b32 v79, s87")
        a("s_lshl_b32 s63, s2, 7"); a("s_lshl_b32 s62, s62, 6"); a("s_add_u32 s63, s63, s62"); a(f"s_add_u32 s63, s63, {STAMP_OFF}")
        a("v_mov_b32 v15, 0"); a("s_mov_b64 exec, 1")
        for i in range(4): a(f"buffer_store_dwordx4 v[{64+4*i}:{67+4*i}], v15, {WS_}, s63 offen offset:{16*i}")
    a.label("L_end")
    a("s_endpgm")
    R('.section .rodata,"a"'); R(".p2align 6"); R(f".amdhsa_kernel {KN}")
    R("  .amdhsa_next_free_vgpr 256"); R("  .amdhsa_next_free_sgpr 102"); R("  .amdhsa_accum_offset 256")
    R("  .amdhsa_group_segment_fixed_size 0"); R("  .amdhsa_kernarg_size 96"); R("  .amdhsa_user_sgpr_count 2")
    R("  .amdhsa_user_sgpr_kernarg_segment_ptr 1"); R("  .amdhsa_system_sgpr_workgroup_id_x 1"); R(".end_amdhsa_kernel")
    open(fname, "w").write(a.text())

if __name__ == "__main__":
    base = dict(NV=14, budget=1, wfirst=False, psleep=24, pre=6)
    gen("k11_r2.s", **base)
    gen("k11_r3.s", rot=3, **base)
    gen("k11_r0.s", rot=0, **base)
    gen("k11_t6.s", T=6, NV=16, budget=1, wfirst=False, psleep=24, pre=6)
    gen("k11_tlb.s", tlb=1, **base)
    gen("k11_nv18.s", NV=18, budget=2, wfirst=False, psleep=24, pre=6)
```

```python
import sys
from asmlib import Asm
KN = "parallel_sum__sliding_block_cached__glu_gated_swiglu__decode_kernel"

MBX_OFF, MB2_OFF, QX_OFF, QMB_OFF = 0x80000, 0x100000, 0x200000, 0x60000
STAMP_OFF = 64 << 20
L_P1 = 0
L_QB = 2816
L_HB = L_QB + 384
L_FLAG = 3328
L_OB = 3392
L_ML = 3584
L_OP = 3712
L_FIN = 16256
LDS_SIZE = 17408
OOB = 0x40000000
LOG2E = 0x3fb8aa3b
SCALE = 0x3d93cd3a
SPIN_MAX = 1 << 16
AUX = 7
CLR = 6

K_, V_, WS_, WQ_, WO_, W1_, W3_, W2_, X_, OUT_, DBG_ = [f"s[{i}:{i+3}]" for i in range(8, 52, 4)]
DPP3 = ("quad_perm:[1,0,3,2]", "quad_perm:[2,3,0,1]", "row_half_mirror")
KB, VB = 40, 148
DACC, MSK, AOP, WO, W2, PD = 40, 52, 56, 92, 116, 124
MF = "v_mfma_f32_16x16x32_bf16"

class VM:
    def __init__(self, a):
        self.a = a; self.n = 0; self.done = 0
    def issue(self, s):
        self.a(s); self.n += 1; return self.n - 1
    def wait_id(self, i):
        if i < self.done: return
        self.a(f"s_waitcnt vmcnt({self.n - 1 - i})"); self.done = i + 1
    def throttle(self, T):
        if self.n - self.done > T - 1:
            self.a(f"s_waitcnt vmcnt({T-1})"); self.done = self.n - (T - 1)
    def set(self, n, d):
        self.n = n; self.done = d

def gen(fname, T=4, TL=None, NV=2, budget=2, prio=1, st=None, wfirst=True, abl='', tlb=0, psleep=2, pre=0, cpos=0, cpol='sc1', cnum=5, h1pol='sc1', pupol='sc1', qppol='sc1', xcpos=5, forcex=0, NP2=1, gap2=4, NP1=1, gap1=2, lpos=0, rot=3, fine=0):
    TL = T if TL is None else TL
    a = Asm()
    R = a.raw
    R(f"; @launch grid=(256,1,1) block=(512,1,1) lds={LDS_SIZE}")
    R('.amdgcn_target "amdgcn-amd-amdhsa--gfx950"')
    R(".text"); R(f".globl {KN}"); R(".p2align 8"); R(f".type {KN},@function"); R(f"{KN}:")
    def stamp(i, kinds=("main", "wave")):
        if st in kinds: a(f"s_memrealtime s[{88+2*i}:{89+2*i}]")
    def tstamp(i): stamp(i, ("tail",))
    def unpack(src, dlo, dhi):
        a(f"v_lshlrev_b32 v{dlo}, 16, v{src}"); a(f"v_and_b32 v{dhi}, 0xffff0000, v{src}")
    def lohi(src, d):
        a(f"v_and_b32 v{d}, 0xffff, v{src}"); a(f"v_lshlrev_b32 v{d+1}, 16, v{src}")
        a(f"v_lshrrev_b32 v{d+2}, 16, v{src}"); a(f"v_and_b32 v{d+3}, 0xffff0000, v{src}")
    def exec_hi16():
        a("s_mov_b32 exec_lo, 0"); a("s_mov_b32 exec_hi, 0xffff0000")
    def exec_valid():
        a("s_mov_b32 exec_lo, 0x00ff00ff"); a("s_mov_b32 exec_hi, 0xff00ff00")
    def srd(base, ptr, size):
        a(f"s_mov_b32 s{base}, s{ptr}"); a(f"s_mov_b32 s{base+1}, s{ptr+1}")
        a(f"s_mov_b32 s{base+2}, {size}"); a(f"s_mov_b32 s{base+3}, 0x00020000")
    def masks(d, t0, t1):
        a(f"v_and_b32 v{t0}, 1, v2"); a(f"v_lshlrev_b32 v{t0}, 4, v{t0}")
        a(f"v_mov_b32 v{t1}, 0xffff"); a(f"v_lshlrev_b32 v{t1}, v{t0}, v{t1}")
        a(f"v_bfe_u32 v{t0}, v2, 1, 2")
        for r in range(4):
            a(f"v_cmp_eq_u32 vcc, {r}, v{t0}")
            a(f"v_cndmask_b32 v{d+r}, 0, v{t1}, vcc")
    vm = VM(a)
    a("s_cmp_ge_u32 s2, 256")
    a("s_cbranch_scc1 L_end")
    stamp(0, ("main", "wave", "tail"))
    a("s_load_dwordx16 s[52:67], s[0:1], 0")
    a("s_load_dwordx8 s[68:75], s[0:1], 64")
    a("v_lshrrev_b32 v15, 6, v0")
    a("v_and_b32 v2, 63, v0")
    a("v_readfirstlane_b32 s3, v15")
    a("s_and_b32 s4, s2, 31")
    a("s_lshr_b32 s5, s2, 5")
    a("s_lshr_b32 s6, s5, 1")
    a("s_and_b32 s7, s5, 1")
    a("v_lshrrev_b32 v15, 3, v2")
    a("v_and_b32 v3, 7, v2"); a("v_lshlrev_b32 v3, 4, v3")
    a("v_mul_u32_u24 v1, 384, v15"); a("v_add_u32 v1, v1, v3")
    a("v_lshlrev_b32 v6, 4, v2")
    a("s_mul_i32 s76, s4, 12582912"); a("s_mul_i32 s77, s5, %d" % (512 * 384))
    a("s_add_u32 s76, s76, s77"); a("s_add_u32 s76, s76, %d" % (28672 * 384))
    a(f"s_cmp_eq_u32 s3, {AUX}")
    a("s_cbranch_scc1 L_aux")

    SO = 78
    def kload(n, base=KB):
        i, j = divmod(n, 3); r = base + 4 * n
        return vm.issue(f"buffer_load_dwordx4 v[{r}:{r+3}], v1, {K_}, s{SO+i} offen offset:{j*128} nt")
    def vload(n, base=VB):
        i, j = divmod(n, 3); r = base + 4 * n
        return vm.issue(f"buffer_load_dwordx4 v[{r}:{r+3}], v1, {V_}, s{SO+i} offen offset:{j*128} nt")

    def setup_common():
        srd(16, 74, 1610612736); srd(24, 60, 7864320); srd(36, 68, 1966080); srd(44, 70, 1280); srd(48, 72, 256)
        srd(40, 52, 1280)
        a("s_mul_i32 s52, s4, 192"); a("s_mul_i32 s63, s6, 48"); a("s_add_u32 s52, s52, s63"); a("s_mul_i32 s52, s52, 1280")
        a("s_mul_i32 s63, s7, 640"); a("s_add_u32 s52, s52, s63")
        a("s_lshl_b32 s53, s4, 6"); a("s_lshl_b32 s62, s6, 4"); a("s_add_u32 s53, s53, s62"); a("s_mul_i32 s53, s53, 1280")
        a("s_add_u32 s53, s53, s63")
        a("s_cmp_lt_u32 s4, 24"); a("s_cselect_b32 s53, s53, %d" % OOB)
        a("s_sub_u32 s62, s3, 1"); a("s_cmp_lt_u32 s62, 4"); a("s_cselect_b32 s62, s62, 8"); a("s_cmp_eq_u32 s3, 7"); a("s_cselect_b32 s62, 4, s62")
        a("s_lshl_b32 s63, s62, 7"); a("s_cmp_lt_u32 s62, 5"); a("s_cselect_b32 s63, s63, %d" % OOB)
        a("s_add_u32 s52, s52, s63"); a("s_add_u32 s53, s53, s63"); a("s_add_u32 s64, s52, 5120")
        a("s_lshl_b32 s65, s62, 8")
        a("s_lshl_b32 s54, s4, 13"); a("s_add_u32 s54, s54, %d" % MBX_OFF)
        a("s_lshl_b32 s62, s6, 11"); a("s_add_u32 s55, s54, s62")
        a("s_lshl_b32 s62, s5, 8"); a("s_add_u32 s56, s54, s62")
        a("s_mul_i32 s57, s4, 10240"); a("s_add_u32 s57, s57, %d" % QX_OFF)
        a("s_lshl_b32 s58, s4, 2"); a("s_add_u32 s58, s58, s6"); a("s_mul_i32 s58, s58, 2560")
        a("s_mul_i32 s62, s7, 1280"); a("s_add_u32 s58, s58, s62"); a("s_add_u32 s58, s58, %d" % MB2_OFF); a("s_add_u32 s58, s58, s65")
        a("s_mul_i32 s59, s4, 10240"); a("s_mul_i32 s62, s5, 1280"); a("s_add_u32 s59, s59, s62"); a("s_add_u32 s59, s59, %d" % QX_OFF)
    def setup_proj():
        a("v_lshrrev_b32 v15, 3, v2")
        a("v_mul_u32_u24 v4, 7680, v15"); a("v_add_u32 v4, v4, v3")
        a("v_mul_u32_u24 v5, 2560, v15"); a("v_add_u32 v5, v5, v3")
        a("v_lshlrev_b32 v9, 2, v15"); a("s_lshl_b32 s87, s6, 5"); a("v_add_u32 v9, s87, v9")
        a("v_lshlrev_b32 v8, 4, v3")
        a("v_mul_u32_u24 v7, 24, v15")
        a("v_and_b32 v16, 16, v2")
        a("v_lshl_add_u32 v11, v3, 1, v16")
        a("v_lshrrev_b32 v15, 5, v2"); a("v_mul_u32_u24 v15, 768, v15")
        a("s_mul_i32 s87, s3, 1536")
        a("v_add3_u32 v14, v11, v15, s87")

    late = [f"buffer_load_dwordx4 v[{W2+4*i}:{W2+3+4*i}], v5, {W2_}, s53 offen offset:{1280*i} nt" for i in range(2)]
    late += [f"buffer_load_dwordx4 v[{WO+4*i}:{WO+3+4*i}], v4, {WO_}, {'s52' if i < 4 else 's64'} offen offset:{1280*(i%4)} nt" for i in range(6)]

    def read_q():
        for j in range(3):
            a(f"ds_read_b128 v[{20+4*j}:{23+4*j}], v3 offset:{L_QB+128*j}")
        a(f"ds_read_b32 v10, v9 offset:{L_HB}")
    def t_score(groups, sc, kb, first):
        def f():
            if first: a("s_waitcnt lgkmcnt(0)")
            for i in groups: a(f"v_mov_b32 v{sc[i]}, 0")
            for j in range(3):
                for r in range(4):
                    for i in groups:
                        a(f"v_dot2c_f32_bf16 v{sc[i]}, v{kb+12*i+4*j+r}, v{20+4*j+r}")
            for m in DPP3:
                for i in groups:
                    a(f"v_add_f32_dpp v{sc[i]}, v{sc[i]}, v{sc[i]} {m} row_mask:0xf bank_mask:0xf")
            s0 = sc[groups[0]]; s1 = sc[groups[-1]]
            for rnd in range(2):
                a(f"v_cvt_pk_bf16_f32 v15, v{s0}, v{s1}")
                a(f"v_lshlrev_b32 v{s0}, 16, v15")
                if s1 != s0: a(f"v_and_b32 v{s1}, 0xffff0000, v15")
                if rnd == 0:
                    for i in groups: a(f"v_mul_f32 v{sc[i]}, {SCALE:#x}, v{sc[i]}")
        return f
    def t_softmax(G, sc):
        def f1():
            a(f"v_mov_b32 v15, v{sc[0]}")
            rest = list(range(1, G))
            for k in range(0, len(rest), 2): a(f"v_max3_f32 v15, v15, v{sc[rest[k]]}, v{sc[rest[k+1]]}")
            a("v_max_f32_dpp v15, v15, v15 row_ror:8 row_mask:0xf bank_mask:0xf")
            for r in range(DACC, DACC + 12): a(f"v_mov_b32 v{r}, 0")
            a("v_mov_b32 v16, v15"); a("v_permlane16_swap_b32 v15, v16"); a("v_max_f32 v15, v15, v16")
            a("v_mov_b32 v16, v15"); a("v_permlane32_swap_b32 v15, v16"); a("v_max_f32 v15, v15, v16")
            a(f"v_mul_f32 v12, {LOG2E:#x}, v15")
            masks(MSK, 17, 18)
        def f2():
            a(f"s_mov_b32 s62, {LOG2E:#x}")
            for i in range(G): a(f"v_fma_f32 v{sc[i]}, v{sc[i]}, s62, -v12")
            for i in range(G): a(f"v_exp_f32 v{sc[i]}, v{sc[i]}")
            for i in range(G): a(f"v_cvt_pk_bf16_f32 v{sc[i]}, v{sc[i]}, v{sc[i]}")
        def f3():
            for i in range(G):
                for r in range(4): a(f"v_and_b32 v{AOP+4*i+r}, v{MSK+r}, v{sc[i]}")
        def f4():
            a(f"v_and_b32 v13, 0xffff0000, v{sc[0]}")
            for i in range(1, G):
                a(f"v_and_b32 v15, 0xffff0000, v{sc[i]}"); a("v_add_f32 v13, v13, v15")
            a("v_add_f32_dpp v13, v13, v13 row_ror:8 row_mask:0xf bank_mask:0xf")
            a("v_mov_b32 v16, v13"); a("v_permlane16_swap_b32 v13, v16"); a("v_add_f32 v13, v13, v16")
            a("v_mov_b32 v16, v13"); a("v_permlane32_swap_b32 v13, v16"); a("v_add_f32 v13, v13, v16")
            a("s_lshl_b32 s62, s3, 3"); a("v_mov_b32 v16, s62")
            a(f"ds_write_b64 v16, v[12:13] offset:{L_ML}")
        return [f1, f2, f3, f4]
    def t_pv(n, vb):
        def f():
            i, j = divmod(n, 3)
            d = DACC + 4 * j
            a(f"{MF} v[{d}:{d+3}], v[{AOP+4*i}:{AOP+3+4*i}], v[{vb+4*n}:{vb+3+4*n}], v[{d}:{d+3}]")
        return f

    if rot == 2:
        a("s_lshr_b32 s77, s2, 3"); a("s_add_u32 s77, s77, s3"); a("s_add_u32 s77, s77, s2")
    elif rot == 3:
        a("s_lshr_b32 s77, s2, 3"); a("s_add_u32 s77, s77, s2")
    else:
        a("s_mov_b32 s77, 0")
    a("s_mul_i32 s87, s77, 57"); a("s_lshr_b32 s87, s87, 9"); a("s_mul_i32 s87, s87, 9"); a("s_sub_u32 s77, s77, s87")
    a("s_mul_i32 s87, s3, 3072"); a("s_add_u32 s76, s76, s87")
    for i in range(9):
        a(f"s_add_u32 s{SO+i}, s77, {i}"); a(f"s_sub_u32 s87, s{SO+i}, 9"); a(f"s_cmp_ge_u32 s{SO+i}, 9")
        a(f"s_cselect_b32 s{SO+i}, s87, s{SO+i}"); a(f"s_mul_i32 s{SO+i}, s{SO+i}, {7*3072}"); a(f"s_add_u32 s{SO+i}, s{SO+i}, s76")
    if prio:
        a("s_cmp_lt_u32 s3, 4"); a("s_cbranch_scc1 L_noprio"); a(f"s_setprio {prio}"); a.label("L_noprio")
    setup_proj()
    a("s_waitcnt lgkmcnt(0)")
    srd(8, 54, 402653184); srd(12, 56, 402653184)
    setup_common()
    if tlb:
        a("s_cmp_lg_u32 s3, 5"); a("s_cbranch_scc1 L_notlb")
        a("s_mov_b64 exec, 1"); a("v_mov_b32 v20, 0")
        a("s_add_u32 s62, s76, %d" % (196608 - 5 * 3072 - 64))
        a(f"buffer_load_dword v21, v20, {V_}, s76 offen nt")
        a(f"buffer_load_dword v22, v20, {V_}, s62 offen nt")
        a(f"buffer_load_dword v23, v20, {K_}, s62 offen nt")
        a(f"buffer_load_dword v24, v20, {WO_}, s52 offen nt")
        a(f"buffer_load_dword v25, v20, {W2_}, s53 offen nt")
        a(f"buffer_load_dword v26, v20, {WS_}, s57 offen nt")
        a(f"buffer_load_dword v27, v20, {OUT_}, 0 offen nt")
        a("s_mov_b64 exec, -1")
        a.label("L_notlb")
    kid = {}
    if wfirst: a("s_barrier")
    for n in range(T): kid[n] = kload(n)
    if not wfirst: a("s_barrier")
    for n in range(T, 27):
        vm.throttle(T); kid[n] = kload(n)
    vid = {}
    for n in range(NV):
        vm.throttle(T); vid[n] = vload(n)
    stamp(2)
    a(f"v_mov_b32 v15, {L_FLAG}")
    a(f"s_mov_b32 s63, {SPIN_MAX}")
    a.label("L_flag")
    a("ds_read_b32 v16, v15")
    a("s_waitcnt lgkmcnt(0)")
    a("v_readfirstlane_b32 s66, v16")
    a("s_cmp_lg_u32 s66, 0")
    a("s_cbranch_scc1 L_flagok")
    a("s_sleep 2")
    a("s_sub_u32 s63, s63, 1")
    a("s_cmp_lg_u32 s63, 0")
    a("s_cbranch_scc1 L_flag")
    a.label("L_flagok")
    stamp(3)
    read_q()
    sc = [32 + i for i in range(8)] + [19]
    groups = ((0, 1), (2, 3), (4, 5), (6, 7), (8,)) if not fine else tuple((i,) for i in range(9))
    tasks = [(lambda g=g: kid[3 * g[-1] + 2], t_score(g, sc, KB, g[0] == 0), 4) for g in groups]
    tasks += [(lambda: -1, f, 4) for f in t_softmax(9, sc)]
    tasks += [(lambda n=n: vid.get(n, 10**9), t_pv(n, VB), 0.5) for n in range(27)]
    ndone = 0
    for n in range(NV, 35):
        if n < 27 + TL - 1: vm.throttle(TL)
        if n < 27: vid[n] = vload(n)
        else:
            assert ndone >= len(groups) + 3
            if lpos == 0: vm.issue(late[n - 27])
        b = budget * 4
        while b > 0 and tasks and tasks[0][0]() < vm.done:
            t = tasks.pop(0); t[1](); b -= t[2]; ndone += 1
    while tasks:
        req, f, c = tasks.pop(0)
        if req() >= 0: vm.wait_id(req())
        f()
    stamp(4)
    a("s_branch L_tail")

    a.label("L_aux")
    vm.set(0, 0)
    a("s_setprio 2")
    a(f"v_mov_b32 v16, {L_FLAG}"); a("v_mov_b32 v17, 0")
    a("ds_write_b32 v16, v17")
    a("v_mul_u32_u24 v4, 122880, v15"); a("v_add_u32 v4, v4, v3")
    a("v_mul_u32_u24 v5, 30720, v15"); a("v_add_u32 v5, v5, v3")
    a("v_mul_u32_u24 v7, 20, v15")
    a(f"s_add_u32 s{SO}, s76, {63*3072}")
    a("s_mul_i32 s79, s5, 160")
    a("s_mul_i32 s80, s5, %d" % (80 * 12288)); a("s_mul_i32 s77, s4, 384"); a("s_add_u32 s80, s80, s77")
    a("s_mul_i32 s81, s5, %d" % (80 * 3072)); a("s_lshl_b32 s77, s4, 7"); a("s_add_u32 s81, s81, s77")
    a("s_cmp_lt_u32 s4, 24"); a("s_cselect_b32 s81, s81, %d" % OOB)
    a("s_lshl_b32 s82, s2, 9"); a("s_add_u32 s82, s82, %d" % QMB_OFF)
    a("v_lshlrev_b32 v14, 3, v2")
    a("s_lshl_b32 s83, s4, 13"); a("s_lshl_b32 s77, s5, 8"); a("s_add_u32 s83, s83, s77"); a("s_add_u32 s83, s83, %d" % MBX_OFF)
    a("v_lshrrev_b32 v12, 4, v2"); a("v_lshlrev_b32 v12, 11, v12"); a("v_and_b32 v13, 15, v2"); a("v_lshl_add_u32 v12, v13, 4, v12")
    a("s_lshl_b32 s84, s4, 2"); a("s_add_u32 s84, s84, s6"); a("s_mul_i32 s84, s84, 2560")
    a("s_mul_i32 s77, s7, 1280"); a("s_add_u32 s84, s84, s77"); a("s_add_u32 s84, s84, %d" % MB2_OFF)
    a("s_getreg_b32 s85, hwreg(HW_REG_XCC_ID)"); a("s_and_b32 s85, s85, 15")
    a("s_mul_i32 s77, s85, s85"); a("s_lshl_b32 s77, s77, 12"); a("s_lshl_b32 s85, s85, 4"); a("s_add_u32 s85, s85, s77"); a("s_add_u32 s85, s85, 1")
    masks(8, 16, 17)
    for r in range(52, 56): a(f"v_mov_b32 v{r}, -1")
    a("s_waitcnt lgkmcnt(0)")
    srd(16, 74, 1610612736); srd(48, 72, 256)
    def clears():
        if 'a' in abl: return
        vm.issue(f"buffer_store_dwordx2 v[52:53], v14, {WS_}, s82 offen {cpol}")
        if cnum < 2: return
        vm.issue(f"buffer_store_dwordx4 v[52:55], v12, {WS_}, s83 offen {cpol}")
        vm.issue(f"buffer_store_dwordx4 v[52:55], v6, {WS_}, s84 offen {cpol}")
        a("s_mov_b64 exec, 0xffff")
        vm.issue(f"buffer_store_dwordx4 v[52:55], v6, {WS_}, s84 offen offset:1024 {cpol}")
        a("s_mov_b64 exec, -1")
    if cpos == 0: clears()
    srd(40, 52, 1280); srd(20, 58, 7864320)
    ix0 = vm.issue(f"buffer_load_dwordx4 v[32:35], v6, {X_}, 0 offen")
    ix1 = vm.issue(f"buffer_load_dwordx4 v[36:39], v6, {X_}, 0 offen offset:1024")
    vm.issue(f"buffer_load_dwordx4 v[16:19], v7, {X_}, s79 offen")
    ixo = vm.issue(f"buffer_load_dword v15, v7, {X_}, s79 offen offset:16")
    srd(28, 64, 1966080); srd(32, 66, 1966080)
    iw = {}
    for i in range(10):
        b = 56 + 20 * i
        for j in range(3):
            vm.issue(f"buffer_load_dwordx4 v[{b+4*j}:{b+3+4*j}], v4, {WQ_}, s80 offen offset:{128*j} nt")
        vm.issue(f"buffer_load_dwordx4 v[{b+12}:{b+15}], v5, {W1_}, s81 offen nt")
        iw[i] = vm.issue(f"buffer_load_dwordx4 v[{b+16}:{b+19}], v5, {W3_}, s81 offen nt")
        if i < 9:
            a("s_add_u32 s80, s80, 12288"); a("s_add_u32 s81, s81, 3072")
    a("s_barrier")
    if cpos == 1: clears()
    srd(8, 54, 402653184); srd(12, 56, 402653184)
    setup_common()
    a("s_and_b32 s62, s4, 16"); a("s_add_u32 s62, s62, s4"); a("s_lshl_b32 s62, s62, 2"); a("v_mov_b32 v12, s62")
    a("v_mov_b32 v13, s85")
    vm.wait_id(ixo)
    for k in range(4): unpack(16 + k, 20 + 2 * k, 21 + 2 * k)
    unpack(15, 28, 29)
    for r in range(8): unpack(32 + r, 40 + 2 * r, 41 + 2 * r)
    def wave_sum(v, sdst):
        for m in DPP3 + ("row_mirror",):
            a(f"v_add_f32_dpp v{v}, v{v}, v{v} {m} row_mask:0xf bank_mask:0xf")
        for k in range(4): a(f"v_readlane_b32 s{sdst+k}, v{v}, {16*k}")
        a(f"v_mov_b32 v{v}, s{sdst}")
        for k in range(1, 4): a(f"v_add_f32 v{v}, s{sdst+k}, v{v}")
    a("v_add_f32 v15, v40, v41")
    for r in range(42, 56): a(f"v_add_f32 v15, v15, v{r}")
    wave_sum(15, 60)
    a("v_mul_f32 v15, 0x3acccccd, v15")
    a("v_mov_b32 v16, 0")
    for r in range(40, 48):
        a(f"v_sub_f32 v17, v{r}, v15"); a("v_fmac_f32 v16, v17, v17")
    a("s_mov_b64 exec, 0xffff")
    for r in range(48, 56):
        a(f"v_sub_f32 v17, v{r}, v15"); a("v_fmac_f32 v16, v17, v17")
    a("s_mov_b64 exec, -1")
    wave_sum(16, 60)
    a("v_mul_f32 v16, 0x3acccccd, v16")
    a("v_cvt_pk_bf16_f32 v17, v15, v16")
    a("v_lshlrev_b32 v15, 16, v17")
    a("v_and_b32 v16, 0xffff0000, v17")
    a("v_add_f32 v16, 0x3727c5ac, v16")
    a("v_cvt_pk_bf16_f32 v16, v16, v16")
    a("v_lshlrev_b32 v16, 16, v16")
    a("v_sqrt_f32 v16, v16")
    a("v_cvt_pk_bf16_f32 v16, v16, v16")
    a("v_lshlrev_b32 v16, 16, v16")
    a("v_rcp_f32 v17, v16")
    for i in range(10): a(f"v_sub_f32 v{20+i}, v{20+i}, v15")
    for i in range(0, 10, 2):
        a(f"v_cvt_pk_bf16_f32 v18, v{20+i}, v{21+i}"); unpack(18, 20 + i, 21 + i)
    for i in range(10):
        a(f"v_mul_f32 v18, v{20+i}, v17")
        a(f"v_fma_f32 v19, -v18, v16, v{20+i}")
        a(f"v_fma_f32 v{20+i}, v19, v17, v18")
    for i in range(10): a(f"v_cvt_pk_bf16_f32 v{20+i}, v{20+i}, v{20+i}")
    for r in range(32, 52): a(f"v_mov_b32 v{r}, 0")
    a("v_lshrrev_b32 v15, 5, v2"); a("v_mul_u32_u24 v15, 1280, v15")
    a("v_and_b32 v16, 16, v2"); a("v_lshl_add_u32 v16, v3, 1, v16"); a("v_add_u32 v15, v15, v16")
    a("v_lshlrev_b32 v14, 3, v2")
    for i in range(10):
        for r in range(4): a(f"v_and_b32 v{52+r}, v{8+r}, v{20+i}")
        vm.wait_id(iw[i])
        b = 56 + 20 * i
        for c in range(5):
            a(f"{MF} v[{32+4*c}:{35+4*c}], v[52:55], v[{b+4*c}:{b+3+4*c}], v[{32+4*c}:{35+4*c}]")
    stamp(1)
    exec_valid()
    for c in range(5): a(f"ds_write_b128 v15, v[{32+4*c}:{35+4*c}] offset:{L_P1+256*c}")
    a("s_mov_b64 exec, -1")
    a("s_waitcnt lgkmcnt(0)")
    a(f"ds_read_b128 v[64:67], v6 offset:{L_P1}")
    a(f"ds_read_b128 v[68:71], v6 offset:{L_P1+1280}")
    a(f"ds_read_b128 v[72:75], v6 offset:{L_P1+256}")
    a(f"ds_read_b128 v[76:79], v6 offset:{L_P1+1280+256}")
    a("s_waitcnt lgkmcnt(0)")
    for r in range(4):
        a(f"v_add_f32 v{64+r}, v{64+r}, v{68+r}"); a(f"v_add_f32 v{72+r}, v{72+r}, v{76+r}")
    for r in range(4):
        a(f"v_min_u32 v{64+r}, -2, v{64+r}"); a(f"v_min_u32 v{72+r}, -2, v{72+r}")
    if 'b' in abl: a("s_branch L_atake")
    a(f"buffer_store_dwordx4 v[64:67], v6, {WS_}, s59 offen sc1")
    exec_hi16()
    a(f"buffer_store_dwordx4 v[72:75], v6, {WS_}, s59 offen offset:256 sc1")
    a("s_mov_b64 exec, -1")
    a("s_mov_b64 exec, 1")
    a("s_waitcnt vmcnt(0)")
    if 'n' in abl: pass
    elif 'r' in abl: a(f"buffer_atomic_add v13, v12, {DBG_}, 0 offen")
    elif 'w' in abl: a(f"buffer_atomic_add v13, v12, {WS_}, s82 offen sc0")
    else: a(f"buffer_atomic_add v13, v12, {DBG_}, 0 offen sc0")
    a("s_waitcnt vmcnt(0)")
    a("v_readfirstlane_b32 s62, v13")
    a("s_mov_b64 exec, -1")
    stamp(5)
    if 'c' in abl: a("s_branch L_atake")
    if st == "main":
        a("s_and_b32 s92, s62, 7"); a("s_mov_b32 s93, 0")
    a("s_mul_i32 s63, s85, 7"); a("s_cmp_eq_u32 s62, s63"); a("s_cselect_b32 s66, 2, 1")
    if forcex: a("s_mov_b32 s66, 1")
    a("s_add_u32 s67, s6, 1"); a("s_and_b32 s67, s67, 3"); a("s_lshl_b32 s67, s67, 2"); a("s_add_u32 s67, s67, 48")
    a("s_and_b32 s62, s62, 7"); a("s_cmp_eq_u32 s62, 7")
    a("s_cbranch_scc0 L_await")
    a("s_add_u32 s60, s57, 3840"); a("s_add_u32 s61, s57, 7680")
    if 'g' not in abl:
        for s in range(8):
            so = ("s57", "s60", "s61")[s // 3]
            a(f"buffer_load_dwordx4 v[{96+4*s}:{99+4*s}], v6, {WS_}, {so} offen offset:{(s%3)*1280} sc1")
        exec_hi16()
        for s in range(8):
            so = ("s57", "s60", "s61")[s // 3]
            a(f"buffer_load_dwordx4 v[{160+4*s}:{163+4*s}], v6, {WS_}, {so} offen offset:{(s%3)*1280+256} sc1")
        a("s_mov_b64 exec, -1")
        a("s_waitcnt vmcnt(0)")
    a.label("L_agot")
    for s in range(1, 8):
        for r in range(4):
            a(f"v_add_f32 v{96+r}, v{96+r}, v{96+4*s+r}")
            a(f"v_add_f32 v{160+r}, v{160+r}, v{160+4*s+r}")
    a("v_cvt_pk_bf16_f32 v20, v96, v97"); a("v_cvt_pk_bf16_f32 v21, v98, v99")
    a("v_cvt_pk_bf16_f32 v22, v160, v161"); a("v_cvt_pk_bf16_f32 v23, v162, v163")
    exec_hi16()
    unpack(20, 64, 65); unpack(21, 66, 67); unpack(22, 160, 161); unpack(23, 162, 163)
    for r in range(4): a(f"v_mul_f32 v{68+r}, {LOG2E|0x80000000:#x}, v{64+r}")
    for r in range(4): a(f"v_exp_f32 v{68+r}, v{68+r}")
    for r in range(4): a(f"v_add_f32 v{68+r}, 1.0, v{68+r}")
    for r in range(4): a(f"v_rcp_f32 v{72+r}, v{68+r}")
    for r in range(4): a(f"v_mul_f32 v{76+r}, v{64+r}, v{72+r}")
    a("v_cvt_pk_bf16_f32 v20, v76, v77"); a("v_cvt_pk_bf16_f32 v21, v78, v79")
    unpack(20, 64, 65); unpack(21, 66, 67)
    for r in range(4): a(f"v_mul_f32 v{64+r}, v{64+r}, v{160+r}")
    a("v_cvt_pk_bf16_f32 v20, v64, v65"); a("v_cvt_pk_bf16_f32 v21, v66, v67")
    a("s_mov_b64 exec, -1")
    a("v_min_u32 v20, -2, v20"); a("v_min_u32 v21, -2, v21")
    a("s_lshl_b32 s62, s4, 9"); a("s_add_u32 s62, s62, %d" % QMB_OFF)
    for rq in range(4):
        a(f"v_mov_b32 v{24+2*rq}, v20"); a(f"v_mov_b32 v{25+2*rq}, v21")
        a(f"v_writelane_b32 v{24+2*rq}, s66, {48 + 4 * ((rq + 1) & 3)}")
    a("s_cmp_eq_u32 s66, 2"); a("s_cbranch_scc1 L_pushL")
    for pol in ("sc1", ""):
        for s in range(8):
            a(f"buffer_store_dwordx2 v[{24+2*(s>>1)}:{25+2*(s>>1)}], v14, {WS_}, s62 offen {pol}")
            if s < 7: a("s_add_u32 s62, s62, %d" % (32 * 512))
        a("s_branch L_atake")
        if pol: a.label("L_pushL")
    a.label("L_await")
    if 'q' in abl: a("s_branch L_atake")
    for _ in range(pre): a("s_sleep 16")
    a(f"s_mov_b32 s63, {SPIN_MAX}")
    a.label("L_aspin")
    a(f"buffer_load_dwordx2 v[20:21], v14, {WS_}, s82 offen sc1")
    a("s_waitcnt vmcnt(0)")
    a("v_max_u32 v22, v20, v21")
    a("v_cmp_eq_u32 vcc, -1, v22")
    a("s_cmp_eq_u64 vcc, 0")
    a("s_cbranch_scc1 L_agotq")
    a("s_sub_u32 s63, s63, 1"); a("s_cmp_eq_u32 s63, 0")
    a("s_cbranch_scc1 L_agotq")
    a(f"s_sleep {psleep}")
    a("s_branch L_aspin")
    a.label("L_agotq")
    a("v_readlane_b32 s66, v20, s67")
    a("s_cmp_eq_u32 s66, 2"); a("s_cselect_b32 s66, 2, 1")
    a.label("L_atake")
    a(f"ds_write_b64 v14, v[20:21] offset:{L_QB}")
    a(f"v_mov_b32 v22, {L_FLAG}"); a("v_mov_b32 v23, s66")
    a("s_waitcnt lgkmcnt(0)")
    a("ds_write_b32 v22, v23")
    stamp(3)
    a("s_setprio 0")
    vm.set(0, 0)
    AK, AV = 160, 148
    kida = [kload(n, AK) for n in range(3)]
    vida = [vload(n, AV) for n in range(3)]
    setup_proj()
    if lpos == 0:
        for l in late: vm.issue(l)
    read_q()
    vm.wait_id(kida[2])
    t_score((0,), [32], AK, True)()
    for f in t_softmax(1, [32]): f()
    vm.wait_id(vida[2])
    for n in range(3): t_pv(n, AV)()
    if 'f' in abl: a("s_branch L_acntok")
    a("s_cmp_ge_u32 s2, 20"); a("s_cbranch_scc1 L_acntok")
    a("v_and_b32 v15, 15, v2"); a("v_and_b32 v16, 16, v2"); a("v_lshl_add_u32 v15, v16, 1, v15"); a("v_lshlrev_b32 v15, 2, v15")
    a(f"s_mov_b32 s63, {SPIN_MAX}")
    a.label("L_cnt")
    a(f"buffer_load_dword v16, v15, {DBG_}, 0 offen sc1")
    a("s_waitcnt vmcnt(0)")
    a("v_and_b32 v16, 15, v16")
    a("v_cmp_gt_u32 vcc, 8, v16")
    a("s_cmp_eq_u64 vcc, 0")
    a("s_cbranch_scc1 L_acntok")
    a("s_sub_u32 s63, s63, 1"); a("s_cmp_eq_u32 s63, 0")
    a("s_cbranch_scc1 L_acntok")
    a("s_sleep 16")
    a("s_branch L_cnt")
    a.label("L_acntok")
    stamp(4)

    a.label("L_tail")
    if 't' in abl:
        a("s_waitcnt vmcnt(0)"); a("s_branch L_done")
    exec_valid()
    for j in range(3): a(f"ds_write_b128 v14, v[{DACC+4*j}:{DACC+3+4*j}] offset:{L_OP+256*j}")
    a("s_mov_b64 exec, -1")
    def mlp_part(wait):
        a("v_and_b32 v16, 0xffff, v10"); a("v_lshl_or_b32 v16, v16, 16, v16")
        a("v_lshrrev_b32 v17, 16, v10"); a("v_lshl_or_b32 v17, v17, 16, v17")
        for r in range(4): a(f"v_mov_b32 v{PD+r}, 0")
        for i in range(2):
            for r in range(4): a(f"v_and_b32 v{28+4*i+r}, v{MSK+r}, v{16+i}")
        a(wait)
        for i in range(2):
            a(f"{MF} v[{PD}:{PD+3}], v[{28+4*i}:{31+4*i}], v[{W2+4*i}:{W2+3+4*i}], v[{PD}:{PD+3}]")
    a("s_cmp_eq_u32 s3, 0")
    a("s_cbranch_scc1 L_w0")
    a(f"s_cmp_eq_u32 s3, {AUX}")
    a("s_cbranch_scc1 L_w7")
    a("s_waitcnt lgkmcnt(0)")
    a("s_barrier")
    if lpos == 1:
        for l in late: a(l)
    if lpos < 2: mlp_part("s_waitcnt vmcnt(0)")
    a("s_branch L_b3b")
    a.label("L_w7")
    if lpos == 0: mlp_part("s_waitcnt vmcnt(0)")
    a("v_lshrrev_b32 v20, 3, v2"); a("v_lshlrev_b32 v20, 8, v20")
    a("v_add_u32 v21, v20, v3")
    a("v_and_b32 v22, 48, v3"); a("v_add_u32 v22, v20, v22")
    a("v_and_b32 v24, 48, v3"); a("v_add_u32 v24, 128, v24")
    a("v_cmp_gt_u32 vcc, 32, v2")
    a("v_cndmask_b32 v23, v24, v3, vcc")
    a("v_bfe_u32 v24, v2, 4, 1"); a("v_lshl_add_u32 v23, v24, 3, v23")
    a(f"s_mov_b32 s63, {SPIN_MAX}")
    a("s_waitcnt lgkmcnt(0)")
    a("s_barrier")
    tstamp(1)
    if lpos == 1:
        for l in late: a(l)
        mlp_part("s_waitcnt vmcnt(0)")
    a.label("L_chk1")
    a(f"buffer_load_dwordx4 v[128:131], v21, {WS_}, s55 offen sc1")
    a(f"buffer_load_dwordx4 v[132:135], v22, {WS_}, s55 offen offset:128 sc1")
    a(f"buffer_load_dwordx2 v[136:137], v20, {WS_}, s55 offen offset:192 sc1")
    a("s_waitcnt vmcnt(0)")
    a("v_max3_u32 v64, v128, v129, v130"); a("v_max3_u32 v64, v64, v131, v132"); a("v_max3_u32 v64, v64, v133, v134")
    a("v_max3_u32 v64, v64, v135, v136"); a("v_max_u32 v64, v64, v137")
    a("v_cmp_eq_u32 vcc, -1, v64")
    a("s_cmp_eq_u64 vcc, 0")
    a("s_cbranch_scc1 L_go1")
    a("s_sub_u32 s63, s63, 1"); a("s_cmp_lg_u32 s63, 0")
    a("s_cbranch_scc1 L_chk1")
    a.label("L_go1")
    tstamp(2)
    a("v_max_f32_dpp v64, v136, v136 row_ror:8 row_mask:0xf bank_mask:0xf")
    a("v_mov_b32 v65, v64"); a("v_permlane16_swap_b32 v64, v65"); a("v_max_f32 v64, v64, v65")
    a("v_mov_b32 v65, v64"); a("v_permlane32_swap_b32 v64, v65"); a("v_max_f32 v64, v64, v65")
    a("v_sub_f32 v64, v136, v64"); a("v_exp_f32 v64, v64")
    a("v_mul_f32 v66, v64, v137")
    for r in range(8): a(f"v_mul_f32 v{128+r}, v64, v{128+r}")
    a("v_add_f32_dpp v66, v66, v66 row_ror:8 row_mask:0xf bank_mask:0xf")
    for r in range(4): a(f"v_permlane32_swap_b32 v{128+r}, v{132+r}")
    a("v_mov_b32 v65, v66"); a("v_permlane16_swap_b32 v66, v65"); a("v_add_f32 v66, v66, v65")
    for r in range(4): a(f"v_add_f32 v{128+r}, v{128+r}, v{132+r}")
    a("v_mov_b32 v65, v66"); a("v_permlane32_swap_b32 v66, v65"); a("v_add_f32 v66, v66, v65")
    a("v_permlane16_swap_b32 v128, v130"); a("v_permlane16_swap_b32 v129, v131")
    a("v_rcp_f32 v66, v66")
    a("v_add_f32 v128, v128, v130"); a("v_add_f32 v129, v129, v131")
    a("v_add_f32_dpp v128, v128, v128 row_ror:8 row_mask:0xf bank_mask:0xf")
    a("v_add_f32_dpp v129, v129, v129 row_ror:8 row_mask:0xf bank_mask:0xf")
    a("v_mul_f32 v128, v128, v66"); a("v_mul_f32 v129, v129, v66")
    a("v_cvt_pk_bf16_f32 v128, v128, v128"); a("v_cvt_pk_bf16_f32 v129, v129, v129")
    a(f"ds_write_b64 v23, v[128:129] offset:{L_OB}")
    a("s_waitcnt lgkmcnt(0)")
    a.label("L_b3b")
    a("s_barrier")
    a("s_cmp_ge_u32 s65, 2048")
    a("s_cbranch_scc1 L_fin")
    if lpos == 2:
        for l in late: a(l)
        mlp_part("s_waitcnt vmcnt(0)")
    for k in range(3): a(f"ds_read_b64 v[{128+2*k}:{129+2*k}], v7 offset:{L_OB+8*k}")
    a("s_waitcnt lgkmcnt(0)")
    for i in range(6):
        for r in range(4): a(f"v_and_b32 v{64+4*i+r}, v{MSK+r}, v{128+i}")
        if i >= 1:
            a(f"{MF} v[{PD}:{PD+3}], v[{64+4*(i-1)}:{67+4*(i-1)}], v[{WO+4*(i-1)}:{WO+3+4*(i-1)}], v[{PD}:{PD+3}]")
    a(f"{MF} v[{PD}:{PD+3}], v[84:87], v[{WO+20}:{WO+23}], v[{PD}:{PD+3}]")
    for r in range(4): a(f"v_mov_b32 v{20+r}, v{PD+r}")
    for r in range(4): a(f"v_permlane32_swap_b32 v{PD+r}, v{20+r}")
    for r in range(4): a(f"v_add_f32_dpp v{24+r}, v{20+r}, v{PD+r} row_ror:8 row_mask:0xf bank_mask:0xf")
    for r in range(4): a(f"v_min_u32 v{24+r}, -2, v{24+r}")
    a("s_mov_b64 exec, 0x00ff00ff")
    a(f"buffer_store_dwordx4 v[24:27], v11, {WS_}, s58 offen sc1")
    a("s_mov_b64 exec, -1")
    tstamp(3)
    a("s_branch L_fin")
    a.label("L_w0")
    a("v_mov_b32 v65, 0")
    a("v_mul_u32_u24 v66, 43, v2"); a("v_lshrrev_b32 v66, 9, v66")
    a("v_mul_u32_u24 v67, 12, v66"); a("v_sub_u32 v67, v2, v67")
    a("v_lshlrev_b32 v66, 11, v66"); a("v_lshl_add_u32 v66, v67, 4, v66")
    a("v_subrev_u32 v67, 48, v2"); a("v_lshlrev_b32 v67, 11, v67"); a("v_add_u32 v67, 192, v67")
    a("v_cmp_gt_u32 vcc, 48, v2")
    a("v_cndmask_b32 v66, v67, v66, vcc")
    a("s_mov_b32 s62, 0"); a("s_mov_b32 s63, 0xffff0000")
    a("s_waitcnt lgkmcnt(0)")
    a("s_barrier")
    tstamp(1)
    for k in range(4): a(f"ds_read_b128 v[{20+4*k}:{23+4*k}], v65 offset:{L_ML+16*k}")
    for w in range(10): a(f"ds_read_b128 v[{148+4*w}:{151+4*w}], v6 offset:{L_OP+768*w}")
    a("s_waitcnt lgkmcnt(0)" if st == "tail" else "s_waitcnt lgkmcnt(9)")
    for w in range(10, 16): a(f"ds_read_b128 v[{148+4*w}:{151+4*w}], v6 offset:{L_OP+768*w}")
    a("v_max3_f32 v68, v20, v22, v24"); a("v_max3_f32 v68, v68, v26, v28")
    a("v_max3_f32 v68, v68, v30, v32"); a("v_max_f32 v68, v68, v34")
    for w in range(8): a(f"v_sub_f32 v{20+2*w}, v{20+2*w}, v68")
    for w in range(8): a(f"v_exp_f32 v{20+2*w}, v{20+2*w}")
    a("v_mul_f32 v69, v20, v21")
    for w in range(1, 8): a(f"v_fmac_f32 v69, v{20+2*w}, v{21+2*w}")
    a("s_waitcnt lgkmcnt(0)")
    for w in range(8):
        a(f"v_pk_add_f32 v[{148+8*w}:{149+8*w}], v[{148+8*w}:{149+8*w}], v[{152+8*w}:{153+8*w}]")
        a(f"v_pk_add_f32 v[{150+8*w}:{151+8*w}], v[{150+8*w}:{151+8*w}], v[{154+8*w}:{155+8*w}]")
    for r in range(4): a(f"v_mul_f32 v{72+r}, v20, v{148+r}")
    for w in range(1, 8):
        for r in range(4): a(f"v_fmac_f32 v{72+r}, v{20+2*w}, v{148+8*w+r}")
    a("v_cndmask_b32 v72, v72, v68, s[62:63]"); a("v_cndmask_b32 v73, v73, v69, s[62:63]")
    a("v_cndmask_b32 v74, v74, v68, s[62:63]"); a("v_cndmask_b32 v75, v75, v69, s[62:63]")
    for r in range(4): a(f"v_min_u32 v{72+r}, -2, v{72+r}")
    a("s_mov_b32 exec_lo, -1"); a("s_mov_b32 exec_hi, 0xfffff")
    a("s_cmp_eq_u32 s66, 2"); a("s_cbranch_scc1 L_h1L")
    a(f"buffer_store_dwordx4 v[72:75], v66, {WS_}, s56 offen sc1")
    a("s_mov_b64 exec, -1")
    a("s_branch L_b3b")
    a.label("L_h1L")
    a(f"buffer_store_dwordx4 v[72:75], v66, {WS_}, s56 offen")
    a("s_mov_b64 exec, -1")
    tstamp(2)
    a("s_branch L_b3b")
    a.label("L_fin")
    tstamp(5); tstamp(6); stamp(6)
    a("s_cmp_ge_u32 s2, 20")
    a("s_cbranch_scc1 L_done")
    a("v_lshrrev_b32 v15, 3, v0"); a("v_mul_u32_u24 v15, 2560, v15")
    a("v_add_u32 v15, v15, v3")
    a("s_lshl_b32 s62, s2, 7"); a("s_add_u32 s62, s62, %d" % MB2_OFF); a("s_add_u32 s61, s62, %d" % (64 * 2560))
    a("v_lshlrev_b32 v16, 2, v2"); a("s_lshl_b32 s60, s2, 6")
    a(f"buffer_load_dword v17, v16, {X_}, s60 offen")
    a(f"s_mov_b32 s63, {SPIN_MAX}")
    def p2(k):
        b = 72 + 8 * k
        a(f"buffer_load_dwordx4 v[{b}:{b+3}], v15, {WS_}, s62 offen sc1")
        a(f"buffer_load_dwordx4 v[{b+4}:{b+7}], v15, {WS_}, s61 offen sc1")
    for k in range(NP2):
        p2(k)
        if k < NP2 - 1: a(f"s_sleep {gap2}")
    a.label("L_poll2")
    for k in range(NP2):
        b = 72 + 8 * k
        a(f"s_waitcnt vmcnt({2*(NP2-1)})")
        a(f"v_max3_u32 v18, v{b}, v{b+1}, v{b+2}"); a(f"v_max3_u32 v18, v18, v{b+3}, v{b+4}"); a(f"v_max3_u32 v18, v18, v{b+5}, v{b+6}"); a(f"v_max_u32 v18, v18, v{b+7}")
        for r in range(4): a(f"v_add_f32 v{64+r}, v{b+r}, v{b+4+r}")
        a("v_cmp_eq_u32 vcc, -1, v18")
        a("s_cmp_eq_u64 vcc, 0")
        a("s_cbranch_scc1 L_go2")
        p2(k)
    a("s_sub_u32 s63, s63, 1"); a("s_cmp_lg_u32 s63, 0")
    a("s_cbranch_scc1 L_poll2")
    a.label("L_go2")
    tstamp(6)
    a("v_permlane32_swap_b32 v64, v66"); a("v_permlane32_swap_b32 v65, v67")
    a("v_add_f32 v64, v64, v66"); a("v_add_f32 v65, v65, v67")
    a("v_permlane16_swap_b32 v64, v65"); a("v_add_f32 v64, v64, v65")
    a("v_add_f32_dpp v64, v64, v64 row_ror:8 row_mask:0xf bank_mask:0xf")
    a("v_lshrrev_b32 v18, 4, v2"); a("v_lshlrev_b32 v18, 2, v18")
    a("s_lshl_b32 s62, s3, 7")
    a("v_add3_u32 v18, v18, v3, s62")
    a(f"ds_write_b32 v18, v64 offset:{L_FIN}")
    a("s_waitcnt lgkmcnt(0)")
    a("s_barrier")
    a("s_cmp_lg_u32 s3, 0")
    a("s_cbranch_scc1 L_done")
    a("s_mov_b64 exec, 0xffff")
    a("v_lshlrev_b32 v18, 3, v2")
    for w in range(8): a(f"ds_read_b64 v[{160+2*w}:{161+2*w}], v18 offset:{L_FIN+128*w}")
    unpack(17, 64, 65)
    a("s_waitcnt lgkmcnt(0)")
    for w in range(8):
        a(f"v_add_f32 v64, v64, v{160+2*w}"); a(f"v_add_f32 v65, v65, v{161+2*w}")
    a("v_cvt_pk_bf16_f32 v64, v64, v65")
    a(f"buffer_store_dword v64, v16, {OUT_}, s60 offen")
    a("s_mov_b64 exec, -1")
    a.label("L_done")
    if st: a("s_waitcnt vmcnt(0)" if False else "s_nop 0")
    if st == "wave":
        a("s_waitcnt lgkmcnt(0)")
        a("v_mov_b32 v64, s88"); a("v_mov_b32 v65, s89"); a("v_mov_b32 v66, s96"); a("v_mov_b32 v67, s97")
        a("s_lshl_b32 s63, s2, 7"); a("s_lshl_b32 s62, s3, 4"); a("s_add_u32 s63, s63, s62"); a(f"s_add_u32 s63, s63, {STAMP_OFF}")
        a("v_mov_b32 v15, 0"); a("s_mov_b64 exec, 1")
        a(f"buffer_store_dwordx4 v[64:67], v15, {WS_}, s63 offen")
    elif st:
        a("s_memrealtime s[86:87]")
        a("s_cmp_eq_u32 s3, 0"); a("s_cselect_b32 s62, 0, 1")
        a(f"s_cmp_eq_u32 s3, {AUX}"); a("s_cselect_b32 s63, 0, 1")
        a("s_and_b32 s63, s63, s62"); a("s_cmp_eq_u32 s63, 1"); a("s_cbranch_scc1 L_end")
        a("s_waitcnt lgkmcnt(0)")
        for i in range(7):
            a(f"v_mov_b32 v{64+2*i}, s{88+2*i}"); a(f"v_mov_b32 v{65+2*i}, s{89+2*i}")
        a("v_mov_b32 v78, s86"); a("v_mov_b32 v79, s87")
        a("s_lshl_b32 s63, s2, 7"); a("s_lshl_b32 s62, s62, 6"); a("s_add_u32 s63, s63, s62"); a(f"s_add_u32 s63, s63, {STAMP_OFF}")
        a("v_mov_b32 v15, 0"); a("s_mov_b64 exec, 1")
        for i in range(4): a(f"buffer_store_dwordx4 v[{64+4*i}:{67+4*i}], v15, {WS_}, s63 offen offset:{16*i}")
    a.label("L_end")
    a("s_endpgm")
    R('.section .rodata,"a"'); R(".p2align 6"); R(f".amdhsa_kernel {KN}")
    R("  .amdhsa_next_free_vgpr 256"); R("  .amdhsa_next_free_sgpr 102"); R("  .amdhsa_accum_offset 256")
    R("  .amdhsa_group_segment_fixed_size 0"); R("  .amdhsa_kernarg_size 96"); R("  .amdhsa_user_sgpr_count 2")
    R("  .amdhsa_user_sgpr_kernarg_segment_ptr 1"); R("  .amdhsa_system_sgpr_workgroup_id_x 1"); R(".end_amdhsa_kernel")
    open(fname, "w").write(a.text())

if __name__ == "__main__":
    gen("k12_a.s", NV=14, budget=1, wfirst=False, psleep=24, pre=6)
    gen("k12_b.s", NV=12, budget=1, wfirst=False, psleep=16, pre=4)
    gen("k12_c.s", NV=10, budget=1, wfirst=False, psleep=8, pre=2)
    gen("k12_d.s", NV=10, budget=1, wfirst=False, psleep=8, pre=2, fine=1)
    gen("k12_e.s", NV=12, budget=1, wfirst=False, psleep=16, pre=4, fine=1)
    gen("k12_f.s", NV=8, budget=1, wfirst=True, psleep=8, pre=2, fine=1)
```

```python
import sys
from asmlib import Asm
KN = "parallel_sum__sliding_block_cached__glu_gated_swiglu__decode_kernel"

MBX_OFF, MB2_OFF, QX_OFF, QMB_OFF = 0x80000, 0x100000, 0x200000, 0x60000
STAMP_OFF = 64 << 20
L_P1 = 0
L_QB = 2816
L_HB = L_QB + 384
L_FLAG = 3328
L_OB = 3392
L_ML = 3584
L_OP = 3712
L_FIN = 16256
LDS_SIZE = 17408
OOB = 0x40000000
LOG2E = 0x3fb8aa3b
SCALE = 0x3d93cd3a
SPIN_MAX = 1 << 16
AUX = 7
CLR = 6

K_, V_, WS_, WQ_, WO_, W1_, W3_, W2_, X_, OUT_, DBG_ = [f"s[{i}:{i+3}]" for i in range(8, 52, 4)]
DPP3 = ("quad_perm:[1,0,3,2]", "quad_perm:[2,3,0,1]", "row_half_mirror")
KB, VB = 40, 148
DACC, MSK, AOP, WO, W2, PD = 40, 52, 56, 92, 116, 124
MF = "v_mfma_f32_16x16x32_bf16"

class VM:
    def __init__(self, a):
        self.a = a; self.n = 0; self.done = 0
    def issue(self, s):
        self.a(s); self.n += 1; return self.n - 1
    def wait_id(self, i):
        if i < self.done: return
        self.a(f"s_waitcnt vmcnt({self.n - 1 - i})"); self.done = i + 1
    def throttle(self, T):
        if self.n - self.done > T - 1:
            self.a(f"s_waitcnt vmcnt({T-1})"); self.done = self.n - (T - 1)
    def set(self, n, d):
        self.n = n; self.done = d

def gen(fname, T=4, TL=None, NV=2, budget=2, prio=1, st=None, wfirst=True, abl='', tlb=0, psleep=2, pre=0, cpos=0, cpol='sc1', cnum=5, h1pol='sc1', pupol='sc1', qppol='sc1', xcpos=5, forcex=0, NP2=1, gap2=4, NP1=1, gap1=2, lpos=0, rot=3, fine=0, entries=None):
    TL = T if TL is None else TL
    a = Asm()
    R = a.raw
    R(f"; @launch grid=(256,1,1) block=(512,1,1) lds={LDS_SIZE}")
    R('.amdgcn_target "amdgcn-amd-amdhsa--gfx950"')
    R(".text"); R(f".globl {KN}"); R(".p2align 8"); R(f".type {KN},@function"); R(f"{KN}:")
    def stamp(i, kinds=("main", "wave")):
        if st in kinds: a(f"s_memrealtime s[{88+2*i}:{89+2*i}]")
    def tstamp(i): stamp(i, ("tail",))
    def unpack(src, dlo, dhi):
        a(f"v_lshlrev_b32 v{dlo}, 16, v{src}"); a(f"v_and_b32 v{dhi}, 0xffff0000, v{src}")
    def lohi(src, d):
        a(f"v_and_b32 v{d}, 0xffff, v{src}"); a(f"v_lshlrev_b32 v{d+1}, 16, v{src}")
        a(f"v_lshrrev_b32 v{d+2}, 16, v{src}"); a(f"v_and_b32 v{d+3}, 0xffff0000, v{src}")
    def exec_hi16():
        a("s_mov_b32 exec_lo, 0"); a("s_mov_b32 exec_hi, 0xffff0000")
    def exec_valid():
        a("s_mov_b32 exec_lo, 0x00ff00ff"); a("s_mov_b32 exec_hi, 0xff00ff00")
    def srd(base, ptr, size):
        a(f"s_mov_b32 s{base}, s{ptr}"); a(f"s_mov_b32 s{base+1}, s{ptr+1}")
        a(f"s_mov_b32 s{base+2}, {size}"); a(f"s_mov_b32 s{base+3}, 0x00020000")
    def masks(d, t0, t1):
        a(f"v_and_b32 v{t0}, 1, v2"); a(f"v_lshlrev_b32 v{t0}, 4, v{t0}")
        a(f"v_mov_b32 v{t1}, 0xffff"); a(f"v_lshlrev_b32 v{t1}, v{t0}, v{t1}")
        a(f"v_bfe_u32 v{t0}, v2, 1, 2")
        for r in range(4):
            a(f"v_cmp_eq_u32 vcc, {r}, v{t0}")
            a(f"v_cndmask_b32 v{d+r}, 0, v{t1}, vcc")
    vm = VM(a)
    a("s_cmp_ge_u32 s2, 256")
    a("s_cbranch_scc1 L_end")
    stamp(0, ("main", "wave", "tail"))
    a("s_load_dwordx16 s[52:67], s[0:1], 0")
    a("s_load_dwordx8 s[68:75], s[0:1], 64")
    a("v_lshrrev_b32 v15, 6, v0")
    a("v_and_b32 v2, 63, v0")
    a("v_readfirstlane_b32 s3, v15")
    a("s_and_b32 s4, s2, 31")
    a("s_lshr_b32 s5, s2, 5")
    a("s_lshr_b32 s6, s5, 1")
    a("s_and_b32 s7, s5, 1")
    a("v_lshrrev_b32 v15, 3, v2")
    a("v_and_b32 v3, 7, v2"); a("v_lshlrev_b32 v3, 4, v3")
    a("v_mul_u32_u24 v1, 384, v15"); a("v_add_u32 v1, v1, v3")
    a("v_lshlrev_b32 v6, 4, v2")
    a("s_mul_i32 s76, s4, 12582912"); a("s_mul_i32 s77, s5, %d" % (512 * 384))
    a("s_add_u32 s76, s76, s77"); a("s_add_u32 s76, s76, %d" % (28672 * 384))
    a(f"s_cmp_eq_u32 s3, {AUX}")
    a("s_cbranch_scc1 L_aux")

    SO = 78
    def kload(n, base=KB):
        i, j = divmod(n, 3); r = base + 4 * n
        return vm.issue(f"buffer_load_dwordx4 v[{r}:{r+3}], v1, {K_}, s{SO+i} offen offset:{j*128} nt")
    def vload(n, base=VB):
        i, j = divmod(n, 3); r = base + 4 * n
        return vm.issue(f"buffer_load_dwordx4 v[{r}:{r+3}], v1, {V_}, s{SO+i} offen offset:{j*128} nt")

    def setup_common():
        srd(16, 74, 1610612736); srd(24, 60, 7864320); srd(36, 68, 1966080); srd(44, 70, 1280); srd(48, 72, 256)
        srd(40, 52, 1280)
        a("s_mul_i32 s52, s4, 192"); a("s_mul_i32 s63, s6, 48"); a("s_add_u32 s52, s52, s63"); a("s_mul_i32 s52, s52, 1280")
        a("s_mul_i32 s63, s7, 640"); a("s_add_u32 s52, s52, s63")
        a("s_lshl_b32 s53, s4, 6"); a("s_lshl_b32 s62, s6, 4"); a("s_add_u32 s53, s53, s62"); a("s_mul_i32 s53, s53, 1280")
        a("s_add_u32 s53, s53, s63")
        a("s_cmp_lt_u32 s4, 24"); a("s_cselect_b32 s53, s53, %d" % OOB)
        a("s_sub_u32 s62, s3, 1"); a("s_cmp_lt_u32 s62, 4"); a("s_cselect_b32 s62, s62, 8"); a("s_cmp_eq_u32 s3, 7"); a("s_cselect_b32 s62, 4, s62")
        a("s_lshl_b32 s63, s62, 7"); a("s_cmp_lt_u32 s62, 5"); a("s_cselect_b32 s63, s63, %d" % OOB)
        a("s_add_u32 s52, s52, s63"); a("s_add_u32 s53, s53, s63"); a("s_add_u32 s64, s52, 5120")
        a("s_lshl_b32 s65, s62, 8")
        a("s_lshl_b32 s54, s4, 13"); a("s_add_u32 s54, s54, %d" % MBX_OFF)
        a("s_lshl_b32 s62, s6, 11"); a("s_add_u32 s55, s54, s62")
        a("s_lshl_b32 s62, s5, 8"); a("s_add_u32 s56, s54, s62")
        a("s_mul_i32 s57, s4, 10240"); a("s_add_u32 s57, s57, %d" % QX_OFF)
        a("s_lshl_b32 s58, s4, 2"); a("s_add_u32 s58, s58, s6"); a("s_mul_i32 s58, s58, 2560")
        a("s_mul_i32 s62, s7, 1280"); a("s_add_u32 s58, s58, s62"); a("s_add_u32 s58, s58, %d" % MB2_OFF); a("s_add_u32 s58, s58, s65")
        a("s_mul_i32 s59, s4, 10240"); a("s_mul_i32 s62, s5, 1280"); a("s_add_u32 s59, s59, s62"); a("s_add_u32 s59, s59, %d" % QX_OFF)
    def setup_proj():
        a("v_lshrrev_b32 v15, 3, v2")
        a("v_mul_u32_u24 v4, 7680, v15"); a("v_add_u32 v4, v4, v3")
        a("v_mul_u32_u24 v5, 2560, v15"); a("v_add_u32 v5, v5, v3")
        a("v_lshlrev_b32 v9, 2, v15"); a("s_lshl_b32 s87, s6, 5"); a("v_add_u32 v9, s87, v9")
        a("v_lshlrev_b32 v8, 4, v3")
        a("v_mul_u32_u24 v7, 24, v15")
        a("v_and_b32 v16, 16, v2")
        a("v_lshl_add_u32 v11, v3, 1, v16")
        a("v_lshrrev_b32 v15, 5, v2"); a("v_mul_u32_u24 v15, 768, v15")
        a("s_mul_i32 s87, s3, 1536")
        a("v_add3_u32 v14, v11, v15, s87")

    late = [f"buffer_load_dwordx4 v[{W2+4*i}:{W2+3+4*i}], v5, {W2_}, s53 offen offset:{1280*i} nt" for i in range(2)]
    late += [f"buffer_load_dwordx4 v[{WO+4*i}:{WO+3+4*i}], v4, {WO_}, {'s52' if i < 4 else 's64'} offen offset:{1280*(i%4)} nt" for i in range(6)]

    def read_q():
        for j in range(3):
            a(f"ds_read_b128 v[{20+4*j}:{23+4*j}], v3 offset:{L_QB+128*j}")
        a(f"ds_read_b32 v10, v9 offset:{L_HB}")
    def t_score(groups, sc, kb, first):
        def f():
            if first: a("s_waitcnt lgkmcnt(0)")
            for i in groups: a(f"v_mov_b32 v{sc[i]}, 0")
            for j in range(3):
                for r in range(4):
                    for i in groups:
                        a(f"v_dot2c_f32_bf16 v{sc[i]}, v{kb+12*i+4*j+r}, v{20+4*j+r}")
            for m in DPP3:
                for i in groups:
                    a(f"v_add_f32_dpp v{sc[i]}, v{sc[i]}, v{sc[i]} {m} row_mask:0xf bank_mask:0xf")
            s0 = sc[groups[0]]; s1 = sc[groups[-1]]
            for rnd in range(2):
                a(f"v_cvt_pk_bf16_f32 v15, v{s0}, v{s1}")
                a(f"v_lshlrev_b32 v{s0}, 16, v15")
                if s1 != s0: a(f"v_and_b32 v{s1}, 0xffff0000, v15")
                if rnd == 0:
                    for i in groups: a(f"v_mul_f32 v{sc[i]}, {SCALE:#x}, v{sc[i]}")
        return f
    def t_softmax(G, sc):
        def f1():
            a(f"v_mov_b32 v15, v{sc[0]}")
            rest = list(range(1, G))
            for k in range(0, len(rest), 2): a(f"v_max3_f32 v15, v15, v{sc[rest[k]]}, v{sc[rest[k+1]]}")
            a("v_max_f32_dpp v15, v15, v15 row_ror:8 row_mask:0xf bank_mask:0xf")
            for r in range(DACC, DACC + 12): a(f"v_mov_b32 v{r}, 0")
            a("v_mov_b32 v16, v15"); a("v_permlane16_swap_b32 v15, v16"); a("v_max_f32 v15, v15, v16")
            a("v_mov_b32 v16, v15"); a("v_permlane32_swap_b32 v15, v16"); a("v_max_f32 v15, v15, v16")
            a(f"v_mul_f32 v12, {LOG2E:#x}, v15")
            masks(MSK, 17, 18)
        def f2():
            a(f"s_mov_b32 s62, {LOG2E:#x}")
            for i in range(G): a(f"v_fma_f32 v{sc[i]}, v{sc[i]}, s62, -v12")
            for i in range(G): a(f"v_exp_f32 v{sc[i]}, v{sc[i]}")
            for i in range(G): a(f"v_cvt_pk_bf16_f32 v{sc[i]}, v{sc[i]}, v{sc[i]}")
        def f3():
            for i in range(G):
                for r in range(4): a(f"v_and_b32 v{AOP+4*i+r}, v{MSK+r}, v{sc[i]}")
        def f4():
            a(f"v_and_b32 v13, 0xffff0000, v{sc[0]}")
            for i in range(1, G):
                a(f"v_and_b32 v15, 0xffff0000, v{sc[i]}"); a("v_add_f32 v13, v13, v15")
            a("v_add_f32_dpp v13, v13, v13 row_ror:8 row_mask:0xf bank_mask:0xf")
            a("v_mov_b32 v16, v13"); a("v_permlane16_swap_b32 v13, v16"); a("v_add_f32 v13, v13, v16")
            a("v_mov_b32 v16, v13"); a("v_permlane32_swap_b32 v13, v16"); a("v_add_f32 v13, v13, v16")
            a("s_lshl_b32 s62, s3, 3"); a("v_mov_b32 v16, s62")
            a(f"ds_write_b64 v16, v[12:13] offset:{L_ML}")
        return [f1, f2, f3, f4]
    def t_pv(n, vb):
        def f():
            i, j = divmod(n, 3)
            d = DACC + 4 * j
            a(f"{MF} v[{d}:{d+3}], v[{AOP+4*i}:{AOP+3+4*i}], v[{vb+4*n}:{vb+3+4*n}], v[{d}:{d+3}]")
        return f

    if rot == 2:
        a("s_lshr_b32 s77, s2, 3"); a("s_add_u32 s77, s77, s3"); a("s_add_u32 s77, s77, s2")
    elif rot == 3:
        a("s_lshr_b32 s77, s2, 3"); a("s_add_u32 s77, s77, s2")
    else:
        a("s_mov_b32 s77, 0")
    a("s_mul_i32 s87, s77, 57"); a("s_lshr_b32 s87, s87, 9"); a("s_mul_i32 s87, s87, 9"); a("s_sub_u32 s77, s77, s87")
    a("s_mul_i32 s87, s3, 3072"); a("s_add_u32 s76, s76, s87")
    for i in range(9):
        a(f"s_add_u32 s{SO+i}, s77, {i}"); a(f"s_sub_u32 s87, s{SO+i}, 9"); a(f"s_cmp_ge_u32 s{SO+i}, 9")
        a(f"s_cselect_b32 s{SO+i}, s87, s{SO+i}"); a(f"s_mul_i32 s{SO+i}, s{SO+i}, {7*3072}"); a(f"s_add_u32 s{SO+i}, s{SO+i}, s76")
    if prio:
        a("s_cmp_lt_u32 s3, 4"); a("s_cbranch_scc1 L_noprio"); a(f"s_setprio {prio}"); a.label("L_noprio")
    setup_proj()
    a("s_waitcnt lgkmcnt(0)")
    srd(8, 54, 402653184); srd(12, 56, 402653184)
    setup_common()
    if tlb:
        a("s_cmp_lg_u32 s3, 5"); a("s_cbranch_scc1 L_notlb")
        a("s_mov_b64 exec, 1"); a("v_mov_b32 v20, 0")
        a("s_add_u32 s62, s76, %d" % (196608 - 5 * 3072 - 64))
        a(f"buffer_load_dword v21, v20, {V_}, s76 offen nt")
        a(f"buffer_load_dword v22, v20, {V_}, s62 offen nt")
        a(f"buffer_load_dword v23, v20, {K_}, s62 offen nt")
        a(f"buffer_load_dword v24, v20, {WO_}, s52 offen nt")
        a(f"buffer_load_dword v25, v20, {W2_}, s53 offen nt")
        a(f"buffer_load_dword v26, v20, {WS_}, s57 offen nt")
        a(f"buffer_load_dword v27, v20, {OUT_}, 0 offen nt")
        a("s_mov_b64 exec, -1")
        a.label("L_notlb")
    kid = {}
    if wfirst: a("s_barrier")
    for n in range(T): kid[n] = kload(n)
    if not wfirst: a("s_barrier")
    for n in range(T, 27):
        vm.throttle(T); kid[n] = kload(n)
    sc = [32 + i for i in range(8)] + [19]
    groups = ((0, 1), (2, 3), (4, 5), (6, 7), (8,)) if not fine else tuple((i,) for i in range(9))
    def continuation(nv, vid, bud):
        read_q()
        tasks = [(lambda g=g: kid[3 * g[-1] + 2], t_score(g, sc, KB, g[0] == 0), 4) for g in groups]
        tasks += [(lambda: -1, f, 4) for f in t_softmax(9, sc)]
        tasks += [(lambda n=n: vid.get(n, 10**9), t_pv(n, VB), 0.5) for n in range(27)]
        ndone = 0
        for n in range(nv, 35):
            if n >= 27:
                while ndone < len(groups) + 3:
                    t = tasks.pop(0)
                    if t[0]() >= 0: vm.wait_id(t[0]())
                    t[1](); ndone += 1
            if n < 27 + TL - 1: vm.throttle(TL)
            if n < 27: vid[n] = vload(n)
            elif lpos == 0: vm.issue(late[n - 27])
            b = bud * 4
            while b > 0 and tasks and tasks[0][0]() < vm.done:
                t = tasks.pop(0); t[1](); b -= t[2]; ndone += 1
        while tasks:
            req, f, c = tasks.pop(0)
            if req() >= 0: vm.wait_id(req())
            f()
        stamp(4)
        a("s_branch L_tail")
    ent = entries if entries else [NV]
    vid = {}
    saved = []
    a(f"v_mov_b32 v15, {L_FLAG}")
    for n in range(ent[-1]):
        if n + 1 in ent[:-1]: a("ds_read_b32 v16, v15")
        vm.throttle(T); vid[n] = vload(n)
        if n + 1 in ent[:-1]:
            a("s_waitcnt lgkmcnt(0)")
            a("v_readfirstlane_b32 s66, v16")
            a("s_cmp_lg_u32 s66, 0")
            a(f"s_cbranch_scc1 L_cont{n+1}")
            saved.append((n + 1, dict(vid), (vm.n, vm.done)))
    stamp(2)
    a(f"s_mov_b32 s63, {SPIN_MAX}")
    a.label("L_flag")
    a("ds_read_b32 v16, v15")
    a("s_waitcnt lgkmcnt(0)")
    a("v_readfirstlane_b32 s66, v16")
    a("s_cmp_lg_u32 s66, 0")
    a("s_cbranch_scc1 L_flagok")
    a("s_sleep 2")
    a("s_sub_u32 s63, s63, 1")
    a("s_cmp_lg_u32 s63, 0")
    a("s_cbranch_scc1 L_flag")
    a.label("L_flagok")
    stamp(3)
    def bud_for(nv): return budget if nv <= 16 else 2 * budget
    continuation(ent[-1], vid, bud_for(ent[-1]))
    for (nv, v, stt) in saved:
        a.label(f"L_cont{nv}")
        vm.set(*stt)
        stamp(2); stamp(3)
        continuation(nv, v, bud_for(nv))

    a.label("L_aux")
    vm.set(0, 0)
    a("s_setprio 2")
    a(f"v_mov_b32 v16, {L_FLAG}"); a("v_mov_b32 v17, 0")
    a("ds_write_b32 v16, v17")
    a("v_mul_u32_u24 v4, 122880, v15"); a("v_add_u32 v4, v4, v3")
    a("v_mul_u32_u24 v5, 30720, v15"); a("v_add_u32 v5, v5, v3")
    a("v_mul_u32_u24 v7, 20, v15")
    a(f"s_add_u32 s{SO}, s76, {63*3072}")
    a("s_mul_i32 s79, s5, 160")
    a("s_mul_i32 s80, s5, %d" % (80 * 12288)); a("s_mul_i32 s77, s4, 384"); a("s_add_u32 s80, s80, s77")
    a("s_mul_i32 s81, s5, %d" % (80 * 3072)); a("s_lshl_b32 s77, s4, 7"); a("s_add_u32 s81, s81, s77")
    a("s_cmp_lt_u32 s4, 24"); a("s_cselect_b32 s81, s81, %d" % OOB)
    a("s_lshl_b32 s82, s2, 9"); a("s_add_u32 s82, s82, %d" % QMB_OFF)
    a("v_lshlrev_b32 v14, 3, v2")
    a("s_lshl_b32 s83, s4, 13"); a("s_lshl_b32 s77, s5, 8"); a("s_add_u32 s83, s83, s77"); a("s_add_u32 s83, s83, %d" % MBX_OFF)
    a("v_lshrrev_b32 v12, 4, v2"); a("v_lshlrev_b32 v12, 11, v12"); a("v_and_b32 v13, 15, v2"); a("v_lshl_add_u32 v12, v13, 4, v12")
    a("s_lshl_b32 s84, s4, 2"); a("s_add_u32 s84, s84, s6"); a("s_mul_i32 s84, s84, 2560")
    a("s_mul_i32 s77, s7, 1280"); a("s_add_u32 s84, s84, s77"); a("s_add_u32 s84, s84, %d" % MB2_OFF)
    a("s_getreg_b32 s85, hwreg(HW_REG_XCC_ID)"); a("s_and_b32 s85, s85, 15")
    a("s_mul_i32 s77, s85, s85"); a("s_lshl_b32 s77, s77, 12"); a("s_lshl_b32 s85, s85, 4"); a("s_add_u32 s85, s85, s77"); a("s_add_u32 s85, s85, 1")
    masks(8, 16, 17)
    for r in range(52, 56): a(f"v_mov_b32 v{r}, -1")
    a("s_waitcnt lgkmcnt(0)")
    srd(16, 74, 1610612736); srd(48, 72, 256)
    def clears():
        if 'a' in abl: return
        vm.issue(f"buffer_store_dwordx2 v[52:53], v14, {WS_}, s82 offen {cpol}")
        if cnum < 2: return
        vm.issue(f"buffer_store_dwordx4 v[52:55], v12, {WS_}, s83 offen {cpol}")
        vm.issue(f"buffer_store_dwordx4 v[52:55], v6, {WS_}, s84 offen {cpol}")
        a("s_mov_b64 exec, 0xffff")
        vm.issue(f"buffer_store_dwordx4 v[52:55], v6, {WS_}, s84 offen offset:1024 {cpol}")
        a("s_mov_b64 exec, -1")
    if cpos == 0: clears()
    srd(40, 52, 1280); srd(20, 58, 7864320)
    ix0 = vm.issue(f"buffer_load_dwordx4 v[32:35], v6, {X_}, 0 offen")
    ix1 = vm.issue(f"buffer_load_dwordx4 v[36:39], v6, {X_}, 0 offen offset:1024")
    vm.issue(f"buffer_load_dwordx4 v[16:19], v7, {X_}, s79 offen")
    ixo = vm.issue(f"buffer_load_dword v15, v7, {X_}, s79 offen offset:16")
    srd(28, 64, 1966080); srd(32, 66, 1966080)
    iw = {}
    for i in range(10):
        b = 56 + 20 * i
        for j in range(3):
            vm.issue(f"buffer_load_dwordx4 v[{b+4*j}:{b+3+4*j}], v4, {WQ_}, s80 offen offset:{128*j} nt")
        vm.issue(f"buffer_load_dwordx4 v[{b+12}:{b+15}], v5, {W1_}, s81 offen nt")
        iw[i] = vm.issue(f"buffer_load_dwordx4 v[{b+16}:{b+19}], v5, {W3_}, s81 offen nt")
        if i < 9:
            a("s_add_u32 s80, s80, 12288"); a("s_add_u32 s81, s81, 3072")
    a("s_barrier")
    if cpos == 1: clears()
    srd(8, 54, 402653184); srd(12, 56, 402653184)
    setup_common()
    a("s_and_b32 s62, s4, 16"); a("s_add_u32 s62, s62, s4"); a("s_lshl_b32 s62, s62, 2"); a("v_mov_b32 v12, s62")
    a("v_mov_b32 v13, s85")
    vm.wait_id(ixo)
    for k in range(4): unpack(16 + k, 20 + 2 * k, 21 + 2 * k)
    unpack(15, 28, 29)
    for r in range(8): unpack(32 + r, 40 + 2 * r, 41 + 2 * r)
    def wave_sum(v, sdst):
        for m in DPP3 + ("row_mirror",):
            a(f"v_add_f32_dpp v{v}, v{v}, v{v} {m} row_mask:0xf bank_mask:0xf")
        for k in range(4): a(f"v_readlane_b32 s{sdst+k}, v{v}, {16*k}")
        a(f"v_mov_b32 v{v}, s{sdst}")
        for k in range(1, 4): a(f"v_add_f32 v{v}, s{sdst+k}, v{v}")
    a("v_add_f32 v15, v40, v41")
    for r in range(42, 56): a(f"v_add_f32 v15, v15, v{r}")
    wave_sum(15, 60)
    a("v_mul_f32 v15, 0x3acccccd, v15")
    a("v_mov_b32 v16, 0")
    for r in range(40, 48):
        a(f"v_sub_f32 v17, v{r}, v15"); a("v_fmac_f32 v16, v17, v17")
    a("s_mov_b64 exec, 0xffff")
    for r in range(48, 56):
        a(f"v_sub_f32 v17, v{r}, v15"); a("v_fmac_f32 v16, v17, v17")
    a("s_mov_b64 exec, -1")
    wave_sum(16, 60)
    a("v_mul_f32 v16, 0x3acccccd, v16")
    a("v_cvt_pk_bf16_f32 v17, v15, v16")
    a("v_lshlrev_b32 v15, 16, v17")
    a("v_and_b32 v16, 0xffff0000, v17")
    a("v_add_f32 v16, 0x3727c5ac, v16")
    a("v_cvt_pk_bf16_f32 v16, v16, v16")
    a("v_lshlrev_b32 v16, 16, v16")
    a("v_sqrt_f32 v16, v16")
    a("v_cvt_pk_bf16_f32 v16, v16, v16")
    a("v_lshlrev_b32 v16, 16, v16")
    a("v_rcp_f32 v17, v16")
    for i in range(10): a(f"v_sub_f32 v{20+i}, v{20+i}, v15")
    for i in range(0, 10, 2):
        a(f"v_cvt_pk_bf16_f32 v18, v{20+i}, v{21+i}"); unpack(18, 20 + i, 21 + i)
    for i in range(10):
        a(f"v_mul_f32 v18, v{20+i}, v17")
        a(f"v_fma_f32 v19, -v18, v16, v{20+i}")
        a(f"v_fma_f32 v{20+i}, v19, v17, v18")
    for i in range(10): a(f"v_cvt_pk_bf16_f32 v{20+i}, v{20+i}, v{20+i}")
    for r in range(32, 52): a(f"v_mov_b32 v{r}, 0")
    a("v_lshrrev_b32 v15, 5, v2"); a("v_mul_u32_u24 v15, 1280, v15")
    a("v_and_b32 v16, 16, v2"); a("v_lshl_add_u32 v16, v3, 1, v16"); a("v_add_u32 v15, v15, v16")
    a("v_lshlrev_b32 v14, 3, v2")
    for i in range(10):
        for r in range(4): a(f"v_and_b32 v{52+r}, v{8+r}, v{20+i}")
        vm.wait_id(iw[i])
        b = 56 + 20 * i
        for c in range(5):
            a(f"{MF} v[{32+4*c}:{35+4*c}], v[52:55], v[{b+4*c}:{b+3+4*c}], v[{32+4*c}:{35+4*c}]")
    stamp(1)
    exec_valid()
    for c in range(5): a(f"ds_write_b128 v15, v[{32+4*c}:{35+4*c}] offset:{L_P1+256*c}")
    a("s_mov_b64 exec, -1")
    a("s_waitcnt lgkmcnt(0)")
    a(f"ds_read_b128 v[64:67], v6 offset:{L_P1}")
    a(f"ds_read_b128 v[68:71], v6 offset:{L_P1+1280}")
    a(f"ds_read_b128 v[72:75], v6 offset:{L_P1+256}")
    a(f"ds_read_b128 v[76:79], v6 offset:{L_P1+1280+256}")
    a("s_waitcnt lgkmcnt(0)")
    for r in range(4):
        a(f"v_add_f32 v{64+r}, v{64+r}, v{68+r}"); a(f"v_add_f32 v{72+r}, v{72+r}, v{76+r}")
    for r in range(4):
        a(f"v_min_u32 v{64+r}, -2, v{64+r}"); a(f"v_min_u32 v{72+r}, -2, v{72+r}")
    if 'b' in abl: a("s_branch L_atake")
    a(f"buffer_store_dwordx4 v[64:67], v6, {WS_}, s59 offen sc1")
    exec_hi16()
    a(f"buffer_store_dwordx4 v[72:75], v6, {WS_}, s59 offen offset:256 sc1")
    a("s_mov_b64 exec, -1")
    a("s_mov_b64 exec, 1")
    a("s_waitcnt vmcnt(0)")
    if 'n' in abl: pass
    elif 'r' in abl: a(f"buffer_atomic_add v13, v12, {DBG_}, 0 offen")
    elif 'w' in abl: a(f"buffer_atomic_add v13, v12, {WS_}, s82 offen sc0")
    else: a(f"buffer_atomic_add v13, v12, {DBG_}, 0 offen sc0")
    a("s_waitcnt vmcnt(0)")
    a("v_readfirstlane_b32 s62, v13")
    a("s_mov_b64 exec, -1")
    stamp(5)
    if 'c' in abl: a("s_branch L_atake")
    if st == "main":
        a("s_and_b32 s92, s62, 7"); a("s_mov_b32 s93, 0")
    a("s_mul_i32 s63, s85, 7"); a("s_cmp_eq_u32 s62, s63"); a("s_cselect_b32 s66, 2, 1")
    if forcex: a("s_mov_b32 s66, 1")
    a("s_add_u32 s67, s6, 1"); a("s_and_b32 s67, s67, 3"); a("s_lshl_b32 s67, s67, 2"); a("s_add_u32 s67, s67, 48")
    a("s_and_b32 s62, s62, 7"); a("s_cmp_eq_u32 s62, 7")
    a("s_cbranch_scc0 L_await")
    a("s_add_u32 s60, s57, 3840"); a("s_add_u32 s61, s57, 7680")
    if 'g' not in abl:
        for s in range(8):
            so = ("s57", "s60", "s61")[s // 3]
            a(f"buffer_load_dwordx4 v[{96+4*s}:{99+4*s}], v6, {WS_}, {so} offen offset:{(s%3)*1280} sc1")
        exec_hi16()
        for s in range(8):
            so = ("s57", "s60", "s61")[s // 3]
            a(f"buffer_load_dwordx4 v[{160+4*s}:{163+4*s}], v6, {WS_}, {so} offen offset:{(s%3)*1280+256} sc1")
        a("s_mov_b64 exec, -1")
        a("s_waitcnt vmcnt(0)")
    a.label("L_agot")
    for s in range(1, 8):
        for r in range(4):
            a(f"v_add_f32 v{96+r}, v{96+r}, v{96+4*s+r}")
            a(f"v_add_f32 v{160+r}, v{160+r}, v{160+4*s+r}")
    a("v_cvt_pk_bf16_f32 v20, v96, v97"); a("v_cvt_pk_bf16_f32 v21, v98, v99")
    a("v_cvt_pk_bf16_f32 v22, v160, v161"); a("v_cvt_pk_bf16_f32 v23, v162, v163")
    exec_hi16()
    unpack(20, 64, 65); unpack(21, 66, 67); unpack(22, 160, 161); unpack(23, 162, 163)
    for r in range(4): a(f"v_mul_f32 v{68+r}, {LOG2E|0x80000000:#x}, v{64+r}")
    for r in range(4): a(f"v_exp_f32 v{68+r}, v{68+r}")
    for r in range(4): a(f"v_add_f32 v{68+r}, 1.0, v{68+r}")
    for r in range(4): a(f"v_rcp_f32 v{72+r}, v{68+r}")
    for r in range(4): a(f"v_mul_f32 v{76+r}, v{64+r}, v{72+r}")
    a("v_cvt_pk_bf16_f32 v20, v76, v77"); a("v_cvt_pk_bf16_f32 v21, v78, v79")
    unpack(20, 64, 65); unpack(21, 66, 67)
    for r in range(4): a(f"v_mul_f32 v{64+r}, v{64+r}, v{160+r}")
    a("v_cvt_pk_bf16_f32 v20, v64, v65"); a("v_cvt_pk_bf16_f32 v21, v66, v67")
    a("s_mov_b64 exec, -1")
    a("v_min_u32 v20, -2, v20"); a("v_min_u32 v21, -2, v21")
    a("s_lshl_b32 s62, s4, 9"); a("s_add_u32 s62, s62, %d" % QMB_OFF)
    for rq in range(4):
        a(f"v_mov_b32 v{24+2*rq}, v20"); a(f"v_mov_b32 v{25+2*rq}, v21")
        a(f"v_writelane_b32 v{24+2*rq}, s66, {48 + 4 * ((rq + 1) & 3)}")
    a("s_cmp_eq_u32 s66, 2"); a("s_cbranch_scc1 L_pushL")
    for pol in ("sc1", ""):
        for s in range(8):
            a(f"buffer_store_dwordx2 v[{24+2*(s>>1)}:{25+2*(s>>1)}], v14, {WS_}, s62 offen {pol}")
            if s < 7: a("s_add_u32 s62, s62, %d" % (32 * 512))
        a("s_branch L_atake")
        if pol: a.label("L_pushL")
    a.label("L_await")
    if 'q' in abl: a("s_branch L_atake")
    for _ in range(pre): a("s_sleep 16")
    a(f"s_mov_b32 s63, {SPIN_MAX}")
    a.label("L_aspin")
    a(f"buffer_load_dwordx2 v[20:21], v14, {WS_}, s82 offen sc1")
    a("s_waitcnt vmcnt(0)")
    a("v_max_u32 v22, v20, v21")
    a("v_cmp_eq_u32 vcc, -1, v22")
    a("s_cmp_eq_u64 vcc, 0")
    a("s_cbranch_scc1 L_agotq")
    a("s_sub_u32 s63, s63, 1"); a("s_cmp_eq_u32 s63, 0")
    a("s_cbranch_scc1 L_agotq")
    a(f"s_sleep {psleep}")
    a("s_branch L_aspin")
    a.label("L_agotq")
    a("v_readlane_b32 s66, v20, s67")
    a("s_cmp_eq_u32 s66, 2"); a("s_cselect_b32 s66, 2, 1")
    a.label("L_atake")
    a(f"ds_write_b64 v14, v[20:21] offset:{L_QB}")
    a(f"v_mov_b32 v22, {L_FLAG}"); a("v_mov_b32 v23, s66")
    a("s_waitcnt lgkmcnt(0)")
    a("ds_write_b32 v22, v23")
    stamp(3)
    a("s_setprio 0")
    vm.set(0, 0)
    AK, AV = 160, 148
    kida = [kload(n, AK) for n in range(3)]
    vida = [vload(n, AV) for n in range(3)]
    setup_proj()
    if lpos == 0:
        for l in late: vm.issue(l)
    read_q()
    vm.wait_id(kida[2])
    t_score((0,), [32], AK, True)()
    for f in t_softmax(1, [32]): f()
    vm.wait_id(vida[2])
    for n in range(3): t_pv(n, AV)()
    if 'f' in abl: a("s_branch L_acntok")
    a("s_cmp_ge_u32 s2, 20"); a("s_cbranch_scc1 L_acntok")
    a("v_and_b32 v15, 15, v2"); a("v_and_b32 v16, 16, v2"); a("v_lshl_add_u32 v15, v16, 1, v15"); a("v_lshlrev_b32 v15, 2, v15")
    a(f"s_mov_b32 s63, {SPIN_MAX}")
    a.label("L_cnt")
    a(f"buffer_load_dword v16, v15, {DBG_}, 0 offen sc1")
    a("s_waitcnt vmcnt(0)")
    a("v_and_b32 v16, 15, v16")
    a("v_cmp_gt_u32 vcc, 8, v16")
    a("s_cmp_eq_u64 vcc, 0")
    a("s_cbranch_scc1 L_acntok")
    a("s_sub_u32 s63, s63, 1"); a("s_cmp_eq_u32 s63, 0")
    a("s_cbranch_scc1 L_acntok")
    a("s_sleep 16")
    a("s_branch L_cnt")
    a.label("L_acntok")
    stamp(4)

    a.label("L_tail")
    if 't' in abl:
        a("s_waitcnt vmcnt(0)"); a("s_branch L_done")
    exec_valid()
    for j in range(3): a(f"ds_write_b128 v14, v[{DACC+4*j}:{DACC+3+4*j}] offset:{L_OP+256*j}")
    a("s_mov_b64 exec, -1")
    def mlp_part(wait):
        a("v_and_b32 v16, 0xffff, v10"); a("v_lshl_or_b32 v16, v16, 16, v16")
        a("v_lshrrev_b32 v17, 16, v10"); a("v_lshl_or_b32 v17, v17, 16, v17")
        for r in range(4): a(f"v_mov_b32 v{PD+r}, 0")
        for i in range(2):
            for r in range(4): a(f"v_and_b32 v{28+4*i+r}, v{MSK+r}, v{16+i}")
        a(wait)
        for i in range(2):
            a(f"{MF} v[{PD}:{PD+3}], v[{28+4*i}:{31+4*i}], v[{W2+4*i}:{W2+3+4*i}], v[{PD}:{PD+3}]")
    a("s_cmp_eq_u32 s3, 0")
    a("s_cbranch_scc1 L_w0")
    a(f"s_cmp_eq_u32 s3, {AUX}")
    a("s_cbranch_scc1 L_w7")
    a("s_waitcnt lgkmcnt(0)")
    a("s_barrier")
    if lpos == 1:
        for l in late: a(l)
    if lpos < 2: mlp_part("s_waitcnt vmcnt(0)")
    a("s_branch L_b3b")
    a.label("L_w7")
    if lpos == 0: mlp_part("s_waitcnt vmcnt(0)")
    a("v_lshrrev_b32 v20, 3, v2"); a("v_lshlrev_b32 v20, 8, v20")
    a("v_add_u32 v21, v20, v3")
    a("v_and_b32 v22, 48, v3"); a("v_add_u32 v22, v20, v22")
    a("v_and_b32 v24, 48, v3"); a("v_add_u32 v24, 128, v24")
    a("v_cmp_gt_u32 vcc, 32, v2")
    a("v_cndmask_b32 v23, v24, v3, vcc")
    a("v_bfe_u32 v24, v2, 4, 1"); a("v_lshl_add_u32 v23, v24, 3, v23")
    a(f"s_mov_b32 s63, {SPIN_MAX}")
    a("s_waitcnt lgkmcnt(0)")
    a("s_barrier")
    tstamp(1)
    if lpos == 1:
        for l in late: a(l)
        mlp_part("s_waitcnt vmcnt(0)")
    a.label("L_chk1")
    a(f"buffer_load_dwordx4 v[128:131], v21, {WS_}, s55 offen sc1")
    a(f"buffer_load_dwordx4 v[132:135], v22, {WS_}, s55 offen offset:128 sc1")
    a(f"buffer_load_dwordx2 v[136:137], v20, {WS_}, s55 offen offset:192 sc1")
    a("s_waitcnt vmcnt(0)")
    a("v_max3_u32 v64, v128, v129, v130"); a("v_max3_u32 v64, v64, v131, v132"); a("v_max3_u32 v64, v64, v133, v134")
    a("v_max3_u32 v64, v64, v135, v136"); a("v_max_u32 v64, v64, v137")
    a("v_cmp_eq_u32 vcc, -1, v64")
    a("s_cmp_eq_u64 vcc, 0")
    a("s_cbranch_scc1 L_go1")
    a("s_sub_u32 s63, s63, 1"); a("s_cmp_lg_u32 s63, 0")
    a("s_cbranch_scc1 L_chk1")
    a.label("L_go1")
    tstamp(2)
    a("v_max_f32_dpp v64, v136, v136 row_ror:8 row_mask:0xf bank_mask:0xf")
    a("v_mov_b32 v65, v64"); a("v_permlane16_swap_b32 v64, v65"); a("v_max_f32 v64, v64, v65")
    a("v_mov_b32 v65, v64"); a("v_permlane32_swap_b32 v64, v65"); a("v_max_f32 v64, v64, v65")
    a("v_sub_f32 v64, v136, v64"); a("v_exp_f32 v64, v64")
    a("v_mul_f32 v66, v64, v137")
    for r in range(8): a(f"v_mul_f32 v{128+r}, v64, v{128+r}")
    a("v_add_f32_dpp v66, v66, v66 row_ror:8 row_mask:0xf bank_mask:0xf")
    for r in range(4): a(f"v_permlane32_swap_b32 v{128+r}, v{132+r}")
    a("v_mov_b32 v65, v66"); a("v_permlane16_swap_b32 v66, v65"); a("v_add_f32 v66, v66, v65")
    for r in range(4): a(f"v_add_f32 v{128+r}, v{128+r}, v{132+r}")
    a("v_mov_b32 v65, v66"); a("v_permlane32_swap_b32 v66, v65"); a("v_add_f32 v66, v66, v65")
    a("v_permlane16_swap_b32 v128, v130"); a("v_permlane16_swap_b32 v129, v131")
    a("v_rcp_f32 v66, v66")
    a("v_add_f32 v128, v128, v130"); a("v_add_f32 v129, v129, v131")
    a("v_add_f32_dpp v128, v128, v128 row_ror:8 row_mask:0xf bank_mask:0xf")
    a("v_add_f32_dpp v129, v129, v129 row_ror:8 row_mask:0xf bank_mask:0xf")
    a("v_mul_f32 v128, v128, v66"); a("v_mul_f32 v129, v129, v66")
    a("v_cvt_pk_bf16_f32 v128, v128, v128"); a("v_cvt_pk_bf16_f32 v129, v129, v129")
    a(f"ds_write_b64 v23, v[128:129] offset:{L_OB}")
    a("s_waitcnt lgkmcnt(0)")
    a.label("L_b3b")
    a("s_barrier")
    a("s_cmp_ge_u32 s65, 2048")
    a("s_cbranch_scc1 L_fin")
    if lpos == 2:
        for l in late: a(l)
        mlp_part("s_waitcnt vmcnt(0)")
    for k in range(3): a(f"ds_read_b64 v[{128+2*k}:{129+2*k}], v7 offset:{L_OB+8*k}")
    a("s_waitcnt lgkmcnt(0)")
    for i in range(6):
        for r in range(4): a(f"v_and_b32 v{64+4*i+r}, v{MSK+r}, v{128+i}")
        if i >= 1:
            a(f"{MF} v[{PD}:{PD+3}], v[{64+4*(i-1)}:{67+4*(i-1)}], v[{WO+4*(i-1)}:{WO+3+4*(i-1)}], v[{PD}:{PD+3}]")
    a(f"{MF} v[{PD}:{PD+3}], v[84:87], v[{WO+20}:{WO+23}], v[{PD}:{PD+3}]")
    for r in range(4): a(f"v_mov_b32 v{20+r}, v{PD+r}")
    for r in range(4): a(f"v_permlane32_swap_b32 v{PD+r}, v{20+r}")
    for r in range(4): a(f"v_add_f32_dpp v{24+r}, v{20+r}, v{PD+r} row_ror:8 row_mask:0xf bank_mask:0xf")
    for r in range(4): a(f"v_min_u32 v{24+r}, -2, v{24+r}")
    a("s_mov_b64 exec, 0x00ff00ff")
    a(f"buffer_store_dwordx4 v[24:27], v11, {WS_}, s58 offen sc1")
    a("s_mov_b64 exec, -1")
    tstamp(3)
    a("s_branch L_fin")
    a.label("L_w0")
    a("v_mov_b32 v65, 0")
    a("v_mul_u32_u24 v66, 43, v2"); a("v_lshrrev_b32 v66, 9, v66")
    a("v_mul_u32_u24 v67, 12, v66"); a("v_sub_u32 v67, v2, v67")
    a("v_lshlrev_b32 v66, 11, v66"); a("v_lshl_add_u32 v66, v67, 4, v66")
    a("v_subrev_u32 v67, 48, v2"); a("v_lshlrev_b32 v67, 11, v67"); a("v_add_u32 v67, 192, v67")
    a("v_cmp_gt_u32 vcc, 48, v2")
    a("v_cndmask_b32 v66, v67, v66, vcc")
    a("s_mov_b32 s62, 0"); a("s_mov_b32 s63, 0xffff0000")
    a("s_waitcnt lgkmcnt(0)")
    a("s_barrier")
    tstamp(1)
    for k in range(4): a(f"ds_read_b128 v[{20+4*k}:{23+4*k}], v65 offset:{L_ML+16*k}")
    for w in range(10): a(f"ds_read_b128 v[{148+4*w}:{151+4*w}], v6 offset:{L_OP+768*w}")
    a("s_waitcnt lgkmcnt(0)" if st == "tail" else "s_waitcnt lgkmcnt(9)")
    for w in range(10, 16): a(f"ds_read_b128 v[{148+4*w}:{151+4*w}], v6 offset:{L_OP+768*w}")
    a("v_max3_f32 v68, v20, v22, v24"); a("v_max3_f32 v68, v68, v26, v28")
    a("v_max3_f32 v68, v68, v30, v32"); a("v_max_f32 v68, v68, v34")
    for w in range(8): a(f"v_sub_f32 v{20+2*w}, v{20+2*w}, v68")
    for w in range(8): a(f"v_exp_f32 v{20+2*w}, v{20+2*w}")
    a("v_mul_f32 v69, v20, v21")
    for w in range(1, 8): a(f"v_fmac_f32 v69, v{20+2*w}, v{21+2*w}")
    a("s_waitcnt lgkmcnt(0)")
    for w in range(8):
        a(f"v_pk_add_f32 v[{148+8*w}:{149+8*w}], v[{148+8*w}:{149+8*w}], v[{152+8*w}:{153+8*w}]")
        a(f"v_pk_add_f32 v[{150+8*w}:{151+8*w}], v[{150+8*w}:{151+8*w}], v[{154+8*w}:{155+8*w}]")
    for r in range(4): a(f"v_mul_f32 v{72+r}, v20, v{148+r}")
    for w in range(1, 8):
        for r in range(4): a(f"v_fmac_f32 v{72+r}, v{20+2*w}, v{148+8*w+r}")
    a("v_cndmask_b32 v72, v72, v68, s[62:63]"); a("v_cndmask_b32 v73, v73, v69, s[62:63]")
    a("v_cndmask_b32 v74, v74, v68, s[62:63]"); a("v_cndmask_b32 v75, v75, v69, s[62:63]")
    for r in range(4): a(f"v_min_u32 v{72+r}, -2, v{72+r}")
    a("s_mov_b32 exec_lo, -1"); a("s_mov_b32 exec_hi, 0xfffff")
    a("s_cmp_eq_u32 s66, 2"); a("s_cbranch_scc1 L_h1L")
    a(f"buffer_store_dwordx4 v[72:75], v66, {WS_}, s56 offen sc1")
    a("s_mov_b64 exec, -1")
    a("s_branch L_b3b")
    a.label("L_h1L")
    a(f"buffer_store_dwordx4 v[72:75], v66, {WS_}, s56 offen")
    a("s_mov_b64 exec, -1")
    tstamp(2)
    a("s_branch L_b3b")
    a.label("L_fin")
    tstamp(5); tstamp(6); stamp(6)
    a("s_cmp_ge_u32 s2, 20")
    a("s_cbranch_scc1 L_done")
    a("v_lshrrev_b32 v15, 3, v0"); a("v_mul_u32_u24 v15, 2560, v15")
    a("v_add_u32 v15, v15, v3")
    a("s_lshl_b32 s62, s2, 7"); a("s_add_u32 s62, s62, %d" % MB2_OFF); a("s_add_u32 s61, s62, %d" % (64 * 2560))
    a("v_lshlrev_b32 v16, 2, v2"); a("s_lshl_b32 s60, s2, 6")
    a(f"buffer_load_dword v17, v16, {X_}, s60 offen")
    a(f"s_mov_b32 s63, {SPIN_MAX}")
    def p2(k):
        b = 72 + 8 * k
        a(f"buffer_load_dwordx4 v[{b}:{b+3}], v15, {WS_}, s62 offen sc1")
        a(f"buffer_load_dwordx4 v[{b+4}:{b+7}], v15, {WS_}, s61 offen sc1")
    for k in range(NP2):
        p2(k)
        if k < NP2 - 1: a(f"s_sleep {gap2}")
    a.label("L_poll2")
    for k in range(NP2):
        b = 72 + 8 * k
        a(f"s_waitcnt vmcnt({2*(NP2-1)})")
        a(f"v_max3_u32 v18, v{b}, v{b+1}, v{b+2}"); a(f"v_max3_u32 v18, v18, v{b+3}, v{b+4}"); a(f"v_max3_u32 v18, v18, v{b+5}, v{b+6}"); a(f"v_max_u32 v18, v18, v{b+7}")
        for r in range(4): a(f"v_add_f32 v{64+r}, v{b+r}, v{b+4+r}")
        a("v_cmp_eq_u32 vcc, -1, v18")
        a("s_cmp_eq_u64 vcc, 0")
        a("s_cbranch_scc1 L_go2")
        p2(k)
    a("s_sub_u32 s63, s63, 1"); a("s_cmp_lg_u32 s63, 0")
    a("s_cbranch_scc1 L_poll2")
    a.label("L_go2")
    tstamp(6)
    a("v_permlane32_swap_b32 v64, v66"); a("v_permlane32_swap_b32 v65, v67")
    a("v_add_f32 v64, v64, v66"); a("v_add_f32 v65, v65, v67")
    a("v_permlane16_swap_b32 v64, v65"); a("v_add_f32 v64, v64, v65")
    a("v_add_f32_dpp v64, v64, v64 row_ror:8 row_mask:0xf bank_mask:0xf")
    a("v_lshrrev_b32 v18, 4, v2"); a("v_lshlrev_b32 v18, 2, v18")
    a("s_lshl_b32 s62, s3, 7")
    a("v_add3_u32 v18, v18, v3, s62")
    a(f"ds_write_b32 v18, v64 offset:{L_FIN}")
    a("s_waitcnt lgkmcnt(0)")
    a("s_barrier")
    a("s_cmp_lg_u32 s3, 0")
    a("s_cbranch_scc1 L_done")
    a("s_mov_b64 exec, 0xffff")
    a("v_lshlrev_b32 v18, 3, v2")
    for w in range(8): a(f"ds_read_b64 v[{160+2*w}:{161+2*w}], v18 offset:{L_FIN+128*w}")
    unpack(17, 64, 65)
    a("s_waitcnt lgkmcnt(0)")
    for w in range(8):
        a(f"v_add_f32 v64, v64, v{160+2*w}"); a(f"v_add_f32 v65, v65, v{161+2*w}")
    a("v_cvt_pk_bf16_f32 v64, v64, v65")
    a(f"buffer_store_dword v64, v16, {OUT_}, s60 offen")
    a("s_mov_b64 exec, -1")
    a.label("L_done")
    if st: a("s_waitcnt vmcnt(0)" if False else "s_nop 0")
    if st == "wave":
        a("s_waitcnt lgkmcnt(0)")
        a("v_mov_b32 v64, s88"); a("v_mov_b32 v65, s89"); a("v_mov_b32 v66, s96"); a("v_mov_b32 v67, s97")
        a("s_lshl_b32 s63, s2, 7"); a("s_lshl_b32 s62, s3, 4"); a("s_add_u32 s63, s63, s62"); a(f"s_add_u32 s63, s63, {STAMP_OFF}")
        a("v_mov_b32 v15, 0"); a("s_mov_b64 exec, 1")
        a(f"buffer_store_dwordx4 v[64:67], v15, {WS_}, s63 offen")
    elif st:
        a("s_memrealtime s[86:87]")
        a("s_cmp_eq_u32 s3, 0"); a("s_cselect_b32 s62, 0, 1")
        a(f"s_cmp_eq_u32 s3, {AUX}"); a("s_cselect_b32 s63, 0, 1")
        a("s_and_b32 s63, s63, s62"); a("s_cmp_eq_u32 s63, 1"); a("s_cbranch_scc1 L_end")
        a("s_waitcnt lgkmcnt(0)")
        for i in range(7):
            a(f"v_mov_b32 v{64+2*i}, s{88+2*i}"); a(f"v_mov_b32 v{65+2*i}, s{89+2*i}")
        a("v_mov_b32 v78, s86"); a("v_mov_b32 v79, s87")
        a("s_lshl_b32 s63, s2, 7"); a("s_lshl_b32 s62, s62, 6"); a("s_add_u32 s63, s63, s62"); a(f"s_add_u32 s63, s63, {STAMP_OFF}")
        a("v_mov_b32 v15, 0"); a("s_mov_b64 exec, 1")
        for i in range(4): a(f"buffer_store_dwordx4 v[{64+4*i}:{67+4*i}], v15, {WS_}, s63 offen offset:{16*i}")
    a.label("L_end")
    a("s_endpgm")
    R('.section .rodata,"a"'); R(".p2align 6"); R(f".amdhsa_kernel {KN}")
    R("  .amdhsa_next_free_vgpr 256"); R("  .amdhsa_next_free_sgpr 102"); R("  .amdhsa_accum_offset 256")
    R("  .amdhsa_group_segment_fixed_size 0"); R("  .amdhsa_kernarg_size 96"); R("  .amdhsa_user_sgpr_count 2")
    R("  .amdhsa_user_sgpr_kernarg_segment_ptr 1"); R("  .amdhsa_system_sgpr_workgroup_id_x 1"); R(".end_amdhsa_kernel")
    open(fname, "w").write(a.text())

if __name__ == "__main__":
    E = [4, 8, 11, 14, 17, 20, 24, 27]
    gen("k13_a.s", NV=14, budget=1, wfirst=False, psleep=24, pre=6)
    gen("k13_b.s", entries=E, budget=1, wfirst=False, psleep=24, pre=6)
    gen("k13_c.s", entries=E, budget=1, wfirst=False, psleep=8, pre=2)
    gen("k13_d.s", entries=E, budget=1, wfirst=True, psleep=8, pre=2)
    gen("k13_e.s", entries=E, budget=1, wfirst=False, psleep=16, pre=4)
    gen("k13_b_st.s", st="main", entries=E, budget=1, wfirst=False, psleep=24, pre=6)
```

```python
import sys
from asmlib import Asm
KN = "parallel_sum__sliding_block_cached__glu_gated_swiglu__decode_kernel"

MBX_OFF, MB2_OFF, QX_OFF, QMB_OFF = 0x80000, 0x100000, 0x200000, 0x60000
STAMP_OFF = 64 << 20
L_P1 = 0
L_QB = 2816
L_HB = L_QB + 384
L_FLAG = 3328
L_OB = 3392
L_ML = 3584
L_OP = 3712
L_FIN = 16256
LDS_SIZE = 17408
OOB = 0x40000000
LOG2E = 0x3fb8aa3b
SCALE = 0x3d93cd3a
SPIN_MAX = 1 << 20
AUX = 7
CLR = 6

K_, V_, WS_, WQ_, WO_, W1_, W3_, W2_, X_, OUT_, DBG_ = [f"s[{i}:{i+3}]" for i in range(8, 52, 4)]
DPP3 = ("quad_perm:[1,0,3,2]", "quad_perm:[2,3,0,1]", "row_half_mirror")
KB, VB = 40, 148
DACC, MSK, AOP, WO, W2, PD = 40, 52, 56, 92, 116, 124
MF = "v_mfma_f32_16x16x32_bf16"

class VM:
    def __init__(self, a):
        self.a = a; self.n = 0; self.done = 0
    def issue(self, s):
        self.a(s); self.n += 1; return self.n - 1
    def wait_id(self, i):
        if i < self.done: return
        self.a(f"s_waitcnt vmcnt({self.n - 1 - i})"); self.done = i + 1
    def throttle(self, T):
        if self.n - self.done > T - 1:
            self.a(f"s_waitcnt vmcnt({T-1})"); self.done = self.n - (T - 1)
    def set(self, n, d):
        self.n = n; self.done = d

def gen(fname, T=4, TL=None, NV=2, budget=2, prio=1, st=None, wfirst=True, abl='', tlb=0, psleep=2, pre=0, cpos=0, cpol='sc1', cnum=5, h1pol='sc1', pupol='sc1', qppol='sc1', xcpos=5, forcex=0, NP2=1, gap2=4, NP1=1, gap1=2, lpos=0, rot=3, fine=0, entries=None, pol='nt'):
    TL = T if TL is None else TL
    a = Asm()
    R = a.raw
    R("; fused decode: layernorm + q-proj + sliding-window attention + out-proj + swiglu MLP")
    R(f"; @launch grid=(256,1,1) block=(512,1,1) lds={LDS_SIZE}")
    R('.amdgcn_target "amdgcn-amd-amdhsa--gfx950"')
    R(".text"); R(f".globl {KN}"); R(".p2align 8"); R(f".type {KN},@function"); R(f"{KN}:")
    def stamp(i, kinds=("main", "wave")):
        if st in kinds: a(f"s_memrealtime s[{88+2*i}:{89+2*i}]")
    def tstamp(i): stamp(i, ("tail",))
    def unpack(src, dlo, dhi):
        a(f"v_lshlrev_b32 v{dlo}, 16, v{src}"); a(f"v_and_b32 v{dhi}, 0xffff0000, v{src}")
    def lohi(src, d):
        a(f"v_and_b32 v{d}, 0xffff, v{src}"); a(f"v_lshlrev_b32 v{d+1}, 16, v{src}")
        a(f"v_lshrrev_b32 v{d+2}, 16, v{src}"); a(f"v_and_b32 v{d+3}, 0xffff0000, v{src}")
    def exec_hi16():
        a("s_mov_b32 exec_lo, 0"); a("s_mov_b32 exec_hi, 0xffff0000")
    def exec_valid():
        a("s_mov_b32 exec_lo, 0x00ff00ff"); a("s_mov_b32 exec_hi, 0xff00ff00")
    def srd(base, ptr, size):
        a(f"s_mov_b32 s{base}, s{ptr}"); a(f"s_mov_b32 s{base+1}, s{ptr+1}")
        a(f"s_mov_b32 s{base+2}, {size}"); a(f"s_mov_b32 s{base+3}, 0x00020000")
    def masks(d, t0, t1):
        a(f"v_and_b32 v{t0}, 1, v2"); a(f"v_lshlrev_b32 v{t0}, 4, v{t0}")
        a(f"v_mov_b32 v{t1}, 0xffff"); a(f"v_lshlrev_b32 v{t1}, v{t0}, v{t1}")
        a(f"v_bfe_u32 v{t0}, v2, 1, 2")
        for r in range(4):
            a(f"v_cmp_eq_u32 vcc, {r}, v{t0}")
            a(f"v_cndmask_b32 v{d+r}, 0, v{t1}, vcc")
    vm = VM(a)
    a("s_cmp_ge_u32 s2, 256")
    a("s_cbranch_scc1 L_end")
    stamp(0, ("main", "wave", "tail"))
    a("s_load_dwordx16 s[52:67], s[0:1], 0")
    a("s_load_dwordx8 s[68:75], s[0:1], 64")
    a("v_lshrrev_b32 v15, 6, v0")
    a("v_and_b32 v2, 63, v0")
    a("v_readfirstlane_b32 s3, v15")
    a("s_and_b32 s4, s2, 31")
    a("s_lshr_b32 s5, s2, 5")
    a("s_lshr_b32 s6, s5, 1")
    a("s_and_b32 s7, s5, 1")
    a("v_lshrrev_b32 v15, 3, v2")
    a("v_and_b32 v3, 7, v2"); a("v_lshlrev_b32 v3, 4, v3")
    a("v_mul_u32_u24 v1, 384, v15"); a("v_add_u32 v1, v1, v3")
    a("v_lshlrev_b32 v6, 4, v2")
    a("s_mul_i32 s76, s4, 12582912"); a("s_mul_i32 s77, s5, %d" % (512 * 384))
    a("s_add_u32 s76, s76, s77"); a("s_add_u32 s76, s76, %d" % (28672 * 384))
    a(f"s_cmp_eq_u32 s3, {AUX}")
    a("s_cbranch_scc1 L_aux")

    SO = 78
    def kload(n, base=KB):
        i, j = divmod(n, 3); r = base + 4 * n
        return vm.issue(f"buffer_load_dwordx4 v[{r}:{r+3}], v1, {K_}, s{SO+i} offen offset:{j*128} nt")
    def vload(n, base=VB):
        i, j = divmod(n, 3); r = base + 4 * n
        return vm.issue(f"buffer_load_dwordx4 v[{r}:{r+3}], v1, {V_}, s{SO+i} offen offset:{j*128} nt")

    def setup_common():
        srd(16, 74, 1610612736); srd(24, 60, 7864320); srd(36, 68, 1966080); srd(44, 70, 1280); srd(48, 72, 256)
        srd(40, 52, 1280)
        a("s_mul_i32 s52, s4, 192"); a("s_mul_i32 s63, s6, 48"); a("s_add_u32 s52, s52, s63"); a("s_mul_i32 s52, s52, 1280")
        a("s_mul_i32 s63, s7, 640"); a("s_add_u32 s52, s52, s63")
        a("s_lshl_b32 s53, s4, 6"); a("s_lshl_b32 s62, s6, 4"); a("s_add_u32 s53, s53, s62"); a("s_mul_i32 s53, s53, 1280")
        a("s_add_u32 s53, s53, s63")
        a("s_cmp_lt_u32 s4, 24"); a("s_cselect_b32 s53, s53, %d" % OOB)
        a("s_sub_u32 s62, s3, 1"); a("s_cmp_lt_u32 s62, 4"); a("s_cselect_b32 s62, s62, 8"); a("s_cmp_eq_u32 s3, 7"); a("s_cselect_b32 s62, 4, s62")
        a("s_lshl_b32 s63, s62, 7"); a("s_cmp_lt_u32 s62, 5"); a("s_cselect_b32 s63, s63, %d" % OOB)
        a("s_add_u32 s52, s52, s63"); a("s_add_u32 s53, s53, s63"); a("s_add_u32 s64, s52, 5120")
        a("s_lshl_b32 s65, s62, 8")
        a("s_lshl_b32 s54, s4, 13"); a("s_add_u32 s54, s54, %d" % MBX_OFF)
        a("s_lshl_b32 s62, s6, 11"); a("s_add_u32 s55, s54, s62")
        a("s_lshl_b32 s62, s5, 8"); a("s_add_u32 s56, s54, s62")
        a("s_mul_i32 s57, s4, 10240"); a("s_add_u32 s57, s57, %d" % QX_OFF)
        a("s_lshl_b32 s58, s4, 2"); a("s_add_u32 s58, s58, s6"); a("s_mul_i32 s58, s58, 2560")
        a("s_mul_i32 s62, s7, 1280"); a("s_add_u32 s58, s58, s62"); a("s_add_u32 s58, s58, %d" % MB2_OFF); a("s_add_u32 s58, s58, s65")
        a("s_mul_i32 s59, s4, 10240"); a("s_mul_i32 s62, s5, 1280"); a("s_add_u32 s59, s59, s62"); a("s_add_u32 s59, s59, %d" % QX_OFF)
    def setup_proj():
        a("v_lshrrev_b32 v15, 3, v2")
        a("v_mul_u32_u24 v4, 7680, v15"); a("v_add_u32 v4, v4, v3")
        a("v_mul_u32_u24 v5, 2560, v15"); a("v_add_u32 v5, v5, v3")
        a("v_lshlrev_b32 v9, 2, v15"); a("s_lshl_b32 s87, s6, 5"); a("v_add_u32 v9, s87, v9")
        a("v_lshlrev_b32 v8, 4, v3")
        a("v_mul_u32_u24 v7, 24, v15")
        a("v_and_b32 v16, 16, v2")
        a("v_lshl_add_u32 v11, v3, 1, v16")
        a("v_lshrrev_b32 v15, 5, v2"); a("v_mul_u32_u24 v15, 768, v15")
        a("s_mul_i32 s87, s3, 1536")
        a("v_add3_u32 v14, v11, v15, s87")

    late = [f"buffer_load_dwordx4 v[{W2+4*i}:{W2+3+4*i}], v5, {W2_}, s53 offen offset:{1280*i} nt" for i in range(2)]
    late += [f"buffer_load_dwordx4 v[{WO+4*i}:{WO+3+4*i}], v4, {WO_}, {'s52' if i < 4 else 's64'} offen offset:{1280*(i%4)} nt" for i in range(6)]

    def read_q():
        for j in range(3):
            a(f"ds_read_b128 v[{20+4*j}:{23+4*j}], v3 offset:{L_QB+128*j}")
        a(f"ds_read_b32 v10, v9 offset:{L_HB}")
    def t_score(groups, sc, kb, first):
        def f():
            if first: a("s_waitcnt lgkmcnt(0)")
            for i in groups: a(f"v_mov_b32 v{sc[i]}, 0")
            for j in range(3):
                for r in range(4):
                    for i in groups:
                        a(f"v_dot2c_f32_bf16 v{sc[i]}, v{kb+12*i+4*j+r}, v{20+4*j+r}")
            for m in DPP3:
                for i in groups:
                    a(f"v_add_f32_dpp v{sc[i]}, v{sc[i]}, v{sc[i]} {m} row_mask:0xf bank_mask:0xf")
            s0 = sc[groups[0]]; s1 = sc[groups[-1]]
            for rnd in range(2):
                a(f"v_cvt_pk_bf16_f32 v15, v{s0}, v{s1}")
                a(f"v_lshlrev_b32 v{s0}, 16, v15")
                if s1 != s0: a(f"v_and_b32 v{s1}, 0xffff0000, v15")
                if rnd == 0:
                    for i in groups: a(f"v_mul_f32 v{sc[i]}, {SCALE:#x}, v{sc[i]}")
        return f
    def t_softmax(G, sc):
        def f1():
            a(f"v_mov_b32 v15, v{sc[0]}")
            rest = list(range(1, G))
            for k in range(0, len(rest), 2): a(f"v_max3_f32 v15, v15, v{sc[rest[k]]}, v{sc[rest[k+1]]}")
            a("v_max_f32_dpp v15, v15, v15 row_ror:8 row_mask:0xf bank_mask:0xf")
            for r in range(DACC, DACC + 12): a(f"v_mov_b32 v{r}, 0")
            a("v_mov_b32 v16, v15"); a("v_permlane16_swap_b32 v15, v16"); a("v_max_f32 v15, v15, v16")
            a("v_mov_b32 v16, v15"); a("v_permlane32_swap_b32 v15, v16"); a("v_max_f32 v15, v15, v16")
            a(f"v_mul_f32 v12, {LOG2E:#x}, v15")
            masks(MSK, 17, 18)
        def f2():
            a(f"s_mov_b32 s62, {LOG2E:#x}")
            for i in range(G): a(f"v_fma_f32 v{sc[i]}, v{sc[i]}, s62, -v12")
            for i in range(G): a(f"v_exp_f32 v{sc[i]}, v{sc[i]}")
            for i in range(G): a(f"v_cvt_pk_bf16_f32 v{sc[i]}, v{sc[i]}, v{sc[i]}")
        def f3():
            for i in range(G):
                for r in range(4): a(f"v_and_b32 v{AOP+4*i+r}, v{MSK+r}, v{sc[i]}")
        def f4():
            a(f"v_and_b32 v13, 0xffff0000, v{sc[0]}")
            for i in range(1, G):
                a(f"v_and_b32 v15, 0xffff0000, v{sc[i]}"); a("v_add_f32 v13, v13, v15")
            a("v_add_f32_dpp v13, v13, v13 row_ror:8 row_mask:0xf bank_mask:0xf")
            a("v_mov_b32 v16, v13"); a("v_permlane16_swap_b32 v13, v16"); a("v_add_f32 v13, v13, v16")
            a("v_mov_b32 v16, v13"); a("v_permlane32_swap_b32 v13, v16"); a("v_add_f32 v13, v13, v16")
            a("s_lshl_b32 s62, s3, 3"); a("v_mov_b32 v16, s62")
            a(f"ds_write_b64 v16, v[12:13] offset:{L_ML}")
        return [f1, f2, f3, f4]
    def t_pv(n, vb):
        def f():
            i, j = divmod(n, 3)
            d = DACC + 4 * j
            a(f"{MF} v[{d}:{d+3}], v[{AOP+4*i}:{AOP+3+4*i}], v[{vb+4*n}:{vb+3+4*n}], v[{d}:{d+3}]")
        return f

    if rot == 2:
        a("s_lshr_b32 s77, s2, 3"); a("s_add_u32 s77, s77, s3"); a("s_add_u32 s77, s77, s2")
    elif rot == 3:
        a("s_lshr_b32 s77, s2, 3"); a("s_add_u32 s77, s77, s2")
    else:
        a("s_mov_b32 s77, 0")
    a("s_mul_i32 s87, s77, 57"); a("s_lshr_b32 s87, s87, 9"); a("s_mul_i32 s87, s87, 9"); a("s_sub_u32 s77, s77, s87")
    a("s_mul_i32 s87, s3, 3072"); a("s_add_u32 s76, s76, s87")
    for i in range(9):
        a(f"s_add_u32 s{SO+i}, s77, {i}"); a(f"s_sub_u32 s87, s{SO+i}, 9"); a(f"s_cmp_ge_u32 s{SO+i}, 9")
        a(f"s_cselect_b32 s{SO+i}, s87, s{SO+i}"); a(f"s_mul_i32 s{SO+i}, s{SO+i}, {7*3072}"); a(f"s_add_u32 s{SO+i}, s{SO+i}, s76")
    if prio:
        a("s_cmp_lt_u32 s3, 4"); a("s_cbranch_scc1 L_noprio"); a(f"s_setprio {prio}"); a.label("L_noprio")
    setup_proj()
    a("s_waitcnt lgkmcnt(0)")
    srd(8, 54, 402653184); srd(12, 56, 402653184)
    setup_common()
    if tlb:
        a("s_cmp_lg_u32 s3, 5"); a("s_cbranch_scc1 L_notlb")
        a("s_mov_b64 exec, 1"); a("v_mov_b32 v20, 0")
        a("s_add_u32 s62, s76, %d" % (196608 - 5 * 3072 - 64))
        a(f"buffer_load_dword v21, v20, {V_}, s76 offen nt")
        a(f"buffer_load_dword v22, v20, {V_}, s62 offen nt")
        a(f"buffer_load_dword v23, v20, {K_}, s62 offen nt")
        a(f"buffer_load_dword v24, v20, {WO_}, s52 offen nt")
        a(f"buffer_load_dword v25, v20, {W2_}, s53 offen nt")
        a(f"buffer_load_dword v26, v20, {WS_}, s57 offen nt")
        a(f"buffer_load_dword v27, v20, {OUT_}, 0 offen nt")
        a("s_mov_b64 exec, -1")
        a.label("L_notlb")
    kid = {}
    if wfirst: a("s_barrier")
    for n in range(T): kid[n] = kload(n)
    if not wfirst: a("s_barrier")
    for n in range(T, 27):
        vm.throttle(T); kid[n] = kload(n)
    sc = [32 + i for i in range(8)] + [19]
    groups = ((0, 1), (2, 3), (4, 5), (6, 7), (8,)) if not fine else tuple((i,) for i in range(9))
    def continuation(nv, vid, bud):
        read_q()
        tasks = [(lambda g=g: kid[3 * g[-1] + 2], t_score(g, sc, KB, g[0] == 0), 4) for g in groups]
        tasks += [(lambda: -1, f, 4) for f in t_softmax(9, sc)]
        tasks += [(lambda n=n: vid.get(n, 10**9), t_pv(n, VB), 0.5) for n in range(27)]
        ndone = 0
        for n in range(nv, 35):
            if n >= 27:
                while ndone < len(groups) + 3:
                    t = tasks.pop(0)
                    if t[0]() >= 0: vm.wait_id(t[0]())
                    t[1](); ndone += 1
            if n < 27 + TL - 1: vm.throttle(TL)
            if n < 27: vid[n] = vload(n)
            elif lpos == 0: vm.issue(late[n - 27])
            b = bud * 4
            while b > 0 and tasks and tasks[0][0]() < vm.done:
                t = tasks.pop(0); t[1](); b -= t[2]; ndone += 1
        while tasks:
            req, f, c = tasks.pop(0)
            if req() >= 0: vm.wait_id(req())
            f()
        stamp(4)
        a("s_branch L_tail")
    ent = entries if entries else [NV]
    vid = {}
    saved = []
    a(f"v_mov_b32 v15, {L_FLAG}")
    for n in range(ent[-1]):
        if n + 1 in ent[:-1]: a("ds_read_b32 v16, v15")
        vm.throttle(T); vid[n] = vload(n)
        if n + 1 in ent[:-1]:
            a("s_waitcnt lgkmcnt(0)")
            a("v_readfirstlane_b32 s66, v16")
            a("s_cmp_lg_u32 s66, 0")
            a(f"s_cbranch_scc1 L_cont{n+1}")
            saved.append((n + 1, dict(vid), (vm.n, vm.done)))
    stamp(2)
    a(f"s_mov_b32 s63, {SPIN_MAX}")
    a.label("L_flag")
    a("ds_read_b32 v16, v15")
    a("s_waitcnt lgkmcnt(0)")
    a("v_readfirstlane_b32 s66, v16")
    a("s_cmp_lg_u32 s66, 0")
    a("s_cbranch_scc1 L_flagok")
    a("s_sleep 2")
    a("s_sub_u32 s63, s63, 1")
    a("s_cmp_lg_u32 s63, 0")
    a("s_cbranch_scc1 L_flag")
    a.label("L_flagok")
    stamp(3)
    def bud_for(nv): return budget if nv <= 16 else 2 * budget
    continuation(ent[-1], vid, bud_for(ent[-1]))
    for (nv, v, stt) in saved:
        a.label(f"L_cont{nv}")
        vm.set(*stt)
        stamp(2); stamp(3)
        continuation(nv, v, bud_for(nv))

    a.label("L_aux")
    vm.set(0, 0)
    a("s_setprio 2")
    a(f"v_mov_b32 v16, {L_FLAG}"); a("v_mov_b32 v17, 0")
    a("ds_write_b32 v16, v17")
    a("v_mul_u32_u24 v4, 122880, v15"); a("v_add_u32 v4, v4, v3")
    a("v_mul_u32_u24 v5, 30720, v15"); a("v_add_u32 v5, v5, v3")
    a("v_mul_u32_u24 v7, 20, v15")
    a(f"s_add_u32 s{SO}, s76, {63*3072}")
    a("s_mul_i32 s79, s5, 160")
    a("s_mul_i32 s80, s5, %d" % (80 * 12288)); a("s_mul_i32 s77, s4, 384"); a("s_add_u32 s80, s80, s77")
    a("s_mul_i32 s81, s5, %d" % (80 * 3072)); a("s_lshl_b32 s77, s4, 7"); a("s_add_u32 s81, s81, s77")
    a("s_cmp_lt_u32 s4, 24"); a("s_cselect_b32 s81, s81, %d" % OOB)
    a("s_lshl_b32 s82, s2, 9"); a("s_add_u32 s82, s82, %d" % QMB_OFF)
    a("v_lshlrev_b32 v14, 3, v2")
    a("s_lshl_b32 s83, s4, 13"); a("s_lshl_b32 s77, s5, 8"); a("s_add_u32 s83, s83, s77"); a("s_add_u32 s83, s83, %d" % MBX_OFF)
    a("v_lshrrev_b32 v12, 4, v2"); a("v_lshlrev_b32 v12, 11, v12"); a("v_and_b32 v13, 15, v2"); a("v_lshl_add_u32 v12, v13, 4, v12")
    a("s_lshl_b32 s84, s4, 2"); a("s_add_u32 s84, s84, s6"); a("s_mul_i32 s84, s84, 2560")
    a("s_mul_i32 s77, s7, 1280"); a("s_add_u32 s84, s84, s77"); a("s_add_u32 s84, s84, %d" % MB2_OFF)
    a("s_getreg_b32 s85, hwreg(HW_REG_XCC_ID)"); a("s_and_b32 s85, s85, 15")
    a("s_mul_i32 s77, s85, s85"); a("s_lshl_b32 s77, s77, 12"); a("s_lshl_b32 s85, s85, 4"); a("s_add_u32 s85, s85, s77"); a("s_add_u32 s85, s85, 1")
    masks(8, 16, 17)
    for r in range(52, 56): a(f"v_mov_b32 v{r}, -1")
    a("s_waitcnt lgkmcnt(0)")
    srd(16, 74, 1610612736); srd(48, 72, 256)
    def clears():
        if 'a' in abl: return
        vm.issue(f"buffer_store_dwordx2 v[52:53], v14, {WS_}, s82 offen {cpol}")
        if cnum < 2: return
        vm.issue(f"buffer_store_dwordx4 v[52:55], v12, {WS_}, s83 offen {cpol}")
        vm.issue(f"buffer_store_dwordx4 v[52:55], v6, {WS_}, s84 offen {cpol}")
        a("s_mov_b64 exec, 0xffff")
        vm.issue(f"buffer_store_dwordx4 v[52:55], v6, {WS_}, s84 offen offset:1024 {cpol}")
        a("s_mov_b64 exec, -1")
    if cpos == 0: clears()
    srd(40, 52, 1280); srd(20, 58, 7864320)
    ix0 = vm.issue(f"buffer_load_dwordx4 v[32:35], v6, {X_}, 0 offen")
    ix1 = vm.issue(f"buffer_load_dwordx4 v[36:39], v6, {X_}, 0 offen offset:1024")
    vm.issue(f"buffer_load_dwordx4 v[16:19], v7, {X_}, s79 offen")
    ixo = vm.issue(f"buffer_load_dword v15, v7, {X_}, s79 offen offset:16")
    srd(28, 64, 1966080); srd(32, 66, 1966080)
    iw = {}
    for i in range(10):
        b = 56 + 20 * i
        for j in range(3):
            vm.issue(f"buffer_load_dwordx4 v[{b+4*j}:{b+3+4*j}], v4, {WQ_}, s80 offen offset:{128*j} nt")
        vm.issue(f"buffer_load_dwordx4 v[{b+12}:{b+15}], v5, {W1_}, s81 offen nt")
        iw[i] = vm.issue(f"buffer_load_dwordx4 v[{b+16}:{b+19}], v5, {W3_}, s81 offen nt")
        if i < 9:
            a("s_add_u32 s80, s80, 12288"); a("s_add_u32 s81, s81, 3072")
    a("s_barrier")
    if cpos == 1: clears()
    srd(8, 54, 402653184); srd(12, 56, 402653184)
    setup_common()
    a("s_and_b32 s62, s4, 16"); a("s_add_u32 s62, s62, s4"); a("s_lshl_b32 s62, s62, 2"); a("v_mov_b32 v12, s62")
    a("v_mov_b32 v13, s85")
    vm.wait_id(ixo)
    for k in range(4): unpack(16 + k, 20 + 2 * k, 21 + 2 * k)
    unpack(15, 28, 29)
    for r in range(8): unpack(32 + r, 40 + 2 * r, 41 + 2 * r)
    def wave_sum(v, sdst):
        for m in DPP3 + ("row_mirror",):
            a(f"v_add_f32_dpp v{v}, v{v}, v{v} {m} row_mask:0xf bank_mask:0xf")
        for k in range(4): a(f"v_readlane_b32 s{sdst+k}, v{v}, {16*k}")
        a(f"v_mov_b32 v{v}, s{sdst}")
        for k in range(1, 4): a(f"v_add_f32 v{v}, s{sdst+k}, v{v}")
    a("v_add_f32 v15, v40, v41")
    for r in range(42, 56): a(f"v_add_f32 v15, v15, v{r}")
    wave_sum(15, 60)
    a("v_mul_f32 v15, 0x3acccccd, v15")
    a("v_mov_b32 v16, 0")
    for r in range(40, 48):
        a(f"v_sub_f32 v17, v{r}, v15"); a("v_fmac_f32 v16, v17, v17")
    a("s_mov_b64 exec, 0xffff")
    for r in range(48, 56):
        a(f"v_sub_f32 v17, v{r}, v15"); a("v_fmac_f32 v16, v17, v17")
    a("s_mov_b64 exec, -1")
    wave_sum(16, 60)
    a("v_mul_f32 v16, 0x3acccccd, v16")
    a("v_cvt_pk_bf16_f32 v17, v15, v16")
    a("v_lshlrev_b32 v15, 16, v17")
    a("v_and_b32 v16, 0xffff0000, v17")
    a("v_add_f32 v16, 0x3727c5ac, v16")
    a("v_cvt_pk_bf16_f32 v16, v16, v16")
    a("v_lshlrev_b32 v16, 16, v16")
    a("v_sqrt_f32 v16, v16")
    a("v_cvt_pk_bf16_f32 v16, v16, v16")
    a("v_lshlrev_b32 v16, 16, v16")
    a("v_rcp_f32 v17, v16")
    for i in range(10): a(f"v_sub_f32 v{20+i}, v{20+i}, v15")
    for i in range(0, 10, 2):
        a(f"v_cvt_pk_bf16_f32 v18, v{20+i}, v{21+i}"); unpack(18, 20 + i, 21 + i)
    for i in range(10):
        a(f"v_mul_f32 v18, v{20+i}, v17")
        a(f"v_fma_f32 v19, -v18, v16, v{20+i}")
        a(f"v_fma_f32 v{20+i}, v19, v17, v18")
    for i in range(10): a(f"v_cvt_pk_bf16_f32 v{20+i}, v{20+i}, v{20+i}")
    for r in range(32, 52): a(f"v_mov_b32 v{r}, 0")
    a("v_lshrrev_b32 v15, 5, v2"); a("v_mul_u32_u24 v15, 1280, v15")
    a("v_and_b32 v16, 16, v2"); a("v_lshl_add_u32 v16, v3, 1, v16"); a("v_add_u32 v15, v15, v16")
    a("v_lshlrev_b32 v14, 3, v2")
    for i in range(10):
        for r in range(4): a(f"v_and_b32 v{52+r}, v{8+r}, v{20+i}")
        vm.wait_id(iw[i])
        b = 56 + 20 * i
        for c in range(5):
            a(f"{MF} v[{32+4*c}:{35+4*c}], v[52:55], v[{b+4*c}:{b+3+4*c}], v[{32+4*c}:{35+4*c}]")
    stamp(1)
    exec_valid()
    for c in range(5): a(f"ds_write_b128 v15, v[{32+4*c}:{35+4*c}] offset:{L_P1+256*c}")
    a("s_mov_b64 exec, -1")
    a("s_waitcnt lgkmcnt(0)")
    a(f"ds_read_b128 v[64:67], v6 offset:{L_P1}")
    a(f"ds_read_b128 v[68:71], v6 offset:{L_P1+1280}")
    a(f"ds_read_b128 v[72:75], v6 offset:{L_P1+256}")
    a(f"ds_read_b128 v[76:79], v6 offset:{L_P1+1280+256}")
    a("s_waitcnt lgkmcnt(0)")
    for r in range(4):
        a(f"v_add_f32 v{64+r}, v{64+r}, v{68+r}"); a(f"v_add_f32 v{72+r}, v{72+r}, v{76+r}")
    for r in range(4):
        a(f"v_min_u32 v{64+r}, -2, v{64+r}"); a(f"v_min_u32 v{72+r}, -2, v{72+r}")
    if 'b' in abl: a("s_branch L_atake")
    a(f"buffer_store_dwordx4 v[64:67], v6, {WS_}, s59 offen sc1")
    exec_hi16()
    a(f"buffer_store_dwordx4 v[72:75], v6, {WS_}, s59 offen offset:256 sc1")
    a("s_mov_b64 exec, -1")
    a("s_mov_b64 exec, 1")
    a("s_waitcnt vmcnt(0)")
    if 'n' in abl: pass
    elif 'r' in abl: a(f"buffer_atomic_add v13, v12, {DBG_}, 0 offen")
    elif 'w' in abl: a(f"buffer_atomic_add v13, v12, {WS_}, s82 offen sc0")
    else: a(f"buffer_atomic_add v13, v12, {DBG_}, 0 offen sc0")
    a("s_waitcnt vmcnt(0)")
    a("v_readfirstlane_b32 s62, v13")
    a("s_mov_b64 exec, -1")
    stamp(5)
    if 'c' in abl: a("s_branch L_atake")
    if st == "main":
        a("s_and_b32 s92, s62, 7"); a("s_mov_b32 s93, 0")
    a("s_mul_i32 s63, s85, 7"); a("s_cmp_eq_u32 s62, s63"); a("s_cselect_b32 s66, 2, 1")
    if forcex: a("s_mov_b32 s66, 1")
    a("s_add_u32 s67, s6, 1"); a("s_and_b32 s67, s67, 3"); a("s_lshl_b32 s67, s67, 2"); a("s_add_u32 s67, s67, 48")
    a("s_and_b32 s62, s62, 7"); a("s_cmp_eq_u32 s62, 7")
    a("s_cbranch_scc0 L_await")
    a("s_add_u32 s60, s57, 3840"); a("s_add_u32 s61, s57, 7680")
    if 'g' not in abl:
        for s in range(8):
            so = ("s57", "s60", "s61")[s // 3]
            a(f"buffer_load_dwordx4 v[{96+4*s}:{99+4*s}], v6, {WS_}, {so} offen offset:{(s%3)*1280} sc1")
        exec_hi16()
        for s in range(8):
            so = ("s57", "s60", "s61")[s // 3]
            a(f"buffer_load_dwordx4 v[{160+4*s}:{163+4*s}], v6, {WS_}, {so} offen offset:{(s%3)*1280+256} sc1")
        a("s_mov_b64 exec, -1")
        a("s_waitcnt vmcnt(0)")
    a.label("L_agot")
    for s in range(1, 8):
        for r in range(4):
            a(f"v_add_f32 v{96+r}, v{96+r}, v{96+4*s+r}")
            a(f"v_add_f32 v{160+r}, v{160+r}, v{160+4*s+r}")
    a("v_cvt_pk_bf16_f32 v20, v96, v97"); a("v_cvt_pk_bf16_f32 v21, v98, v99")
    a("v_cvt_pk_bf16_f32 v22, v160, v161"); a("v_cvt_pk_bf16_f32 v23, v162, v163")
    exec_hi16()
    unpack(20, 64, 65); unpack(21, 66, 67); unpack(22, 160, 161); unpack(23, 162, 163)
    for r in range(4): a(f"v_mul_f32 v{68+r}, {LOG2E|0x80000000:#x}, v{64+r}")
    for r in range(4): a(f"v_exp_f32 v{68+r}, v{68+r}")
    for r in range(4): a(f"v_add_f32 v{68+r}, 1.0, v{68+r}")
    for r in range(4): a(f"v_rcp_f32 v{72+r}, v{68+r}")
    for r in range(4): a(f"v_mul_f32 v{76+r}, v{64+r}, v{72+r}")
    a("v_cvt_pk_bf16_f32 v20, v76, v77"); a("v_cvt_pk_bf16_f32 v21, v78, v79")
    unpack(20, 64, 65); unpack(21, 66, 67)
    for r in range(4): a(f"v_mul_f32 v{64+r}, v{64+r}, v{160+r}")
    a("v_cvt_pk_bf16_f32 v20, v64, v65"); a("v_cvt_pk_bf16_f32 v21, v66, v67")
    a("s_mov_b64 exec, -1")
    a("v_min_u32 v20, -2, v20"); a("v_min_u32 v21, -2, v21")
    a("s_lshl_b32 s62, s4, 9"); a("s_add_u32 s62, s62, %d" % QMB_OFF)
    for rq in range(4):
        a(f"v_mov_b32 v{24+2*rq}, v20"); a(f"v_mov_b32 v{25+2*rq}, v21")
        a(f"v_writelane_b32 v{24+2*rq}, s66, {48 + 4 * ((rq + 1) & 3)}")
    a("s_cmp_eq_u32 s66, 2"); a("s_cbranch_scc1 L_pushL")
    for pol in ("sc1", ""):
        for s in range(8):
            a(f"buffer_store_dwordx2 v[{24+2*(s>>1)}:{25+2*(s>>1)}], v14, {WS_}, s62 offen {pol}")
            if s < 7: a("s_add_u32 s62, s62, %d" % (32 * 512))
        a("s_branch L_atake")
        if pol: a.label("L_pushL")
    a.label("L_await")
    if 'q' in abl: a("s_branch L_atake")
    for _ in range(pre): a("s_sleep 16")
    a(f"s_mov_b32 s63, {SPIN_MAX}")
    a.label("L_aspin")
    a(f"buffer_load_dwordx2 v[20:21], v14, {WS_}, s82 offen sc1")
    a("s_waitcnt vmcnt(0)")
    a("v_max_u32 v22, v20, v21")
    a("v_cmp_eq_u32 vcc, -1, v22")
    a("s_cmp_eq_u64 vcc, 0")
    a("s_cbranch_scc1 L_agotq")
    a("s_sub_u32 s63, s63, 1"); a("s_cmp_eq_u32 s63, 0")
    a("s_cbranch_scc1 L_agotq")
    a(f"s_sleep {psleep}")
    a("s_branch L_aspin")
    a.label("L_agotq")
    a("v_readlane_b32 s66, v20, s67")
    a("s_cmp_eq_u32 s66, 2"); a("s_cselect_b32 s66, 2, 1")
    a.label("L_atake")
    a(f"ds_write_b64 v14, v[20:21] offset:{L_QB}")
    a(f"v_mov_b32 v22, {L_FLAG}"); a("v_mov_b32 v23, s66")
    a("s_waitcnt lgkmcnt(0)")
    a("ds_write_b32 v22, v23")
    stamp(3)
    a("s_setprio 0")
    vm.set(0, 0)
    AK, AV = 160, 148
    kida = [kload(n, AK) for n in range(3)]
    vida = [vload(n, AV) for n in range(3)]
    setup_proj()
    if lpos == 0:
        for l in late: vm.issue(l)
    read_q()
    vm.wait_id(kida[2])
    t_score((0,), [32], AK, True)()
    for f in t_softmax(1, [32]): f()
    vm.wait_id(vida[2])
    for n in range(3): t_pv(n, AV)()
    if 'f' in abl: a("s_branch L_acntok")
    a("s_cmp_ge_u32 s2, 20"); a("s_cbranch_scc1 L_acntok")
    a("v_and_b32 v15, 15, v2"); a("v_and_b32 v16, 16, v2"); a("v_lshl_add_u32 v15, v16, 1, v15"); a("v_lshlrev_b32 v15, 2, v15")
    a(f"s_mov_b32 s63, {SPIN_MAX}")
    a.label("L_cnt")
    a(f"buffer_load_dword v16, v15, {DBG_}, 0 offen sc1")
    a("s_waitcnt vmcnt(0)")
    a("v_and_b32 v17, 7, v16")
    a("v_cmp_ne_u32 vcc, 0, v17")
    a("v_cmp_eq_u32 s[60:61], 0, v16")
    a("s_or_b64 vcc, vcc, s[60:61]")
    a("s_cmp_eq_u64 vcc, 0")
    a("s_cbranch_scc1 L_acntok")
    a("s_sub_u32 s63, s63, 1"); a("s_cmp_eq_u32 s63, 0")
    a("s_cbranch_scc1 L_acntok")
    a("s_sleep 16")
    a("s_branch L_cnt")
    a.label("L_acntok")
    stamp(4)

    a.label("L_tail")
    if 't' in abl:
        a("s_waitcnt vmcnt(0)"); a("s_branch L_done")
    exec_valid()
    for j in range(3): a(f"ds_write_b128 v14, v[{DACC+4*j}:{DACC+3+4*j}] offset:{L_OP+256*j}")
    a("s_mov_b64 exec, -1")
    def mlp_part(wait):
        a("v_and_b32 v16, 0xffff, v10"); a("v_lshl_or_b32 v16, v16, 16, v16")
        a("v_lshrrev_b32 v17, 16, v10"); a("v_lshl_or_b32 v17, v17, 16, v17")
        for r in range(4): a(f"v_mov_b32 v{PD+r}, 0")
        for i in range(2):
            for r in range(4): a(f"v_and_b32 v{28+4*i+r}, v{MSK+r}, v{16+i}")
        a(wait)
        for i in range(2):
            a(f"{MF} v[{PD}:{PD+3}], v[{28+4*i}:{31+4*i}], v[{W2+4*i}:{W2+3+4*i}], v[{PD}:{PD+3}]")
    a("s_cmp_eq_u32 s3, 0")
    a("s_cbranch_scc1 L_w0")
    a(f"s_cmp_eq_u32 s3, {AUX}")
    a("s_cbranch_scc1 L_w7")
    a("s_waitcnt lgkmcnt(0)")
    a("s_barrier")
    if lpos == 1:
        for l in late: a(l)
    if lpos < 2: mlp_part("s_waitcnt vmcnt(0)")
    a("s_branch L_b3b")
    a.label("L_w7")
    if lpos == 0: mlp_part("s_waitcnt vmcnt(0)")
    a("v_lshrrev_b32 v20, 3, v2"); a("v_lshlrev_b32 v20, 8, v20")
    a("v_add_u32 v21, v20, v3")
    a("v_and_b32 v22, 48, v3"); a("v_add_u32 v22, v20, v22")
    a("v_and_b32 v24, 48, v3"); a("v_add_u32 v24, 128, v24")
    a("v_cmp_gt_u32 vcc, 32, v2")
    a("v_cndmask_b32 v23, v24, v3, vcc")
    a("v_bfe_u32 v24, v2, 4, 1"); a("v_lshl_add_u32 v23, v24, 3, v23")
    a(f"s_mov_b32 s63, {SPIN_MAX}")
    a("s_waitcnt lgkmcnt(0)")
    a("s_barrier")
    tstamp(1)
    if lpos == 1:
        for l in late: a(l)
        mlp_part("s_waitcnt vmcnt(0)")
    a.label("L_chk1")
    a(f"buffer_load_dwordx4 v[128:131], v21, {WS_}, s55 offen sc1")
    a(f"buffer_load_dwordx4 v[132:135], v22, {WS_}, s55 offen offset:128 sc1")
    a(f"buffer_load_dwordx2 v[136:137], v20, {WS_}, s55 offen offset:192 sc1")
    a("s_waitcnt vmcnt(0)")
    a("v_max3_u32 v64, v128, v129, v130"); a("v_max3_u32 v64, v64, v131, v132"); a("v_max3_u32 v64, v64, v133, v134")
    a("v_max3_u32 v64, v64, v135, v136"); a("v_max_u32 v64, v64, v137")
    a("v_cmp_eq_u32 vcc, -1, v64")
    a("s_cmp_eq_u64 vcc, 0")
    a("s_cbranch_scc1 L_go1")
    a("s_sub_u32 s63, s63, 1"); a("s_cmp_lg_u32 s63, 0")
    a("s_cbranch_scc1 L_chk1")
    a.label("L_go1")
    tstamp(2)
    a("v_max_f32_dpp v64, v136, v136 row_ror:8 row_mask:0xf bank_mask:0xf")
    a("v_mov_b32 v65, v64"); a("v_permlane16_swap_b32 v64, v65"); a("v_max_f32 v64, v64, v65")
    a("v_mov_b32 v65, v64"); a("v_permlane32_swap_b32 v64, v65"); a("v_max_f32 v64, v64, v65")
    a("v_sub_f32 v64, v136, v64"); a("v_exp_f32 v64, v64")
    a("v_mul_f32 v66, v64, v137")
    for r in range(8): a(f"v_mul_f32 v{128+r}, v64, v{128+r}")
    a("v_add_f32_dpp v66, v66, v66 row_ror:8 row_mask:0xf bank_mask:0xf")
    for r in range(4): a(f"v_permlane32_swap_b32 v{128+r}, v{132+r}")
    a("v_mov_b32 v65, v66"); a("v_permlane16_swap_b32 v66, v65"); a("v_add_f32 v66, v66, v65")
    for r in range(4): a(f"v_add_f32 v{128+r}, v{128+r}, v{132+r}")
    a("v_mov_b32 v65, v66"); a("v_permlane32_swap_b32 v66, v65"); a("v_add_f32 v66, v66, v65")
    a("v_permlane16_swap_b32 v128, v130"); a("v_permlane16_swap_b32 v129, v131")
    a("v_rcp_f32 v66, v66")
    a("v_add_f32 v128, v128, v130"); a("v_add_f32 v129, v129, v131")
    a("v_add_f32_dpp v128, v128, v128 row_ror:8 row_mask:0xf bank_mask:0xf")
    a("v_add_f32_dpp v129, v129, v129 row_ror:8 row_mask:0xf bank_mask:0xf")
    a("v_mul_f32 v128, v128, v66"); a("v_mul_f32 v129, v129, v66")
    a("v_cvt_pk_bf16_f32 v128, v128, v128"); a("v_cvt_pk_bf16_f32 v129, v129, v129")
    a(f"ds_write_b64 v23, v[128:129] offset:{L_OB}")
    a("s_waitcnt lgkmcnt(0)")
    a.label("L_b3b")
    a("s_barrier")
    a("s_cmp_ge_u32 s65, 2048")
    a("s_cbranch_scc1 L_fin")
    if lpos == 2:
        for l in late: a(l)
        mlp_part("s_waitcnt vmcnt(0)")
    for k in range(3): a(f"ds_read_b64 v[{128+2*k}:{129+2*k}], v7 offset:{L_OB+8*k}")
    a("s_waitcnt lgkmcnt(0)")
    for i in range(6):
        for r in range(4): a(f"v_and_b32 v{64+4*i+r}, v{MSK+r}, v{128+i}")
        if i >= 1:
            a(f"{MF} v[{PD}:{PD+3}], v[{64+4*(i-1)}:{67+4*(i-1)}], v[{WO+4*(i-1)}:{WO+3+4*(i-1)}], v[{PD}:{PD+3}]")
    a(f"{MF} v[{PD}:{PD+3}], v[84:87], v[{WO+20}:{WO+23}], v[{PD}:{PD+3}]")
    for r in range(4): a(f"v_mov_b32 v{20+r}, v{PD+r}")
    for r in range(4): a(f"v_permlane32_swap_b32 v{PD+r}, v{20+r}")
    for r in range(4): a(f"v_add_f32_dpp v{24+r}, v{20+r}, v{PD+r} row_ror:8 row_mask:0xf bank_mask:0xf")
    for r in range(4): a(f"v_min_u32 v{24+r}, -2, v{24+r}")
    a("s_mov_b64 exec, 0x00ff00ff")
    a(f"buffer_store_dwordx4 v[24:27], v11, {WS_}, s58 offen sc1")
    a("s_mov_b64 exec, -1")
    tstamp(3)
    a("s_branch L_fin")
    a.label("L_w0")
    a("v_mov_b32 v65, 0")
    a("v_mul_u32_u24 v66, 43, v2"); a("v_lshrrev_b32 v66, 9, v66")
    a("v_mul_u32_u24 v67, 12, v66"); a("v_sub_u32 v67, v2, v67")
    a("v_lshlrev_b32 v66, 11, v66"); a("v_lshl_add_u32 v66, v67, 4, v66")
    a("v_subrev_u32 v67, 48, v2"); a("v_lshlrev_b32 v67, 11, v67"); a("v_add_u32 v67, 192, v67")
    a("v_cmp_gt_u32 vcc, 48, v2")
    a("v_cndmask_b32 v66, v67, v66, vcc")
    a("s_mov_b32 s62, 0"); a("s_mov_b32 s63, 0xffff0000")
    a("s_waitcnt lgkmcnt(0)")
    a("s_barrier")
    tstamp(1)
    for k in range(4): a(f"ds_read_b128 v[{20+4*k}:{23+4*k}], v65 offset:{L_ML+16*k}")
    for w in range(10): a(f"ds_read_b128 v[{148+4*w}:{151+4*w}], v6 offset:{L_OP+768*w}")
    a("s_waitcnt lgkmcnt(0)" if st == "tail" else "s_waitcnt lgkmcnt(9)")
    for w in range(10, 16): a(f"ds_read_b128 v[{148+4*w}:{151+4*w}], v6 offset:{L_OP+768*w}")
    a("v_max3_f32 v68, v20, v22, v24"); a("v_max3_f32 v68, v68, v26, v28")
    a("v_max3_f32 v68, v68, v30, v32"); a("v_max_f32 v68, v68, v34")
    for w in range(8): a(f"v_sub_f32 v{20+2*w}, v{20+2*w}, v68")
    for w in range(8): a(f"v_exp_f32 v{20+2*w}, v{20+2*w}")
    a("v_mul_f32 v69, v20, v21")
    for w in range(1, 8): a(f"v_fmac_f32 v69, v{20+2*w}, v{21+2*w}")
    a("s_waitcnt lgkmcnt(0)")
    for w in range(8):
        a(f"v_pk_add_f32 v[{148+8*w}:{149+8*w}], v[{148+8*w}:{149+8*w}], v[{152+8*w}:{153+8*w}]")
        a(f"v_pk_add_f32 v[{150+8*w}:{151+8*w}], v[{150+8*w}:{151+8*w}], v[{154+8*w}:{155+8*w}]")
    for r in range(4): a(f"v_mul_f32 v{72+r}, v20, v{148+r}")
    for w in range(1, 8):
        for r in range(4): a(f"v_fmac_f32 v{72+r}, v{20+2*w}, v{148+8*w+r}")
    a("v_cndmask_b32 v72, v72, v68, s[62:63]"); a("v_cndmask_b32 v73, v73, v69, s[62:63]")
    a("v_cndmask_b32 v74, v74, v68, s[62:63]"); a("v_cndmask_b32 v75, v75, v69, s[62:63]")
    for r in range(4): a(f"v_min_u32 v{72+r}, -2, v{72+r}")
    a("s_mov_b32 exec_lo, -1"); a("s_mov_b32 exec_hi, 0xfffff")
    a("s_cmp_eq_u32 s66, 2"); a("s_cbranch_scc1 L_h1L")
    a(f"buffer_store_dwordx4 v[72:75], v66, {WS_}, s56 offen sc1")
    a("s_mov_b64 exec, -1")
    a("s_branch L_b3b")
    a.label("L_h1L")
    a(f"buffer_store_dwordx4 v[72:75], v66, {WS_}, s56 offen")
    a("s_mov_b64 exec, -1")
    tstamp(2)
    a("s_branch L_b3b")
    a.label("L_fin")
    tstamp(5); tstamp(6); stamp(6)
    a("s_cmp_ge_u32 s2, 20")
    a("s_cbranch_scc1 L_done")
    a("v_lshrrev_b32 v15, 3, v0"); a("v_mul_u32_u24 v15, 2560, v15")
    a("v_add_u32 v15, v15, v3")
    a("s_lshl_b32 s62, s2, 7"); a("s_add_u32 s62, s62, %d" % MB2_OFF); a("s_add_u32 s61, s62, %d" % (64 * 2560))
    a("v_lshlrev_b32 v16, 2, v2"); a("s_lshl_b32 s60, s2, 6")
    a(f"buffer_load_dword v17, v16, {X_}, s60 offen")
    a(f"s_mov_b32 s63, {SPIN_MAX}")
    def p2(k):
        b = 72 + 8 * k
        a(f"buffer_load_dwordx4 v[{b}:{b+3}], v15, {WS_}, s62 offen sc1")
        a(f"buffer_load_dwordx4 v[{b+4}:{b+7}], v15, {WS_}, s61 offen sc1")
    for k in range(NP2):
        p2(k)
        if k < NP2 - 1: a(f"s_sleep {gap2}")
    a.label("L_poll2")
    for k in range(NP2):
        b = 72 + 8 * k
        a(f"s_waitcnt vmcnt({2*(NP2-1)})")
        a(f"v_max3_u32 v18, v{b}, v{b+1}, v{b+2}"); a(f"v_max3_u32 v18, v18, v{b+3}, v{b+4}"); a(f"v_max3_u32 v18, v18, v{b+5}, v{b+6}"); a(f"v_max_u32 v18, v18, v{b+7}")
        for r in range(4): a(f"v_add_f32 v{64+r}, v{b+r}, v{b+4+r}")
        a("v_cmp_eq_u32 vcc, -1, v18")
        a("s_cmp_eq_u64 vcc, 0")
        a("s_cbranch_scc1 L_go2")
        p2(k)
    a("s_sub_u32 s63, s63, 1"); a("s_cmp_lg_u32 s63, 0")
    a("s_cbranch_scc1 L_poll2")
    a.label("L_go2")
    tstamp(6)
    a("v_permlane32_swap_b32 v64, v66"); a("v_permlane32_swap_b32 v65, v67")
    a("v_add_f32 v64, v64, v66"); a("v_add_f32 v65, v65, v67")
    a("v_permlane16_swap_b32 v64, v65"); a("v_add_f32 v64, v64, v65")
    a("v_add_f32_dpp v64, v64, v64 row_ror:8 row_mask:0xf bank_mask:0xf")
    a("v_lshrrev_b32 v18, 4, v2"); a("v_lshlrev_b32 v18, 2, v18")
    a("s_lshl_b32 s62, s3, 7")
    a("v_add3_u32 v18, v18, v3, s62")
    a(f"ds_write_b32 v18, v64 offset:{L_FIN}")
    a("s_waitcnt lgkmcnt(0)")
    a("s_barrier")
    a("s_cmp_lg_u32 s3, 0")
    a("s_cbranch_scc1 L_done")
    a("s_mov_b64 exec, 0xffff")
    a("v_lshlrev_b32 v18, 3, v2")
    for w in range(8): a(f"ds_read_b64 v[{160+2*w}:{161+2*w}], v18 offset:{L_FIN+128*w}")
    unpack(17, 64, 65)
    a("s_waitcnt lgkmcnt(0)")
    for w in range(8):
        a(f"v_add_f32 v64, v64, v{160+2*w}"); a(f"v_add_f32 v65, v65, v{161+2*w}")
    a("v_cvt_pk_bf16_f32 v64, v64, v65")
    a(f"buffer_store_dword v64, v16, {OUT_}, s60 offen")
    a("s_mov_b64 exec, -1")
    a.label("L_done")
    if st: a("s_waitcnt vmcnt(0)" if False else "s_nop 0")
    if st == "wave":
        a("s_waitcnt lgkmcnt(0)")
        a("v_mov_b32 v64, s88"); a("v_mov_b32 v65, s89"); a("v_mov_b32 v66, s96"); a("v_mov_b32 v67, s97")
        a("s_lshl_b32 s63, s2, 7"); a("s_lshl_b32 s62, s3, 4"); a("s_add_u32 s63, s63, s62"); a(f"s_add_u32 s63, s63, {STAMP_OFF}")
        a("v_mov_b32 v15, 0"); a("s_mov_b64 exec, 1")
        a(f"buffer_store_dwordx4 v[64:67], v15, {WS_}, s63 offen")
    elif st:
        a("s_memrealtime s[86:87]")
        a("s_cmp_eq_u32 s3, 0"); a("s_cselect_b32 s62, 0, 1")
        a(f"s_cmp_eq_u32 s3, {AUX}"); a("s_cselect_b32 s63, 0, 1")
        a("s_and_b32 s63, s63, s62"); a("s_cmp_eq_u32 s63, 1"); a("s_cbranch_scc1 L_end")
        a("s_waitcnt lgkmcnt(0)")
        for i in range(7):
            a(f"v_mov_b32 v{64+2*i}, s{88+2*i}"); a(f"v_mov_b32 v{65+2*i}, s{89+2*i}")
        a("v_mov_b32 v78, s86"); a("v_mov_b32 v79, s87")
        a("s_lshl_b32 s63, s2, 7"); a("s_lshl_b32 s62, s62, 6"); a("s_add_u32 s63, s63, s62"); a(f"s_add_u32 s63, s63, {STAMP_OFF}")
        a("v_mov_b32 v15, 0"); a("s_mov_b64 exec, 1")
        for i in range(4): a(f"buffer_store_dwordx4 v[{64+4*i}:{67+4*i}], v15, {WS_}, s63 offen offset:{16*i}")
    a.label("L_end")
    a("s_endpgm")
    R('.section .rodata,"a"'); R(".p2align 6"); R(f".amdhsa_kernel {KN}")
    R("  .amdhsa_next_free_vgpr 256"); R("  .amdhsa_next_free_sgpr 102"); R("  .amdhsa_accum_offset 256")
    R("  .amdhsa_group_segment_fixed_size 0"); R("  .amdhsa_kernarg_size 96"); R("  .amdhsa_user_sgpr_count 2")
    R("  .amdhsa_user_sgpr_kernarg_segment_ptr 1"); R("  .amdhsa_system_sgpr_workgroup_id_x 1"); R(".end_amdhsa_kernel")
    txt = a.text()
    if pol != 'nt': txt = txt.replace(" nt\n", " " + pol + "\n")
    open(fname, "w").write(txt)

if __name__ == "__main__":
    E = [4, 8, 11, 14, 17, 20, 24, 27]
    base = dict(entries=E, budget=1, wfirst=False, psleep=24, pre=6)
    gen("k14.s", **base)
    gen("k14_p1.s", pol="sc0 sc1 nt", **base)
    gen("k14_p2.s", pol="sc1 nt", **base)
    gen("k14_p3.s", pol="sc0 nt", **base)
```

```python
import sys
from asmlib import Asm
KN = "parallel_sum__sliding_block_cached__glu_gated_swiglu__decode_kernel"

MBX_OFF, MB2_OFF, QX_OFF, QMB_OFF = 0x80000, 0x100000, 0x200000, 0x60000
STAMP_OFF = 64 << 20
L_P1 = 0
L_QB = 2816
L_HB = L_QB + 384
L_FLAG = 3328
L_OB = 3392
L_ML = 3584
L_OP = 3712
L_FIN = 16256
LDS_SIZE = 17408
OOB = 0x40000000
LOG2E = 0x3fb8aa3b
SCALE = 0x3d93cd3a
SPIN_MAX = 1 << 20
AUX = 7
CLR = 6

K_, V_, WS_, WQ_, WO_, W1_, W3_, W2_, X_, OUT_, DBG_ = [f"s[{i}:{i+3}]" for i in range(8, 52, 4)]
DPP3 = ("quad_perm:[1,0,3,2]", "quad_perm:[2,3,0,1]", "row_half_mirror")
KB, VB = 40, 148
DACC, MSK, AOP, WO, W2, PD = 40, 52, 56, 92, 116, 124
MF = "v_mfma_f32_16x16x32_bf16"

class VM:
    def __init__(self, a):
        self.a = a; self.n = 0; self.done = 0
    def issue(self, s):
        self.a(s); self.n += 1; return self.n - 1
    def wait_id(self, i):
        if i < self.done: return
        self.a(f"s_waitcnt vmcnt({self.n - 1 - i})"); self.done = i + 1
    def throttle(self, T):
        if self.n - self.done > T - 1:
            self.a(f"s_waitcnt vmcnt({T-1})"); self.done = self.n - (T - 1)
    def set(self, n, d):
        self.n = n; self.done = d

def gen(fname, T=4, TL=None, NV=2, budget=2, prio=1, st=None, wfirst=True, abl='', tlb=0, psleep=2, pre=0, cpos=0, cpol='sc1', cnum=5, h1pol='sc1', pupol='sc1', qppol='sc1', xcpos=5, forcex=0, NP2=1, gap2=4, NP1=1, gap1=2, lpos=0, rot=3, fine=0, entries=None, spol='nt', tag=0, xnt=0, pubnt=0):
    TL = T if TL is None else TL
    MB2_OFF = QX_OFF if tag else 0x100000
    a = Asm()
    R = a.raw
    R("; fused decode: layernorm + q-proj + sliding-window attention + out-proj + swiglu MLP")
    R(f"; @launch grid=(256,1,1) block=(512,1,1) lds={LDS_SIZE}")
    R('.amdgcn_target "amdgcn-amd-amdhsa--gfx950"')
    R(".text"); R(f".globl {KN}"); R(".p2align 8"); R(f".type {KN},@function"); R(f"{KN}:")
    def stamp(i, kinds=("main", "wave")):
        if st in kinds: a(f"s_memrealtime s[{88+2*i}:{89+2*i}]")
    def tstamp(i): stamp(i, ("tail",))
    def unpack(src, dlo, dhi):
        a(f"v_lshlrev_b32 v{dlo}, 16, v{src}"); a(f"v_and_b32 v{dhi}, 0xffff0000, v{src}")
    def lohi(src, d):
        a(f"v_and_b32 v{d}, 0xffff, v{src}"); a(f"v_lshlrev_b32 v{d+1}, 16, v{src}")
        a(f"v_lshrrev_b32 v{d+2}, 16, v{src}"); a(f"v_and_b32 v{d+3}, 0xffff0000, v{src}")
    def exec_hi16():
        a("s_mov_b32 exec_lo, 0"); a("s_mov_b32 exec_hi, 0xffff0000")
    def exec_valid():
        a("s_mov_b32 exec_lo, 0x00ff00ff"); a("s_mov_b32 exec_hi, 0xff00ff00")
    def srd(base, ptr, size):
        a(f"s_mov_b32 s{base}, s{ptr}"); a(f"s_mov_b32 s{base+1}, s{ptr+1}")
        a(f"s_mov_b32 s{base+2}, {size}"); a(f"s_mov_b32 s{base+3}, 0x00020000")
    def masks(d, t0, t1):
        a(f"v_and_b32 v{t0}, 1, v2"); a(f"v_lshlrev_b32 v{t0}, 4, v{t0}")
        a(f"v_mov_b32 v{t1}, 0xffff"); a(f"v_lshlrev_b32 v{t1}, v{t0}, v{t1}")
        a(f"v_bfe_u32 v{t0}, v2, 1, 2")
        for r in range(4):
            a(f"v_cmp_eq_u32 vcc, {r}, v{t0}")
            a(f"v_cndmask_b32 v{d+r}, 0, v{t1}, vcc")
    vm = VM(a)
    a("s_cmp_ge_u32 s2, 256")
    a("s_cbranch_scc1 L_end")
    stamp(0, ("main", "wave", "tail"))
    a("s_load_dwordx16 s[52:67], s[0:1], 0")
    a("s_load_dwordx8 s[68:75], s[0:1], 64")
    a("v_lshrrev_b32 v15, 6, v0")
    a("v_and_b32 v2, 63, v0")
    a("v_readfirstlane_b32 s3, v15")
    a("s_and_b32 s4, s2, 31")
    a("s_lshr_b32 s5, s2, 5")
    a("s_lshr_b32 s6, s5, 1")
    a("s_and_b32 s7, s5, 1")
    a("v_lshrrev_b32 v15, 3, v2")
    a("v_and_b32 v3, 7, v2"); a("v_lshlrev_b32 v3, 4, v3")
    a("v_mul_u32_u24 v1, 384, v15"); a("v_add_u32 v1, v1, v3")
    a("v_lshlrev_b32 v6, 4, v2")
    a("s_mul_i32 s76, s4, 12582912"); a("s_mul_i32 s77, s5, %d" % (512 * 384))
    a("s_add_u32 s76, s76, s77"); a("s_add_u32 s76, s76, %d" % (28672 * 384))
    a(f"s_cmp_eq_u32 s3, {AUX}")
    a("s_cbranch_scc1 L_aux")

    SO = 78
    def kload(n, base=KB):
        i, j = divmod(n, 3); r = base + 4 * n
        return vm.issue(f"buffer_load_dwordx4 v[{r}:{r+3}], v1, {K_}, s{SO+i} offen offset:{j*128} nt")
    def vload(n, base=VB):
        i, j = divmod(n, 3); r = base + 4 * n
        return vm.issue(f"buffer_load_dwordx4 v[{r}:{r+3}], v1, {V_}, s{SO+i} offen offset:{j*128} nt")

    def setup_common():
        srd(16, 74, 1610612736); srd(24, 60, 7864320); srd(36, 68, 1966080); srd(44, 70, 1280); srd(48, 72, 256)
        srd(40, 52, 1280)
        a("s_mul_i32 s52, s4, 192"); a("s_mul_i32 s63, s6, 48"); a("s_add_u32 s52, s52, s63"); a("s_mul_i32 s52, s52, 1280")
        a("s_mul_i32 s63, s7, 640"); a("s_add_u32 s52, s52, s63")
        a("s_lshl_b32 s53, s4, 6"); a("s_lshl_b32 s62, s6, 4"); a("s_add_u32 s53, s53, s62"); a("s_mul_i32 s53, s53, 1280")
        a("s_add_u32 s53, s53, s63")
        a("s_cmp_lt_u32 s4, 24"); a("s_cselect_b32 s53, s53, %d" % OOB)
        a("s_sub_u32 s62, s3, 1"); a("s_cmp_lt_u32 s62, 4"); a("s_cselect_b32 s62, s62, 8"); a("s_cmp_eq_u32 s3, 7"); a("s_cselect_b32 s62, 4, s62")
        a("s_lshl_b32 s63, s62, 7"); a("s_cmp_lt_u32 s62, 5"); a("s_cselect_b32 s63, s63, %d" % OOB)
        a("s_add_u32 s52, s52, s63"); a("s_add_u32 s53, s53, s63"); a("s_add_u32 s64, s52, 5120")
        a("s_lshl_b32 s65, s62, 8")
        a("s_lshl_b32 s54, s4, 13"); a("s_add_u32 s54, s54, %d" % MBX_OFF)
        a("s_lshl_b32 s62, s6, 11"); a("s_add_u32 s55, s54, s62")
        a("s_lshl_b32 s62, s5, 8"); a("s_add_u32 s56, s54, s62")
        a("s_mul_i32 s57, s4, 10240"); a("s_add_u32 s57, s57, %d" % QX_OFF)
        a("s_lshl_b32 s58, s4, 2"); a("s_add_u32 s58, s58, s6"); a("s_mul_i32 s58, s58, 2560")
        a("s_mul_i32 s62, s7, 1280"); a("s_add_u32 s58, s58, s62"); a("s_add_u32 s58, s58, %d" % MB2_OFF); a("s_add_u32 s58, s58, s65")
        a("s_mul_i32 s59, s4, 10240"); a("s_mul_i32 s62, s5, 1280"); a("s_add_u32 s59, s59, s62"); a("s_add_u32 s59, s59, %d" % QX_OFF)
    def setup_proj():
        a("v_lshrrev_b32 v15, 3, v2")
        a("v_mul_u32_u24 v4, 7680, v15"); a("v_add_u32 v4, v4, v3")
        a("v_mul_u32_u24 v5, 2560, v15"); a("v_add_u32 v5, v5, v3")
        a("v_lshlrev_b32 v9, 2, v15"); a("s_lshl_b32 s87, s6, 5"); a("v_add_u32 v9, s87, v9")
        a("v_lshlrev_b32 v8, 4, v3")
        a("v_mul_u32_u24 v7, 24, v15")
        a("v_and_b32 v16, 16, v2")
        a("v_lshl_add_u32 v11, v3, 1, v16")
        a("v_lshrrev_b32 v15, 5, v2"); a("v_mul_u32_u24 v15, 768, v15")
        a("s_mul_i32 s87, s3, 1536")
        a("v_add3_u32 v14, v11, v15, s87")

    late = [f"buffer_load_dwordx4 v[{W2+4*i}:{W2+3+4*i}], v5, {W2_}, s53 offen offset:{1280*i} nt" for i in range(2)]
    late += [f"buffer_load_dwordx4 v[{WO+4*i}:{WO+3+4*i}], v4, {WO_}, {'s52' if i < 4 else 's64'} offen offset:{1280*(i%4)} nt" for i in range(6)]

    def read_q():
        for j in range(3):
            a(f"ds_read_b128 v[{20+4*j}:{23+4*j}], v3 offset:{L_QB+128*j}")
        a(f"ds_read_b32 v10, v9 offset:{L_HB}")
    def t_score(groups, sc, kb, first):
        def f():
            if first: a("s_waitcnt lgkmcnt(0)")
            for i in groups: a(f"v_mov_b32 v{sc[i]}, 0")
            for j in range(3):
                for r in range(4):
                    for i in groups:
                        a(f"v_dot2c_f32_bf16 v{sc[i]}, v{kb+12*i+4*j+r}, v{20+4*j+r}")
            for m in DPP3:
                for i in groups:
                    a(f"v_add_f32_dpp v{sc[i]}, v{sc[i]}, v{sc[i]} {m} row_mask:0xf bank_mask:0xf")
            s0 = sc[groups[0]]; s1 = sc[groups[-1]]
            for rnd in range(2):
                a(f"v_cvt_pk_bf16_f32 v15, v{s0}, v{s1}")
                a(f"v_lshlrev_b32 v{s0}, 16, v15")
                if s1 != s0: a(f"v_and_b32 v{s1}, 0xffff0000, v15")
                if rnd == 0:
                    for i in groups: a(f"v_mul_f32 v{sc[i]}, {SCALE:#x}, v{sc[i]}")
        return f
    def t_softmax(G, sc):
        def f1():
            a(f"v_mov_b32 v15, v{sc[0]}")
            rest = list(range(1, G))
            for k in range(0, len(rest), 2): a(f"v_max3_f32 v15, v15, v{sc[rest[k]]}, v{sc[rest[k+1]]}")
            a("v_max_f32_dpp v15, v15, v15 row_ror:8 row_mask:0xf bank_mask:0xf")
            for r in range(DACC, DACC + 12): a(f"v_mov_b32 v{r}, 0")
            a("v_mov_b32 v16, v15"); a("v_permlane16_swap_b32 v15, v16"); a("v_max_f32 v15, v15, v16")
            a("v_mov_b32 v16, v15"); a("v_permlane32_swap_b32 v15, v16"); a("v_max_f32 v15, v15, v16")
            a(f"v_mul_f32 v12, {LOG2E:#x}, v15")
            masks(MSK, 17, 18)
        def f2():
            a(f"s_mov_b32 s62, {LOG2E:#x}")
            for i in range(G): a(f"v_fma_f32 v{sc[i]}, v{sc[i]}, s62, -v12")
            for i in range(G): a(f"v_exp_f32 v{sc[i]}, v{sc[i]}")
            for i in range(G): a(f"v_cvt_pk_bf16_f32 v{sc[i]}, v{sc[i]}, v{sc[i]}")
        def f3():
            for i in range(G):
                for r in range(4): a(f"v_and_b32 v{AOP+4*i+r}, v{MSK+r}, v{sc[i]}")
        def f4():
            a(f"v_and_b32 v13, 0xffff0000, v{sc[0]}")
            for i in range(1, G):
                a(f"v_and_b32 v15, 0xffff0000, v{sc[i]}"); a("v_add_f32 v13, v13, v15")
            a("v_add_f32_dpp v13, v13, v13 row_ror:8 row_mask:0xf bank_mask:0xf")
            a("v_mov_b32 v16, v13"); a("v_permlane16_swap_b32 v13, v16"); a("v_add_f32 v13, v13, v16")
            a("v_mov_b32 v16, v13"); a("v_permlane32_swap_b32 v13, v16"); a("v_add_f32 v13, v13, v16")
            a("s_lshl_b32 s62, s3, 3"); a("v_mov_b32 v16, s62")
            a(f"ds_write_b64 v16, v[12:13] offset:{L_ML}")
        return [f1, f2, f3, f4]
    def t_pv(n, vb):
        def f():
            i, j = divmod(n, 3)
            d = DACC + 4 * j
            a(f"{MF} v[{d}:{d+3}], v[{AOP+4*i}:{AOP+3+4*i}], v[{vb+4*n}:{vb+3+4*n}], v[{d}:{d+3}]")
        return f

    if rot == 2:
        a("s_lshr_b32 s77, s2, 3"); a("s_add_u32 s77, s77, s3"); a("s_add_u32 s77, s77, s2")
    elif rot == 3:
        a("s_lshr_b32 s77, s2, 3"); a("s_add_u32 s77, s77, s2")
    else:
        a("s_mov_b32 s77, 0")
    a("s_mul_i32 s87, s77, 57"); a("s_lshr_b32 s87, s87, 9"); a("s_mul_i32 s87, s87, 9"); a("s_sub_u32 s77, s77, s87")
    a("s_mul_i32 s87, s3, 3072"); a("s_add_u32 s76, s76, s87")
    for i in range(9):
        a(f"s_add_u32 s{SO+i}, s77, {i}"); a(f"s_sub_u32 s87, s{SO+i}, 9"); a(f"s_cmp_ge_u32 s{SO+i}, 9")
        a(f"s_cselect_b32 s{SO+i}, s87, s{SO+i}"); a(f"s_mul_i32 s{SO+i}, s{SO+i}, {7*3072}"); a(f"s_add_u32 s{SO+i}, s{SO+i}, s76")
    if prio:
        a("s_cmp_lt_u32 s3, 4"); a("s_cbranch_scc1 L_noprio"); a(f"s_setprio {prio}"); a.label("L_noprio")
    setup_proj()
    a("s_waitcnt lgkmcnt(0)")
    srd(8, 54, 402653184)
    kid = {}
    if not wfirst:
        for n in range(T): kid[n] = kload(n)
    srd(12, 56, 402653184)
    setup_common()
    if tlb:
        a("s_cmp_lg_u32 s3, 5"); a("s_cbranch_scc1 L_notlb")
        a("s_mov_b64 exec, 1"); a("v_mov_b32 v20, 0")
        a("s_add_u32 s62, s76, %d" % (196608 - 5 * 3072 - 64))
        a(f"buffer_load_dword v21, v20, {V_}, s76 offen nt")
        a(f"buffer_load_dword v22, v20, {V_}, s62 offen nt")
        a(f"buffer_load_dword v23, v20, {K_}, s62 offen nt")
        a(f"buffer_load_dword v24, v20, {WO_}, s52 offen nt")
        a(f"buffer_load_dword v25, v20, {W2_}, s53 offen nt")
        a(f"buffer_load_dword v26, v20, {WS_}, s57 offen nt")
        a(f"buffer_load_dword v27, v20, {OUT_}, 0 offen nt")
        a("s_mov_b64 exec, -1")
        a.label("L_notlb")
    a("s_barrier")
    if wfirst:
        for n in range(T): kid[n] = kload(n)
    for n in range(T, 27):
        vm.throttle(T); kid[n] = kload(n)
    sc = [32 + i for i in range(8)] + [19]
    groups = ((0, 1), (2, 3), (4, 5), (6, 7), (8,)) if not fine else tuple((i,) for i in range(9))
    def continuation(nv, vid, bud):
        read_q()
        tasks = [(lambda g=g: kid[3 * g[-1] + 2], t_score(g, sc, KB, g[0] == 0), 4) for g in groups]
        tasks += [(lambda: -1, f, 4) for f in t_softmax(9, sc)]
        tasks += [(lambda n=n: vid.get(n, 10**9), t_pv(n, VB), 0.5) for n in range(27)]
        ndone = 0
        for n in range(nv, 35):
            if n >= 27:
                while ndone < len(groups) + 3:
                    t = tasks.pop(0)
                    if t[0]() >= 0: vm.wait_id(t[0]())
                    t[1](); ndone += 1
            if n < 27 + TL - 1: vm.throttle(TL)
            if n < 27: vid[n] = vload(n)
            elif lpos == 0: vm.issue(late[n - 27])
            b = bud * 4
            while b > 0 and tasks and tasks[0][0]() < vm.done:
                t = tasks.pop(0); t[1](); b -= t[2]; ndone += 1
        while tasks:
            req, f, c = tasks.pop(0)
            if req() >= 0: vm.wait_id(req())
            f()
        stamp(4)
        a("s_branch L_tail")
    ent = entries if entries else [NV]
    vid = {}
    saved = []
    a(f"v_mov_b32 v15, {L_FLAG}")
    for n in range(ent[-1]):
        if n + 1 in ent[:-1]: a("ds_read_b32 v16, v15")
        vm.throttle(T); vid[n] = vload(n)
        if n + 1 in ent[:-1]:
            a("s_waitcnt lgkmcnt(0)")
            a("v_readfirstlane_b32 s66, v16")
            a("s_cmp_lg_u32 s66, 0")
            a(f"s_cbranch_scc1 L_cont{n+1}")
            saved.append((n + 1, dict(vid), (vm.n, vm.done)))
    stamp(2)
    a(f"s_mov_b32 s63, {SPIN_MAX}")
    a.label("L_flag")
    a("ds_read_b32 v16, v15")
    a("s_waitcnt lgkmcnt(0)")
    a("v_readfirstlane_b32 s66, v16")
    a("s_cmp_lg_u32 s66, 0")
    a("s_cbranch_scc1 L_flagok")
    a("s_sleep 2")
    a("s_sub_u32 s63, s63, 1")
    a("s_cmp_lg_u32 s63, 0")
    a("s_cbranch_scc1 L_flag")
    a.label("L_flagok")
    stamp(3)
    def bud_for(nv): return budget if nv <= 16 else 2 * budget
    continuation(ent[-1], vid, bud_for(ent[-1]))
    for (nv, v, stt) in saved:
        a.label(f"L_cont{nv}")
        vm.set(*stt)
        stamp(2); stamp(3)
        continuation(nv, v, bud_for(nv))

    a.label("L_aux")
    vm.set(0, 0)
    a("s_setprio 2")
    a(f"v_mov_b32 v16, {L_FLAG}"); a("v_mov_b32 v17, 0")
    a("ds_write_b32 v16, v17")
    a("v_mul_u32_u24 v4, 122880, v15"); a("v_add_u32 v4, v4, v3")
    a("v_mul_u32_u24 v5, 30720, v15"); a("v_add_u32 v5, v5, v3")
    a("v_mul_u32_u24 v7, 20, v15")
    a(f"s_add_u32 s{SO}, s76, {63*3072}")
    a("s_mul_i32 s79, s5, 160")
    a("s_mul_i32 s80, s5, %d" % (80 * 12288)); a("s_mul_i32 s77, s4, 384"); a("s_add_u32 s80, s80, s77")
    a("s_mul_i32 s81, s5, %d" % (80 * 3072)); a("s_lshl_b32 s77, s4, 7"); a("s_add_u32 s81, s81, s77")
    a("s_cmp_lt_u32 s4, 24"); a("s_cselect_b32 s81, s81, %d" % OOB)
    a("s_lshl_b32 s82, s2, 9"); a("s_add_u32 s82, s82, %d" % QMB_OFF)
    a("v_lshlrev_b32 v14, 3, v2")
    a("s_lshl_b32 s83, s4, 13"); a("s_lshl_b32 s77, s5, 8"); a("s_add_u32 s83, s83, s77"); a("s_add_u32 s83, s83, %d" % MBX_OFF)
    a("v_lshrrev_b32 v12, 4, v2"); a("v_lshlrev_b32 v12, 11, v12"); a("v_and_b32 v13, 15, v2"); a("v_lshl_add_u32 v12, v13, 4, v12")
    a("s_lshl_b32 s84, s4, 2"); a("s_add_u32 s84, s84, s6"); a("s_mul_i32 s84, s84, 2560")
    a("s_mul_i32 s77, s7, 1280"); a("s_add_u32 s84, s84, s77"); a("s_add_u32 s84, s84, %d" % MB2_OFF)
    a("s_getreg_b32 s85, hwreg(HW_REG_XCC_ID)"); a("s_and_b32 s85, s85, 15")
    a("s_mul_i32 s77, s85, s85"); a("s_lshl_b32 s77, s77, 12"); a("s_lshl_b32 s85, s85, 4"); a("s_add_u32 s85, s85, s77"); a("s_add_u32 s85, s85, 1")
    masks(8, 16, 17)
    for r in range(52, 56): a(f"v_mov_b32 v{r}, -1")
    a("s_waitcnt lgkmcnt(0)")
    srd(16, 74, 1610612736); srd(48, 72, 256)
    def clears():
        if 'a' in abl: return
        vm.issue(f"buffer_store_dwordx2 v[52:53], v14, {WS_}, s82 offen {cpol}")
        if cnum < 2: return
        vm.issue(f"buffer_store_dwordx4 v[52:55], v12, {WS_}, s83 offen {cpol}")
        if tag: return
        vm.issue(f"buffer_store_dwordx4 v[52:55], v6, {WS_}, s84 offen {cpol}")
        a("s_mov_b64 exec, 0xffff")
        vm.issue(f"buffer_store_dwordx4 v[52:55], v6, {WS_}, s84 offen offset:1024 {cpol}")
        a("s_mov_b64 exec, -1")
    if cpos == 0: clears()
    srd(40, 52, 1280); srd(20, 58, 7864320)
    ix0 = vm.issue(f"buffer_load_dwordx4 v[32:35], v6, {X_}, 0 offen")
    ix1 = vm.issue(f"buffer_load_dwordx4 v[36:39], v6, {X_}, 0 offen offset:1024")
    vm.issue(f"buffer_load_dwordx4 v[16:19], v7, {X_}, s79 offen")
    ixo = vm.issue(f"buffer_load_dword v15, v7, {X_}, s79 offen offset:16")
    srd(28, 64, 1966080); srd(32, 66, 1966080)
    iw = {}
    for i in range(10):
        b = 56 + 20 * i
        for j in range(3):
            vm.issue(f"buffer_load_dwordx4 v[{b+4*j}:{b+3+4*j}], v4, {WQ_}, s80 offen offset:{128*j} nt")
        vm.issue(f"buffer_load_dwordx4 v[{b+12}:{b+15}], v5, {W1_}, s81 offen nt")
        iw[i] = vm.issue(f"buffer_load_dwordx4 v[{b+16}:{b+19}], v5, {W3_}, s81 offen nt")
        if i < 9:
            a("s_add_u32 s80, s80, 12288"); a("s_add_u32 s81, s81, 3072")
    a("s_barrier")
    if cpos == 1: clears()
    srd(8, 54, 402653184); srd(12, 56, 402653184)
    setup_common()
    a("s_and_b32 s62, s4, 16"); a("s_add_u32 s62, s62, s4"); a("s_lshl_b32 s62, s62, 2"); a("v_mov_b32 v12, s62")
    a("v_mov_b32 v13, s85")
    vm.wait_id(ixo)
    for k in range(4): unpack(16 + k, 20 + 2 * k, 21 + 2 * k)
    unpack(15, 28, 29)
    for r in range(8): unpack(32 + r, 40 + 2 * r, 41 + 2 * r)
    def wave_sum(v, sdst):
        for m in DPP3 + ("row_mirror",):
            a(f"v_add_f32_dpp v{v}, v{v}, v{v} {m} row_mask:0xf bank_mask:0xf")
        for k in range(4): a(f"v_readlane_b32 s{sdst+k}, v{v}, {16*k}")
        a(f"v_mov_b32 v{v}, s{sdst}")
        for k in range(1, 4): a(f"v_add_f32 v{v}, s{sdst+k}, v{v}")
    a("v_add_f32 v15, v40, v41")
    for r in range(42, 56): a(f"v_add_f32 v15, v15, v{r}")
    wave_sum(15, 60)
    a("v_mul_f32 v15, 0x3acccccd, v15")
    a("v_mov_b32 v16, 0")
    for r in range(40, 48):
        a(f"v_sub_f32 v17, v{r}, v15"); a("v_fmac_f32 v16, v17, v17")
    a("s_mov_b64 exec, 0xffff")
    for r in range(48, 56):
        a(f"v_sub_f32 v17, v{r}, v15"); a("v_fmac_f32 v16, v17, v17")
    a("s_mov_b64 exec, -1")
    wave_sum(16, 60)
    a("v_mul_f32 v16, 0x3acccccd, v16")
    a("v_cvt_pk_bf16_f32 v17, v15, v16")
    a("v_lshlrev_b32 v15, 16, v17")
    a("v_and_b32 v16, 0xffff0000, v17")
    a("v_add_f32 v16, 0x3727c5ac, v16")
    a("v_cvt_pk_bf16_f32 v16, v16, v16")
    a("v_lshlrev_b32 v16, 16, v16")
    a("v_sqrt_f32 v16, v16")
    a("v_cvt_pk_bf16_f32 v16, v16, v16")
    a("v_lshlrev_b32 v16, 16, v16")
    a("v_rcp_f32 v17, v16")
    for i in range(10): a(f"v_sub_f32 v{20+i}, v{20+i}, v15")
    for i in range(0, 10, 2):
        a(f"v_cvt_pk_bf16_f32 v18, v{20+i}, v{21+i}"); unpack(18, 20 + i, 21 + i)
    for i in range(10):
        a(f"v_mul_f32 v18, v{20+i}, v17")
        a(f"v_fma_f32 v19, -v18, v16, v{20+i}")
        a(f"v_fma_f32 v{20+i}, v19, v17, v18")
    for i in range(10): a(f"v_cvt_pk_bf16_f32 v{20+i}, v{20+i}, v{20+i}")
    for r in range(32, 52): a(f"v_mov_b32 v{r}, 0")
    a("v_lshrrev_b32 v15, 5, v2"); a("v_mul_u32_u24 v15, 1280, v15")
    a("v_and_b32 v16, 16, v2"); a("v_lshl_add_u32 v16, v3, 1, v16"); a("v_add_u32 v15, v15, v16")
    a("v_lshlrev_b32 v14, 3, v2")
    for i in range(10):
        for r in range(4): a(f"v_and_b32 v{52+r}, v{8+r}, v{20+i}")
        vm.wait_id(iw[i])
        b = 56 + 20 * i
        for c in range(5):
            a(f"{MF} v[{32+4*c}:{35+4*c}], v[52:55], v[{b+4*c}:{b+3+4*c}], v[{32+4*c}:{35+4*c}]")
    stamp(1)
    exec_valid()
    for c in range(5): a(f"ds_write_b128 v15, v[{32+4*c}:{35+4*c}] offset:{L_P1+256*c}")
    a("s_mov_b64 exec, -1")
    a("s_waitcnt lgkmcnt(0)")
    a(f"ds_read_b128 v[64:67], v6 offset:{L_P1}")
    a(f"ds_read_b128 v[68:71], v6 offset:{L_P1+1280}")
    a(f"ds_read_b128 v[72:75], v6 offset:{L_P1+256}")
    a(f"ds_read_b128 v[76:79], v6 offset:{L_P1+1280+256}")
    a("s_waitcnt lgkmcnt(0)")
    for r in range(4):
        a(f"v_add_f32 v{64+r}, v{64+r}, v{68+r}"); a(f"v_add_f32 v{72+r}, v{72+r}, v{76+r}")
    for r in range(4):
        a(f"v_and_b32 v{64+r}, -2, v{64+r}"); a(f"v_and_b32 v{72+r}, -2, v{72+r}")
    if 'b' in abl: a("s_branch L_atake")
    a(f"buffer_store_dwordx4 v[64:67], v6, {WS_}, s59 offen sc1" + (" nt " if pubnt else ""))
    exec_hi16()
    a(f"buffer_store_dwordx4 v[72:75], v6, {WS_}, s59 offen offset:256 sc1" + (" nt " if pubnt else ""))
    a("s_mov_b64 exec, -1")
    a("s_mov_b64 exec, 1")
    a("s_waitcnt vmcnt(0)")
    if 'n' in abl: pass
    elif 'r' in abl: a(f"buffer_atomic_add v13, v12, {DBG_}, 0 offen")
    elif 'w' in abl: a(f"buffer_atomic_add v13, v12, {WS_}, s82 offen sc0")
    else: a(f"buffer_atomic_add v13, v12, {DBG_}, 0 offen sc0")
    a("s_waitcnt vmcnt(0)")
    a("v_readfirstlane_b32 s62, v13")
    a("s_mov_b64 exec, -1")
    stamp(5)
    if 'c' in abl: a("s_branch L_atake")
    if st == "main":
        a("s_and_b32 s92, s62, 7"); a("s_mov_b32 s93, 0")
    a("s_mul_i32 s63, s85, 7"); a("s_cmp_eq_u32 s62, s63"); a("s_cselect_b32 s66, 2, 1")
    if forcex: a("s_mov_b32 s66, 1")
    a("s_add_u32 s67, s6, 1"); a("s_and_b32 s67, s67, 3"); a("s_lshl_b32 s67, s67, 2"); a("s_add_u32 s67, s67, 48")
    a("s_and_b32 s62, s62, 7"); a("s_cmp_eq_u32 s62, 7")
    a("s_cbranch_scc0 L_await")
    a("s_add_u32 s60, s57, 3840"); a("s_add_u32 s61, s57, 7680")
    if 'g' not in abl:
        for s in range(8):
            so = ("s57", "s60", "s61")[s // 3]
            a(f"buffer_load_dwordx4 v[{96+4*s}:{99+4*s}], v6, {WS_}, {so} offen offset:{(s%3)*1280} sc1")
        exec_hi16()
        for s in range(8):
            so = ("s57", "s60", "s61")[s // 3]
            a(f"buffer_load_dwordx4 v[{160+4*s}:{163+4*s}], v6, {WS_}, {so} offen offset:{(s%3)*1280+256} sc1")
        a("s_mov_b64 exec, -1")
        a("s_waitcnt vmcnt(0)")
    a.label("L_agot")
    for s in range(1, 8):
        for r in range(4):
            a(f"v_add_f32 v{96+r}, v{96+r}, v{96+4*s+r}")
            a(f"v_add_f32 v{160+r}, v{160+r}, v{160+4*s+r}")
    a("v_cvt_pk_bf16_f32 v20, v96, v97"); a("v_cvt_pk_bf16_f32 v21, v98, v99")
    a("v_cvt_pk_bf16_f32 v22, v160, v161"); a("v_cvt_pk_bf16_f32 v23, v162, v163")
    exec_hi16()
    unpack(20, 64, 65); unpack(21, 66, 67); unpack(22, 160, 161); unpack(23, 162, 163)
    for r in range(4): a(f"v_mul_f32 v{68+r}, {LOG2E|0x80000000:#x}, v{64+r}")
    for r in range(4): a(f"v_exp_f32 v{68+r}, v{68+r}")
    for r in range(4): a(f"v_add_f32 v{68+r}, 1.0, v{68+r}")
    for r in range(4): a(f"v_rcp_f32 v{72+r}, v{68+r}")
    for r in range(4): a(f"v_mul_f32 v{76+r}, v{64+r}, v{72+r}")
    a("v_cvt_pk_bf16_f32 v20, v76, v77"); a("v_cvt_pk_bf16_f32 v21, v78, v79")
    unpack(20, 64, 65); unpack(21, 66, 67)
    for r in range(4): a(f"v_mul_f32 v{64+r}, v{64+r}, v{160+r}")
    a("v_cvt_pk_bf16_f32 v20, v64, v65"); a("v_cvt_pk_bf16_f32 v21, v66, v67")
    a("s_mov_b64 exec, -1")
    a("v_min_u32 v20, -2, v20"); a("v_min_u32 v21, -2, v21")
    a("s_lshl_b32 s62, s4, 9"); a("s_add_u32 s62, s62, %d" % QMB_OFF)
    for rq in range(4):
        a(f"v_mov_b32 v{24+2*rq}, v20"); a(f"v_mov_b32 v{25+2*rq}, v21")
        a(f"v_writelane_b32 v{24+2*rq}, s66, {48 + 4 * ((rq + 1) & 3)}")
    a("s_cmp_eq_u32 s66, 2"); a("s_cbranch_scc1 L_pushL")
    for pol in ("sc1", ""):
        for s in range(8):
            a(f"buffer_store_dwordx2 v[{24+2*(s>>1)}:{25+2*(s>>1)}], v14, {WS_}, s62 offen {pol}")
            if s < 7: a("s_add_u32 s62, s62, %d" % (32 * 512))
        a("s_branch L_atake")
        if pol: a.label("L_pushL")
    a.label("L_await")
    if 'q' in abl: a("s_branch L_atake")
    for _ in range(pre): a("s_sleep 16")
    a(f"s_mov_b32 s63, {SPIN_MAX}")
    a.label("L_aspin")
    a(f"buffer_load_dwordx2 v[20:21], v14, {WS_}, s82 offen sc1")
    a("s_waitcnt vmcnt(0)")
    a("v_max_u32 v22, v20, v21")
    a("v_cmp_eq_u32 vcc, -1, v22")
    a("s_cmp_eq_u64 vcc, 0")
    a("s_cbranch_scc1 L_agotq")
    a("s_sub_u32 s63, s63, 1"); a("s_cmp_eq_u32 s63, 0")
    a("s_cbranch_scc1 L_agotq")
    a(f"s_sleep {psleep}")
    a("s_branch L_aspin")
    a.label("L_agotq")
    a("v_readlane_b32 s66, v20, s67")
    a("s_cmp_eq_u32 s66, 2"); a("s_cselect_b32 s66, 2, 1")
    a.label("L_atake")
    a(f"ds_write_b64 v14, v[20:21] offset:{L_QB}")
    a(f"v_mov_b32 v22, {L_FLAG}"); a("v_mov_b32 v23, s66")
    a("s_waitcnt lgkmcnt(0)")
    a("ds_write_b32 v22, v23")
    stamp(3)
    a("s_setprio 0")
    vm.set(0, 0)
    AK, AV = 160, 148
    kida = [kload(n, AK) for n in range(3)]
    vida = [vload(n, AV) for n in range(3)]
    setup_proj()
    if lpos == 0:
        for l in late: vm.issue(l)
    read_q()
    vm.wait_id(kida[2])
    t_score((0,), [32], AK, True)()
    for f in t_softmax(1, [32]): f()
    vm.wait_id(vida[2])
    for n in range(3): t_pv(n, AV)()
    if 'f' in abl: a("s_branch L_acntok")
    a("s_cmp_ge_u32 s2, 20"); a("s_cbranch_scc1 L_acntok")
    a("v_and_b32 v15, 15, v2"); a("v_and_b32 v16, 16, v2"); a("v_lshl_add_u32 v15, v16, 1, v15"); a("v_lshlrev_b32 v15, 2, v15")
    a(f"s_mov_b32 s63, {SPIN_MAX}")
    a.label("L_cnt")
    a(f"buffer_load_dword v16, v15, {DBG_}, 0 offen sc1")
    a("s_waitcnt vmcnt(0)")
    a("v_and_b32 v17, 7, v16")
    a("v_cmp_ne_u32 vcc, 0, v17")
    a("v_cmp_eq_u32 s[60:61], 0, v16")
    a("s_or_b64 vcc, vcc, s[60:61]")
    a("s_cmp_eq_u64 vcc, 0")
    a("s_cbranch_scc1 L_acntok")
    a("s_sub_u32 s63, s63, 1"); a("s_cmp_eq_u32 s63, 0")
    a("s_cbranch_scc1 L_acntok")
    a("s_sleep 16")
    a("s_branch L_cnt")
    a.label("L_acntok")
    stamp(4)

    a.label("L_tail")
    if 't' in abl:
        a("s_waitcnt vmcnt(0)"); a("s_branch L_done")
    exec_valid()
    for j in range(3): a(f"ds_write_b128 v14, v[{DACC+4*j}:{DACC+3+4*j}] offset:{L_OP+256*j}")
    a("s_mov_b64 exec, -1")
    def mlp_part(wait):
        a("v_and_b32 v16, 0xffff, v10"); a("v_lshl_or_b32 v16, v16, 16, v16")
        a("v_lshrrev_b32 v17, 16, v10"); a("v_lshl_or_b32 v17, v17, 16, v17")
        for r in range(4): a(f"v_mov_b32 v{PD+r}, 0")
        for i in range(2):
            for r in range(4): a(f"v_and_b32 v{28+4*i+r}, v{MSK+r}, v{16+i}")
        a(wait)
        for i in range(2):
            a(f"{MF} v[{PD}:{PD+3}], v[{28+4*i}:{31+4*i}], v[{W2+4*i}:{W2+3+4*i}], v[{PD}:{PD+3}]")
    a("s_cmp_eq_u32 s3, 0")
    a("s_cbranch_scc1 L_w0")
    a(f"s_cmp_eq_u32 s3, {AUX}")
    a("s_cbranch_scc1 L_w7")
    a("s_waitcnt lgkmcnt(0)")
    a("s_barrier")
    if lpos == 1:
        for l in late: a(l)
    if lpos < 2: mlp_part("s_waitcnt vmcnt(0)")
    a("s_branch L_b3b")
    a.label("L_w7")
    if lpos == 0: mlp_part("s_waitcnt vmcnt(0)")
    a("v_lshrrev_b32 v20, 3, v2"); a("v_lshlrev_b32 v20, 8, v20")
    a("v_add_u32 v21, v20, v3")
    a("v_and_b32 v22, 48, v3"); a("v_add_u32 v22, v20, v22")
    a("v_and_b32 v24, 48, v3"); a("v_add_u32 v24, 128, v24")
    a("v_cmp_gt_u32 vcc, 32, v2")
    a("v_cndmask_b32 v23, v24, v3, vcc")
    a("v_bfe_u32 v24, v2, 4, 1"); a("v_lshl_add_u32 v23, v24, 3, v23")
    a(f"s_mov_b32 s63, {SPIN_MAX}")
    a("s_waitcnt lgkmcnt(0)")
    a("s_barrier")
    tstamp(1)
    if lpos == 1:
        for l in late: a(l)
        mlp_part("s_waitcnt vmcnt(0)")
    a.label("L_chk1")
    a(f"buffer_load_dwordx4 v[128:131], v21, {WS_}, s55 offen sc1")
    a(f"buffer_load_dwordx4 v[132:135], v22, {WS_}, s55 offen offset:128 sc1")
    a(f"buffer_load_dwordx2 v[136:137], v20, {WS_}, s55 offen offset:192 sc1")
    a("s_waitcnt vmcnt(0)")
    a("v_max3_u32 v64, v128, v129, v130"); a("v_max3_u32 v64, v64, v131, v132"); a("v_max3_u32 v64, v64, v133, v134")
    a("v_max3_u32 v64, v64, v135, v136"); a("v_max_u32 v64, v64, v137")
    a("v_cmp_eq_u32 vcc, -1, v64")
    a("s_cmp_eq_u64 vcc, 0")
    a("s_cbranch_scc1 L_go1")
    a("s_sub_u32 s63, s63, 1"); a("s_cmp_lg_u32 s63, 0")
    a("s_cbranch_scc1 L_chk1")
    a.label("L_go1")
    tstamp(2)
    a("v_max_f32_dpp v64, v136, v136 row_ror:8 row_mask:0xf bank_mask:0xf")
    a("v_mov_b32 v65, v64"); a("v_permlane16_swap_b32 v64, v65"); a("v_max_f32 v64, v64, v65")
    a("v_mov_b32 v65, v64"); a("v_permlane32_swap_b32 v64, v65"); a("v_max_f32 v64, v64, v65")
    a("v_sub_f32 v64, v136, v64"); a("v_exp_f32 v64, v64")
    a("v_mul_f32 v66, v64, v137")
    for r in range(8): a(f"v_mul_f32 v{128+r}, v64, v{128+r}")
    a("v_add_f32_dpp v66, v66, v66 row_ror:8 row_mask:0xf bank_mask:0xf")
    for r in range(4): a(f"v_permlane32_swap_b32 v{128+r}, v{132+r}")
    a("v_mov_b32 v65, v66"); a("v_permlane16_swap_b32 v66, v65"); a("v_add_f32 v66, v66, v65")
    for r in range(4): a(f"v_add_f32 v{128+r}, v{128+r}, v{132+r}")
    a("v_mov_b32 v65, v66"); a("v_permlane32_swap_b32 v66, v65"); a("v_add_f32 v66, v66, v65")
    a("v_permlane16_swap_b32 v128, v130"); a("v_permlane16_swap_b32 v129, v131")
    a("v_rcp_f32 v66, v66")
    a("v_add_f32 v128, v128, v130"); a("v_add_f32 v129, v129, v131")
    a("v_add_f32_dpp v128, v128, v128 row_ror:8 row_mask:0xf bank_mask:0xf")
    a("v_add_f32_dpp v129, v129, v129 row_ror:8 row_mask:0xf bank_mask:0xf")
    a("v_mul_f32 v128, v128, v66"); a("v_mul_f32 v129, v129, v66")
    a("v_cvt_pk_bf16_f32 v128, v128, v128"); a("v_cvt_pk_bf16_f32 v129, v129, v129")
    a(f"ds_write_b64 v23, v[128:129] offset:{L_OB}")
    a("s_waitcnt lgkmcnt(0)")
    a.label("L_b3b")
    a("s_barrier")
    a("s_cmp_ge_u32 s65, 2048")
    a("s_cbranch_scc1 L_fin")
    if lpos == 2:
        for l in late: a(l)
        mlp_part("s_waitcnt vmcnt(0)")
    for k in range(3): a(f"ds_read_b64 v[{128+2*k}:{129+2*k}], v7 offset:{L_OB+8*k}")
    a("s_waitcnt lgkmcnt(0)")
    for i in range(6):
        for r in range(4): a(f"v_and_b32 v{64+4*i+r}, v{MSK+r}, v{128+i}")
        if i >= 1:
            a(f"{MF} v[{PD}:{PD+3}], v[{64+4*(i-1)}:{67+4*(i-1)}], v[{WO+4*(i-1)}:{WO+3+4*(i-1)}], v[{PD}:{PD+3}]")
    a(f"{MF} v[{PD}:{PD+3}], v[84:87], v[{WO+20}:{WO+23}], v[{PD}:{PD+3}]")
    for r in range(4): a(f"v_mov_b32 v{20+r}, v{PD+r}")
    for r in range(4): a(f"v_permlane32_swap_b32 v{PD+r}, v{20+r}")
    for r in range(4): a(f"v_add_f32_dpp v{24+r}, v{20+r}, v{PD+r} row_ror:8 row_mask:0xf bank_mask:0xf")
    for r in range(4): a(f"v_or_b32 v{24+r}, 1, v{24+r}" if tag else f"v_min_u32 v{24+r}, -2, v{24+r}")
    a("s_mov_b64 exec, 0x00ff00ff")
    a(f"buffer_store_dwordx4 v[24:27], v11, {WS_}, s58 offen sc1")
    a("s_mov_b64 exec, -1")
    tstamp(3)
    a("s_branch L_fin")
    a.label("L_w0")
    a("v_mov_b32 v65, 0")
    a("v_mul_u32_u24 v66, 43, v2"); a("v_lshrrev_b32 v66, 9, v66")
    a("v_mul_u32_u24 v67, 12, v66"); a("v_sub_u32 v67, v2, v67")
    a("v_lshlrev_b32 v66, 11, v66"); a("v_lshl_add_u32 v66, v67, 4, v66")
    a("v_subrev_u32 v67, 48, v2"); a("v_lshlrev_b32 v67, 11, v67"); a("v_add_u32 v67, 192, v67")
    a("v_cmp_gt_u32 vcc, 48, v2")
    a("v_cndmask_b32 v66, v67, v66, vcc")
    a("s_mov_b32 s62, 0"); a("s_mov_b32 s63, 0xffff0000")
    a("s_waitcnt lgkmcnt(0)")
    a("s_barrier")
    tstamp(1)
    for k in range(4): a(f"ds_read_b128 v[{20+4*k}:{23+4*k}], v65 offset:{L_ML+16*k}")
    for w in range(10): a(f"ds_read_b128 v[{148+4*w}:{151+4*w}], v6 offset:{L_OP+768*w}")
    a("s_waitcnt lgkmcnt(0)" if st == "tail" else "s_waitcnt lgkmcnt(9)")
    for w in range(10, 16): a(f"ds_read_b128 v[{148+4*w}:{151+4*w}], v6 offset:{L_OP+768*w}")
    a("v_max3_f32 v68, v20, v22, v24"); a("v_max3_f32 v68, v68, v26, v28")
    a("v_max3_f32 v68, v68, v30, v32"); a("v_max_f32 v68, v68, v34")
    for w in range(8): a(f"v_sub_f32 v{20+2*w}, v{20+2*w}, v68")
    for w in range(8): a(f"v_exp_f32 v{20+2*w}, v{20+2*w}")
    a("v_mul_f32 v69, v20, v21")
    for w in range(1, 8): a(f"v_fmac_f32 v69, v{20+2*w}, v{21+2*w}")
    a("s_waitcnt lgkmcnt(0)")
    for w in range(8):
        a(f"v_pk_add_f32 v[{148+8*w}:{149+8*w}], v[{148+8*w}:{149+8*w}], v[{152+8*w}:{153+8*w}]")
        a(f"v_pk_add_f32 v[{150+8*w}:{151+8*w}], v[{150+8*w}:{151+8*w}], v[{154+8*w}:{155+8*w}]")
    for r in range(4): a(f"v_mul_f32 v{72+r}, v20, v{148+r}")
    for w in range(1, 8):
        for r in range(4): a(f"v_fmac_f32 v{72+r}, v{20+2*w}, v{148+8*w+r}")
    a("v_cndmask_b32 v72, v72, v68, s[62:63]"); a("v_cndmask_b32 v73, v73, v69, s[62:63]")
    a("v_cndmask_b32 v74, v74, v68, s[62:63]"); a("v_cndmask_b32 v75, v75, v69, s[62:63]")
    for r in range(4): a(f"v_min_u32 v{72+r}, -2, v{72+r}")
    a("s_mov_b32 exec_lo, -1"); a("s_mov_b32 exec_hi, 0xfffff")
    a("s_cmp_eq_u32 s66, 2"); a("s_cbranch_scc1 L_h1L")
    a(f"buffer_store_dwordx4 v[72:75], v66, {WS_}, s56 offen sc1")
    a("s_mov_b64 exec, -1")
    a("s_branch L_b3b")
    a.label("L_h1L")
    a(f"buffer_store_dwordx4 v[72:75], v66, {WS_}, s56 offen")
    a("s_mov_b64 exec, -1")
    tstamp(2)
    a("s_branch L_b3b")
    a.label("L_fin")
    tstamp(5); tstamp(6); stamp(6)
    a("s_cmp_ge_u32 s2, 20")
    a("s_cbranch_scc1 L_done")
    a("v_lshrrev_b32 v15, 3, v0"); a("v_mul_u32_u24 v15, 2560, v15")
    a("v_add_u32 v15, v15, v3")
    a("s_lshl_b32 s62, s2, 7"); a("s_add_u32 s62, s62, %d" % MB2_OFF); a("s_add_u32 s61, s62, %d" % (64 * 2560))
    a("v_lshlrev_b32 v16, 2, v2"); a("s_lshl_b32 s60, s2, 6")
    a(f"buffer_load_dword v17, v16, {X_}, s60 offen")
    a(f"s_mov_b32 s63, {SPIN_MAX}")
    def p2(k):
        b = 72 + 8 * k
        a(f"buffer_load_dwordx4 v[{b}:{b+3}], v15, {WS_}, s62 offen sc1")
        a(f"buffer_load_dwordx4 v[{b+4}:{b+7}], v15, {WS_}, s61 offen sc1")
    for k in range(NP2):
        p2(k)
        if k < NP2 - 1: a(f"s_sleep {gap2}")
    a.label("L_poll2")
    for k in range(NP2):
        b = 72 + 8 * k
        a(f"s_waitcnt vmcnt({2*(NP2-1)})")
        if tag:
            a(f"v_and_b32 v18, v{b}, v{b+1}"); a(f"v_and_b32 v19, v{b+2}, v{b+3}"); a(f"v_and_b32 v20, v{b+4}, v{b+5}"); a(f"v_and_b32 v21, v{b+6}, v{b+7}")
            a("v_and_b32 v18, v18, v19"); a("v_and_b32 v20, v20, v21"); a("v_and_b32 v18, v18, v20"); a("v_and_b32 v18, 1, v18")
        else:
            a(f"v_max3_u32 v18, v{b}, v{b+1}, v{b+2}"); a(f"v_max3_u32 v18, v18, v{b+3}, v{b+4}"); a(f"v_max3_u32 v18, v18, v{b+5}, v{b+6}"); a(f"v_max_u32 v18, v18, v{b+7}")
        for r in range(4): a(f"v_add_f32 v{64+r}, v{b+r}, v{b+4+r}")
        a("v_cmp_eq_u32 vcc, 0, v18" if tag else "v_cmp_eq_u32 vcc, -1, v18")
        a("s_cmp_eq_u64 vcc, 0")
        a("s_cbranch_scc1 L_go2")
        p2(k)
    a("s_sub_u32 s63, s63, 1"); a("s_cmp_lg_u32 s63, 0")
    a("s_cbranch_scc1 L_poll2")
    a.label("L_go2")
    tstamp(6)
    a("v_permlane32_swap_b32 v64, v66"); a("v_permlane32_swap_b32 v65, v67")
    a("v_add_f32 v64, v64, v66"); a("v_add_f32 v65, v65, v67")
    a("v_permlane16_swap_b32 v64, v65"); a("v_add_f32 v64, v64, v65")
    a("v_add_f32_dpp v64, v64, v64 row_ror:8 row_mask:0xf bank_mask:0xf")
    a("v_lshrrev_b32 v18, 4, v2"); a("v_lshlrev_b32 v18, 2, v18")
    a("s_lshl_b32 s62, s3, 7")
    a("v_add3_u32 v18, v18, v3, s62")
    a(f"ds_write_b32 v18, v64 offset:{L_FIN}")
    a("s_waitcnt lgkmcnt(0)")
    a("s_barrier")
    a("s_cmp_lg_u32 s3, 0")
    a("s_cbranch_scc1 L_done")
    a("s_mov_b64 exec, 0xffff")
    a("v_lshlrev_b32 v18, 3, v2")
    for w in range(8): a(f"ds_read_b64 v[{160+2*w}:{161+2*w}], v18 offset:{L_FIN+128*w}")
    unpack(17, 64, 65)
    a("s_waitcnt lgkmcnt(0)")
    for w in range(8):
        a(f"v_add_f32 v64, v64, v{160+2*w}"); a(f"v_add_f32 v65, v65, v{161+2*w}")
    a("v_cvt_pk_bf16_f32 v64, v64, v65")
    a(f"buffer_store_dword v64, v16, {OUT_}, s60 offen")
    a("s_mov_b64 exec, -1")
    a.label("L_done")
    if st: a("s_waitcnt vmcnt(0)" if False else "s_nop 0")
    if st == "wave":
        a("s_waitcnt lgkmcnt(0)")
        a("v_mov_b32 v64, s88"); a("v_mov_b32 v65, s89"); a("v_mov_b32 v66, s96"); a("v_mov_b32 v67, s97")
        a("s_lshl_b32 s63, s2, 7"); a("s_lshl_b32 s62, s3, 4"); a("s_add_u32 s63, s63, s62"); a(f"s_add_u32 s63, s63, {STAMP_OFF}")
        a("v_mov_b32 v15, 0"); a("s_mov_b64 exec, 1")
        a(f"buffer_store_dwordx4 v[64:67], v15, {WS_}, s63 offen")
    elif st:
        a("s_memrealtime s[86:87]")
        a("s_cmp_eq_u32 s3, 0"); a("s_cselect_b32 s62, 0, 1")
        a(f"s_cmp_eq_u32 s3, {AUX}"); a("s_cselect_b32 s63, 0, 1")
        a("s_and_b32 s63, s63, s62"); a("s_cmp_eq_u32 s63, 1"); a("s_cbranch_scc1 L_end")
        a("s_waitcnt lgkmcnt(0)")
        for i in range(7):
            a(f"v_mov_b32 v{64+2*i}, s{88+2*i}"); a(f"v_mov_b32 v{65+2*i}, s{89+2*i}")
        a("v_mov_b32 v78, s86"); a("v_mov_b32 v79, s87")
        a("s_lshl_b32 s63, s2, 7"); a("s_lshl_b32 s62, s62, 6"); a("s_add_u32 s63, s63, s62"); a(f"s_add_u32 s63, s63, {STAMP_OFF}")
        a("v_mov_b32 v15, 0"); a("s_mov_b64 exec, 1")
        for i in range(4): a(f"buffer_store_dwordx4 v[{64+4*i}:{67+4*i}], v15, {WS_}, s63 offen offset:{16*i}")
    a.label("L_end")
    a("s_endpgm")
    R('.section .rodata,"a"'); R(".p2align 6"); R(f".amdhsa_kernel {KN}")
    R("  .amdhsa_next_free_vgpr 256"); R("  .amdhsa_next_free_sgpr 102"); R("  .amdhsa_accum_offset 256")
    R("  .amdhsa_group_segment_fixed_size 0"); R("  .amdhsa_kernarg_size 96"); R("  .amdhsa_user_sgpr_count 2")
    R("  .amdhsa_user_sgpr_kernarg_segment_ptr 1"); R("  .amdhsa_system_sgpr_workgroup_id_x 1"); R(".end_amdhsa_kernel")
    txt = a.text()
    if spol != 'nt': txt = txt.replace(" nt\n", " " + spol + "\n")
    open(fname, "w").write(txt)

if __name__ == "__main__":
    E = [4, 8, 11, 14, 17, 20, 24, 27]
    base = dict(entries=E, budget=1, wfirst=False, psleep=24, pre=6)
    gen("k16.s", **base)
    gen("k16_c.s", cpol="sc1 nt ", **base)
    gen("k16_t.s", tag=1, **base)
    gen("k16_tc.s", tag=1, cpol="sc1 nt ", **base)
    gen("k16_cp.s", cpol="sc1 nt ", pubnt=1, **base)
```

```python
import sys
from asmlib import Asm
KN = "parallel_sum__sliding_block_cached__glu_gated_swiglu__decode_kernel"

MBX_OFF, MB2_OFF, QX_OFF, QMB_OFF = 0x80000, 0x100000, 0x200000, 0x60000
STAMP_OFF = 64 << 20
L_P1 = 0
L_QB = 2816
L_HB = L_QB + 384
L_FLAG = 3328
L_OB = 3392
L_ML = 3584
L_OP = 3712
L_FIN = 16256
LDS_SIZE = 17408
OOB = 0x40000000
LOG2E = 0x3fb8aa3b
SCALE = 0x3d93cd3a
SPIN_MAX = 1 << 20
AUX = 7
CLR = 6

K_, V_, WS_, WQ_, WO_, W1_, W3_, W2_, X_, OUT_, DBG_ = [f"s[{i}:{i+3}]" for i in range(8, 52, 4)]
DPP3 = ("quad_perm:[1,0,3,2]", "quad_perm:[2,3,0,1]", "row_half_mirror")
KB, VB = 40, 148
DACC, MSK, AOP, WO, W2, PD = 40, 52, 56, 92, 116, 124
MF = "v_mfma_f32_16x16x32_bf16"

class VM:
    def __init__(self, a):
        self.a = a; self.n = 0; self.done = 0
    def issue(self, s):
        self.a(s); self.n += 1; return self.n - 1
    def wait_id(self, i):
        if i < self.done: return
        self.a(f"s_waitcnt vmcnt({self.n - 1 - i})"); self.done = i + 1
    def throttle(self, T):
        if self.n - self.done > T - 1:
            self.a(f"s_waitcnt vmcnt({T-1})"); self.done = self.n - (T - 1)
    def set(self, n, d):
        self.n = n; self.done = d

def gen(fname, T=4, TL=None, NV=2, budget=2, prio=1, st=None, wfirst=True, abl='', tlb=0, psleep=2, pre=0, cpos=0, cpol='sc1', cnum=5, h1pol='sc1', pupol='sc1', qppol='sc1', xcpos=5, forcex=0, NP2=1, gap2=4, NP1=1, gap1=2, lpos=0, rot=3, fine=0, entries=None, spol='nt', tag=0, xnt=0, pubnt=0):
    TL = T if TL is None else TL
    MB2_OFF = QX_OFF if tag else 0x100000
    a = Asm()
    R = a.raw
    R("; fused decode: layernorm + q-proj + sliding-window attention + out-proj + swiglu MLP")
    R(f"; @launch grid=(256,1,1) block=(512,1,1) lds={LDS_SIZE}")
    R('.amdgcn_target "amdgcn-amd-amdhsa--gfx950"')
    R(".text"); R(f".globl {KN}"); R(".p2align 8"); R(f".type {KN},@function"); R(f"{KN}:")
    def stamp(i, kinds=("main", "wave")):
        if st in kinds: a(f"s_memrealtime s[{88+2*i}:{89+2*i}]")
    def tstamp(i): stamp(i, ("tail",))
    def unpack(src, dlo, dhi):
        a(f"v_lshlrev_b32 v{dlo}, 16, v{src}"); a(f"v_and_b32 v{dhi}, 0xffff0000, v{src}")
    def lohi(src, d):
        a(f"v_and_b32 v{d}, 0xffff, v{src}"); a(f"v_lshlrev_b32 v{d+1}, 16, v{src}")
        a(f"v_lshrrev_b32 v{d+2}, 16, v{src}"); a(f"v_and_b32 v{d+3}, 0xffff0000, v{src}")
    def exec_hi16():
        a("s_mov_b32 exec_lo, 0"); a("s_mov_b32 exec_hi, 0xffff0000")
    def exec_valid():
        a("s_mov_b32 exec_lo, 0x00ff00ff"); a("s_mov_b32 exec_hi, 0xff00ff00")
    def srd(base, ptr, size):
        a(f"s_mov_b32 s{base}, s{ptr}"); a(f"s_mov_b32 s{base+1}, s{ptr+1}")
        a(f"s_mov_b32 s{base+2}, {size}"); a(f"s_mov_b32 s{base+3}, 0x00020000")
    def masks(d, t0, t1):
        a(f"v_and_b32 v{t0}, 1, v2"); a(f"v_lshlrev_b32 v{t0}, 4, v{t0}")
        a(f"v_mov_b32 v{t1}, 0xffff"); a(f"v_lshlrev_b32 v{t1}, v{t0}, v{t1}")
        a(f"v_bfe_u32 v{t0}, v2, 1, 2")
        for r in range(4):
            a(f"v_cmp_eq_u32 vcc, {r}, v{t0}")
            a(f"v_cndmask_b32 v{d+r}, 0, v{t1}, vcc")
    vm = VM(a)
    a("s_cmp_ge_u32 s2, 256")
    a("s_cbranch_scc1 L_end")
    stamp(0, ("main", "wave", "tail"))
    a("s_load_dwordx16 s[52:67], s[0:1], 0")
    a("s_load_dwordx8 s[68:75], s[0:1], 64")
    a("v_lshrrev_b32 v15, 6, v0")
    a("v_and_b32 v2, 63, v0")
    a("v_readfirstlane_b32 s3, v15")
    a("s_and_b32 s4, s2, 31")
    a("s_lshr_b32 s5, s2, 5")
    a("s_lshr_b32 s6, s5, 1")
    a("s_and_b32 s7, s5, 1")
    a("v_lshrrev_b32 v15, 3, v2")
    a("v_and_b32 v3, 7, v2"); a("v_lshlrev_b32 v3, 4, v3")
    a("v_mul_u32_u24 v1, 384, v15"); a("v_add_u32 v1, v1, v3")
    a("v_lshlrev_b32 v6, 4, v2")
    a("s_mul_i32 s76, s4, 12582912"); a("s_mul_i32 s77, s5, %d" % (512 * 384))
    a("s_add_u32 s76, s76, s77"); a("s_add_u32 s76, s76, %d" % (28672 * 384))
    a(f"s_cmp_eq_u32 s3, {AUX}")
    a("s_cbranch_scc1 L_aux")

    SO = 78
    def kload(n, base=KB):
        i, j = divmod(n, 3); r = base + 4 * n
        return vm.issue(f"buffer_load_dwordx4 v[{r}:{r+3}], v1, {K_}, s{SO+i} offen offset:{j*128} nt")
    def vload(n, base=VB):
        i, j = divmod(n, 3); r = base + 4 * n
        return vm.issue(f"buffer_load_dwordx4 v[{r}:{r+3}], v1, {V_}, s{SO+i} offen offset:{j*128} nt")

    def setup_common():
        srd(16, 74, 1610612736); srd(24, 60, 7864320); srd(36, 68, 1966080); srd(44, 70, 1280); srd(48, 72, 256)
        srd(40, 52, 1280)
        a("s_mul_i32 s52, s4, 192"); a("s_mul_i32 s63, s6, 48"); a("s_add_u32 s52, s52, s63"); a("s_mul_i32 s52, s52, 1280")
        a("s_mul_i32 s63, s7, 640"); a("s_add_u32 s52, s52, s63")
        a("s_lshl_b32 s53, s4, 6"); a("s_lshl_b32 s62, s6, 4"); a("s_add_u32 s53, s53, s62"); a("s_mul_i32 s53, s53, 1280")
        a("s_add_u32 s53, s53, s63")
        a("s_cmp_lt_u32 s4, 24"); a("s_cselect_b32 s53, s53, %d" % OOB)
        a("s_sub_u32 s62, s3, 1"); a("s_cmp_lt_u32 s62, 4"); a("s_cselect_b32 s62, s62, 8"); a("s_cmp_eq_u32 s3, 7"); a("s_cselect_b32 s62, 4, s62")
        a("s_lshl_b32 s63, s62, 7"); a("s_cmp_lt_u32 s62, 5"); a("s_cselect_b32 s63, s63, %d" % OOB)
        a("s_add_u32 s52, s52, s63"); a("s_add_u32 s53, s53, s63"); a("s_add_u32 s64, s52, 5120")
        a("s_lshl_b32 s65, s62, 8")
        a("s_lshl_b32 s54, s4, 13"); a("s_add_u32 s54, s54, %d" % MBX_OFF)
        a("s_lshl_b32 s62, s6, 11"); a("s_add_u32 s55, s54, s62")
        a("s_lshl_b32 s62, s5, 8"); a("s_add_u32 s56, s54, s62")
        a("s_mul_i32 s57, s4, 10240"); a("s_add_u32 s57, s57, %d" % QX_OFF)
        a("s_lshl_b32 s58, s4, 2"); a("s_add_u32 s58, s58, s6"); a("s_mul_i32 s58, s58, 2560")
        a("s_mul_i32 s62, s7, 1280"); a("s_add_u32 s58, s58, s62"); a("s_add_u32 s58, s58, %d" % MB2_OFF); a("s_add_u32 s58, s58, s65")
        a("s_mul_i32 s59, s4, 10240"); a("s_mul_i32 s62, s5, 1280"); a("s_add_u32 s59, s59, s62"); a("s_add_u32 s59, s59, %d" % QX_OFF)
    def setup_proj():
        a("v_lshrrev_b32 v15, 3, v2")
        a("v_mul_u32_u24 v4, 7680, v15"); a("v_add_u32 v4, v4, v3")
        a("v_mul_u32_u24 v5, 2560, v15"); a("v_add_u32 v5, v5, v3")
        a("v_lshlrev_b32 v9, 2, v15"); a("s_lshl_b32 s87, s6, 5"); a("v_add_u32 v9, s87, v9")
        a("v_lshlrev_b32 v8, 4, v3")
        a("v_mul_u32_u24 v7, 24, v15")
        a("v_and_b32 v16, 16, v2")
        a("v_lshl_add_u32 v11, v3, 1, v16")
        a("v_lshrrev_b32 v15, 5, v2"); a("v_mul_u32_u24 v15, 768, v15")
        a("s_mul_i32 s87, s3, 1536")
        a("v_add3_u32 v14, v11, v15, s87")

    late = [f"buffer_load_dwordx4 v[{W2+4*i}:{W2+3+4*i}], v5, {W2_}, s53 offen offset:{1280*i} nt" for i in range(2)]
    late += [f"buffer_load_dwordx4 v[{WO+4*i}:{WO+3+4*i}], v4, {WO_}, {'s52' if i < 4 else 's64'} offen offset:{1280*(i%4)} nt" for i in range(6)]

    def read_q():
        for j in range(3):
            a(f"ds_read_b128 v[{20+4*j}:{23+4*j}], v3 offset:{L_QB+128*j}")
        a(f"ds_read_b32 v10, v9 offset:{L_HB}")
    def t_score(groups, sc, kb, first):
        def f():
            if first: a("s_waitcnt lgkmcnt(0)")
            for i in groups: a(f"v_mov_b32 v{sc[i]}, 0")
            for j in range(3):
                for r in range(4):
                    for i in groups:
                        a(f"v_dot2c_f32_bf16 v{sc[i]}, v{kb+12*i+4*j+r}, v{20+4*j+r}")
            for m in DPP3:
                for i in groups:
                    a(f"v_add_f32_dpp v{sc[i]}, v{sc[i]}, v{sc[i]} {m} row_mask:0xf bank_mask:0xf")
            s0 = sc[groups[0]]; s1 = sc[groups[-1]]
            for rnd in range(2):
                a(f"v_cvt_pk_bf16_f32 v15, v{s0}, v{s1}")
                a(f"v_lshlrev_b32 v{s0}, 16, v15")
                if s1 != s0: a(f"v_and_b32 v{s1}, 0xffff0000, v15")
                if rnd == 0:
                    for i in groups: a(f"v_mul_f32 v{sc[i]}, {SCALE:#x}, v{sc[i]}")
        return f
    def t_softmax(G, sc):
        def f1():
            a(f"v_mov_b32 v15, v{sc[0]}")
            rest = list(range(1, G))
            for k in range(0, len(rest), 2): a(f"v_max3_f32 v15, v15, v{sc[rest[k]]}, v{sc[rest[k+1]]}")
            a("v_max_f32_dpp v15, v15, v15 row_ror:8 row_mask:0xf bank_mask:0xf")
            for r in range(DACC, DACC + 12): a(f"v_mov_b32 v{r}, 0")
            a("v_mov_b32 v16, v15"); a("v_permlane16_swap_b32 v15, v16"); a("v_max_f32 v15, v15, v16")
            a("v_mov_b32 v16, v15"); a("v_permlane32_swap_b32 v15, v16"); a("v_max_f32 v15, v15, v16")
            a(f"v_mul_f32 v12, {LOG2E:#x}, v15")
            masks(MSK, 17, 18)
        def f2():
            a(f"s_mov_b32 s62, {LOG2E:#x}")
            for i in range(G): a(f"v_fma_f32 v{sc[i]}, v{sc[i]}, s62, -v12")
            for i in range(G): a(f"v_exp_f32 v{sc[i]}, v{sc[i]}")
            for i in range(G): a(f"v_cvt_pk_bf16_f32 v{sc[i]}, v{sc[i]}, v{sc[i]}")
        def f3():
            for i in range(G):
                for r in range(4): a(f"v_and_b32 v{AOP+4*i+r}, v{MSK+r}, v{sc[i]}")
        def f4():
            a(f"v_and_b32 v13, 0xffff0000, v{sc[0]}")
            for i in range(1, G):
                a(f"v_and_b32 v15, 0xffff0000, v{sc[i]}"); a("v_add_f32 v13, v13, v15")
            a("v_add_f32_dpp v13, v13, v13 row_ror:8 row_mask:0xf bank_mask:0xf")
            a("v_mov_b32 v16, v13"); a("v_permlane16_swap_b32 v13, v16"); a("v_add_f32 v13, v13, v16")
            a("v_mov_b32 v16, v13"); a("v_permlane32_swap_b32 v13, v16"); a("v_add_f32 v13, v13, v16")
            a("s_lshl_b32 s62, s3, 3"); a("v_mov_b32 v16, s62")
            a(f"ds_write_b64 v16, v[12:13] offset:{L_ML}")
        return [f1, f2, f3, f4]
    def t_pv(n, vb):
        def f():
            i, j = divmod(n, 3)
            d = DACC + 4 * j
            a(f"{MF} v[{d}:{d+3}], v[{AOP+4*i}:{AOP+3+4*i}], v[{vb+4*n}:{vb+3+4*n}], v[{d}:{d+3}]")
        return f

    if rot == 2:
        a("s_lshr_b32 s77, s2, 3"); a("s_add_u32 s77, s77, s3"); a("s_add_u32 s77, s77, s2")
    elif rot == 3:
        a("s_lshr_b32 s77, s2, 3"); a("s_add_u32 s77, s77, s2")
    else:
        a("s_mov_b32 s77, 0")
    a("s_mul_i32 s87, s77, 57"); a("s_lshr_b32 s87, s87, 9"); a("s_mul_i32 s87, s87, 9"); a("s_sub_u32 s77, s77, s87")
    a("s_mul_i32 s87, s3, 3072"); a("s_add_u32 s76, s76, s87")
    for i in range(9):
        a(f"s_add_u32 s{SO+i}, s77, {i}"); a(f"s_sub_u32 s87, s{SO+i}, 9"); a(f"s_cmp_ge_u32 s{SO+i}, 9")
        a(f"s_cselect_b32 s{SO+i}, s87, s{SO+i}"); a(f"s_mul_i32 s{SO+i}, s{SO+i}, {7*3072}"); a(f"s_add_u32 s{SO+i}, s{SO+i}, s76")
    if prio:
        a("s_cmp_lt_u32 s3, 4"); a("s_cbranch_scc1 L_noprio"); a(f"s_setprio {prio}"); a.label("L_noprio")
    setup_proj()
    a("s_waitcnt lgkmcnt(0)")
    srd(8, 54, 402653184)
    kid = {}
    if not wfirst:
        for n in range(T): kid[n] = kload(n)
    srd(12, 56, 402653184)
    setup_common()
    if tlb:
        a("s_cmp_lg_u32 s3, 5"); a("s_cbranch_scc1 L_notlb")
        a("s_mov_b64 exec, 1"); a("v_mov_b32 v20, 0")
        a("s_add_u32 s62, s76, %d" % (196608 - 5 * 3072 - 64))
        a(f"buffer_load_dword v21, v20, {V_}, s76 offen nt")
        a(f"buffer_load_dword v22, v20, {V_}, s62 offen nt")
        a(f"buffer_load_dword v23, v20, {K_}, s62 offen nt")
        a(f"buffer_load_dword v24, v20, {WO_}, s52 offen nt")
        a(f"buffer_load_dword v25, v20, {W2_}, s53 offen nt")
        a(f"buffer_load_dword v26, v20, {WS_}, s57 offen nt")
        a(f"buffer_load_dword v27, v20, {OUT_}, 0 offen nt")
        a("s_mov_b64 exec, -1")
        a.label("L_notlb")
    a("s_barrier")
    if wfirst:
        for n in range(T): kid[n] = kload(n)
    for n in range(T, 27):
        vm.throttle(T); kid[n] = kload(n)
    sc = [32 + i for i in range(8)] + [19]
    groups = ((0, 1), (2, 3), (4, 5), (6, 7), (8,)) if not fine else tuple((i,) for i in range(9))
    def continuation(nv, vid, bud):
        read_q()
        tasks = [(lambda g=g: kid[3 * g[-1] + 2], t_score(g, sc, KB, g[0] == 0), 4) for g in groups]
        tasks += [(lambda: -1, f, 4) for f in t_softmax(9, sc)]
        tasks += [(lambda n=n: vid.get(n, 10**9), t_pv(n, VB), 0.5) for n in range(27)]
        ndone = 0
        for n in range(nv, 35):
            if n >= 27:
                while ndone < len(groups) + 3:
                    t = tasks.pop(0)
                    if t[0]() >= 0: vm.wait_id(t[0]())
                    t[1](); ndone += 1
            if n < 27 + TL - 1: vm.throttle(TL)
            if n < 27: vid[n] = vload(n)
            elif lpos == 0: vm.issue(late[n - 27])
            b = bud * 4
            while b > 0 and tasks and tasks[0][0]() < vm.done:
                t = tasks.pop(0); t[1](); b -= t[2]; ndone += 1
        while tasks:
            req, f, c = tasks.pop(0)
            if req() >= 0: vm.wait_id(req())
            f()
        stamp(4)
        a("s_branch L_tail")
    ent = entries if entries else [NV]
    vid = {}
    saved = []
    a(f"v_mov_b32 v15, {L_FLAG}")
    for n in range(ent[-1]):
        if n + 1 in ent[:-1]: a("ds_read_b32 v16, v15")
        vm.throttle(T); vid[n] = vload(n)
        if n + 1 in ent[:-1]:
            a("s_waitcnt lgkmcnt(0)")
            a("v_readfirstlane_b32 s66, v16")
            a("s_cmp_lg_u32 s66, 0")
            a(f"s_cbranch_scc1 L_cont{n+1}")
            saved.append((n + 1, dict(vid), (vm.n, vm.done)))
    stamp(2)
    a(f"s_mov_b32 s63, {SPIN_MAX}")
    a.label("L_flag")
    a("ds_read_b32 v16, v15")
    a("s_waitcnt lgkmcnt(0)")
    a("v_readfirstlane_b32 s66, v16")
    a("s_cmp_lg_u32 s66, 0")
    a("s_cbranch_scc1 L_flagok")
    a("s_sleep 2")
    a("s_sub_u32 s63, s63, 1")
    a("s_cmp_lg_u32 s63, 0")
    a("s_cbranch_scc1 L_flag")
    a.label("L_flagok")
    stamp(3)
    def bud_for(nv): return budget if nv <= 16 else 2 * budget
    continuation(ent[-1], vid, bud_for(ent[-1]))
    for (nv, v, stt) in saved:
        a.label(f"L_cont{nv}")
        vm.set(*stt)
        stamp(2); stamp(3)
        continuation(nv, v, bud_for(nv))

    a.label("L_aux")
    vm.set(0, 0)
    a("s_setprio 2")
    a(f"v_mov_b32 v16, {L_FLAG}"); a("v_mov_b32 v17, 0")
    a("ds_write_b32 v16, v17")
    a("v_mul_u32_u24 v4, 122880, v15"); a("v_add_u32 v4, v4, v3")
    a("v_mul_u32_u24 v5, 30720, v15"); a("v_add_u32 v5, v5, v3")
    a("v_mul_u32_u24 v7, 20, v15")
    a(f"s_add_u32 s{SO}, s76, {63*3072}")
    a("s_mul_i32 s79, s5, 160")
    a("s_mul_i32 s80, s5, %d" % (80 * 12288)); a("s_mul_i32 s77, s4, 384"); a("s_add_u32 s80, s80, s77")
    a("s_mul_i32 s81, s5, %d" % (80 * 3072)); a("s_lshl_b32 s77, s4, 7"); a("s_add_u32 s81, s81, s77")
    a("s_cmp_lt_u32 s4, 24"); a("s_cselect_b32 s81, s81, %d" % OOB)
    a("s_lshl_b32 s82, s2, 9"); a("s_add_u32 s82, s82, %d" % QMB_OFF)
    a("v_lshlrev_b32 v14, 3, v2")
    a("s_lshl_b32 s83, s4, 13"); a("s_lshl_b32 s77, s5, 8"); a("s_add_u32 s83, s83, s77"); a("s_add_u32 s83, s83, %d" % MBX_OFF)
    a("v_lshrrev_b32 v12, 4, v2"); a("v_lshlrev_b32 v12, 11, v12"); a("v_and_b32 v13, 15, v2"); a("v_lshl_add_u32 v12, v13, 4, v12")
    a("s_lshl_b32 s84, s4, 2"); a("s_add_u32 s84, s84, s6"); a("s_mul_i32 s84, s84, 2560")
    a("s_mul_i32 s77, s7, 1280"); a("s_add_u32 s84, s84, s77"); a("s_add_u32 s84, s84, %d" % MB2_OFF)
    a("s_getreg_b32 s85, hwreg(HW_REG_XCC_ID)"); a("s_and_b32 s85, s85, 15")
    a("s_mul_i32 s77, s85, s85"); a("s_lshl_b32 s77, s77, 12"); a("s_lshl_b32 s85, s85, 4"); a("s_add_u32 s85, s85, s77"); a("s_add_u32 s85, s85, 1")
    masks(8, 16, 17)
    for r in range(52, 56): a(f"v_mov_b32 v{r}, -1")
    a("s_waitcnt lgkmcnt(0)")
    srd(16, 74, 1610612736); srd(48, 72, 256)
    def clears():
        if 'a' in abl: return
        vm.issue(f"buffer_store_dwordx2 v[52:53], v14, {WS_}, s82 offen {cpol}")
        if cnum < 2: return
        vm.issue(f"buffer_store_dwordx4 v[52:55], v12, {WS_}, s83 offen {cpol}")
        if tag: return
        vm.issue(f"buffer_store_dwordx4 v[52:55], v6, {WS_}, s84 offen {cpol}")
        a("s_mov_b64 exec, 0xffff")
        vm.issue(f"buffer_store_dwordx4 v[52:55], v6, {WS_}, s84 offen offset:1024 {cpol}")
        a("s_mov_b64 exec, -1")
    if cpos == 0: clears()
    srd(40, 52, 1280); srd(20, 58, 7864320)
    ix0 = vm.issue(f"buffer_load_dwordx4 v[32:35], v6, {X_}, 0 offen")
    ix1 = vm.issue(f"buffer_load_dwordx4 v[36:39], v6, {X_}, 0 offen offset:1024")
    vm.issue(f"buffer_load_dwordx4 v[16:19], v7, {X_}, s79 offen")
    ixo = vm.issue(f"buffer_load_dword v15, v7, {X_}, s79 offen offset:16")
    srd(28, 64, 1966080); srd(32, 66, 1966080)
    iw = {}
    for i in range(10):
        b = 56 + 20 * i
        for j in range(3):
            vm.issue(f"buffer_load_dwordx4 v[{b+4*j}:{b+3+4*j}], v4, {WQ_}, s80 offen offset:{128*j} nt")
        vm.issue(f"buffer_load_dwordx4 v[{b+12}:{b+15}], v5, {W1_}, s81 offen nt")
        iw[i] = vm.issue(f"buffer_load_dwordx4 v[{b+16}:{b+19}], v5, {W3_}, s81 offen nt")
        if i < 9:
            a("s_add_u32 s80, s80, 12288"); a("s_add_u32 s81, s81, 3072")
    a("s_barrier")
    if cpos == 1: clears()
    srd(8, 54, 402653184); srd(12, 56, 402653184)
    setup_common()
    a("s_and_b32 s62, s4, 16"); a("s_add_u32 s62, s62, s4"); a("s_lshl_b32 s62, s62, 2"); a("v_mov_b32 v12, s62")
    a("v_mov_b32 v13, s85")
    vm.wait_id(ixo)
    for k in range(4): unpack(16 + k, 20 + 2 * k, 21 + 2 * k)
    unpack(15, 28, 29)
    for r in range(8): unpack(32 + r, 40 + 2 * r, 41 + 2 * r)
    def wave_sum(v, sdst):
        for m in DPP3 + ("row_mirror",):
            a(f"v_add_f32_dpp v{v}, v{v}, v{v} {m} row_mask:0xf bank_mask:0xf")
        for k in range(4): a(f"v_readlane_b32 s{sdst+k}, v{v}, {16*k}")
        a(f"v_mov_b32 v{v}, s{sdst}")
        for k in range(1, 4): a(f"v_add_f32 v{v}, s{sdst+k}, v{v}")
    a("v_add_f32 v15, v40, v41")
    for r in range(42, 56): a(f"v_add_f32 v15, v15, v{r}")
    wave_sum(15, 60)
    a("v_mul_f32 v15, 0x3acccccd, v15")
    a("v_mov_b32 v16, 0")
    for r in range(40, 48):
        a(f"v_sub_f32 v17, v{r}, v15"); a("v_fmac_f32 v16, v17, v17")
    a("s_mov_b64 exec, 0xffff")
    for r in range(48, 56):
        a(f"v_sub_f32 v17, v{r}, v15"); a("v_fmac_f32 v16, v17, v17")
    a("s_mov_b64 exec, -1")
    wave_sum(16, 60)
    a("v_mul_f32 v16, 0x3acccccd, v16")
    a("v_cvt_pk_bf16_f32 v17, v15, v16")
    a("v_lshlrev_b32 v15, 16, v17")
    a("v_and_b32 v16, 0xffff0000, v17")
    a("v_add_f32 v16, 0x3727c5ac, v16")
    a("v_cvt_pk_bf16_f32 v16, v16, v16")
    a("v_lshlrev_b32 v16, 16, v16")
    a("v_sqrt_f32 v16, v16")
    a("v_cvt_pk_bf16_f32 v16, v16, v16")
    a("v_lshlrev_b32 v16, 16, v16")
    a("v_rcp_f32 v17, v16")
    for i in range(10): a(f"v_sub_f32 v{20+i}, v{20+i}, v15")
    for i in range(0, 10, 2):
        a(f"v_cvt_pk_bf16_f32 v18, v{20+i}, v{21+i}"); unpack(18, 20 + i, 21 + i)
    for i in range(10):
        a(f"v_mul_f32 v18, v{20+i}, v17")
        a(f"v_fma_f32 v19, -v18, v16, v{20+i}")
        a(f"v_fma_f32 v{20+i}, v19, v17, v18")
    for i in range(10): a(f"v_cvt_pk_bf16_f32 v{20+i}, v{20+i}, v{20+i}")
    for r in range(32, 52): a(f"v_mov_b32 v{r}, 0")
    a("v_lshrrev_b32 v15, 5, v2"); a("v_mul_u32_u24 v15, 1280, v15")
    a("v_and_b32 v16, 16, v2"); a("v_lshl_add_u32 v16, v3, 1, v16"); a("v_add_u32 v15, v15, v16")
    a("v_lshlrev_b32 v14, 3, v2")
    for i in range(10):
        for r in range(4): a(f"v_and_b32 v{52+r}, v{8+r}, v{20+i}")
        vm.wait_id(iw[i])
        b = 56 + 20 * i
        for c in range(5):
            a(f"{MF} v[{32+4*c}:{35+4*c}], v[52:55], v[{b+4*c}:{b+3+4*c}], v[{32+4*c}:{35+4*c}]")
    stamp(1)
    exec_valid()
    for c in range(5): a(f"ds_write_b128 v15, v[{32+4*c}:{35+4*c}] offset:{L_P1+256*c}")
    a("s_mov_b64 exec, -1")
    a("s_waitcnt lgkmcnt(0)")
    a(f"ds_read_b128 v[64:67], v6 offset:{L_P1}")
    a(f"ds_read_b128 v[68:71], v6 offset:{L_P1+1280}")
    a(f"ds_read_b128 v[72:75], v6 offset:{L_P1+256}")
    a(f"ds_read_b128 v[76:79], v6 offset:{L_P1+1280+256}")
    a("s_waitcnt lgkmcnt(0)")
    for r in range(4):
        a(f"v_add_f32 v{64+r}, v{64+r}, v{68+r}"); a(f"v_add_f32 v{72+r}, v{72+r}, v{76+r}")
    for r in range(4):
        a(f"v_and_b32 v{64+r}, -2, v{64+r}"); a(f"v_and_b32 v{72+r}, -2, v{72+r}")
    if 'b' in abl: a("s_branch L_atake")
    a(f"buffer_store_dwordx4 v[64:67], v6, {WS_}, s59 offen sc1" + (" nt " if pubnt else ""))
    exec_hi16()
    a(f"buffer_store_dwordx4 v[72:75], v6, {WS_}, s59 offen offset:256 sc1" + (" nt " if pubnt else ""))
    a("s_mov_b64 exec, -1")
    a("s_mov_b64 exec, 1")
    a("s_waitcnt vmcnt(0)")
    if 'n' in abl: pass
    elif 'r' in abl: a(f"buffer_atomic_add v13, v12, {DBG_}, 0 offen")
    elif 'w' in abl: a(f"buffer_atomic_add v13, v12, {WS_}, s82 offen sc0")
    else: a(f"buffer_atomic_add v13, v12, {DBG_}, 0 offen sc0")
    a("s_waitcnt vmcnt(0)")
    a("v_readfirstlane_b32 s62, v13")
    a("s_mov_b64 exec, -1")
    stamp(5)
    if 'c' in abl: a("s_branch L_atake")
    if st == "main":
        a("s_and_b32 s92, s62, 7"); a("s_mov_b32 s93, 0")
    a("s_mul_i32 s63, s85, 7"); a("s_cmp_eq_u32 s62, s63"); a("s_cselect_b32 s66, 2, 1")
    if forcex: a("s_mov_b32 s66, 1")
    a("s_add_u32 s67, s6, 1"); a("s_and_b32 s67, s67, 3"); a("s_lshl_b32 s67, s67, 2"); a("s_add_u32 s67, s67, 48")
    a("s_and_b32 s62, s62, 7"); a("s_cmp_eq_u32 s62, 7")
    a("s_cbranch_scc0 L_await")
    a("s_add_u32 s60, s57, 3840"); a("s_add_u32 s61, s57, 7680")
    if 'g' not in abl:
        for s in range(8):
            so = ("s57", "s60", "s61")[s // 3]
            a(f"buffer_load_dwordx4 v[{96+4*s}:{99+4*s}], v6, {WS_}, {so} offen offset:{(s%3)*1280} sc1")
        exec_hi16()
        for s in range(8):
            so = ("s57", "s60", "s61")[s // 3]
            a(f"buffer_load_dwordx4 v[{160+4*s}:{163+4*s}], v6, {WS_}, {so} offen offset:{(s%3)*1280+256} sc1")
        a("s_mov_b64 exec, -1")
        a("s_waitcnt vmcnt(0)")
    a.label("L_agot")
    for s in range(1, 8):
        for r in range(4):
            a(f"v_add_f32 v{96+r}, v{96+r}, v{96+4*s+r}")
            a(f"v_add_f32 v{160+r}, v{160+r}, v{160+4*s+r}")
    a("v_cvt_pk_bf16_f32 v20, v96, v97"); a("v_cvt_pk_bf16_f32 v21, v98, v99")
    a("v_cvt_pk_bf16_f32 v22, v160, v161"); a("v_cvt_pk_bf16_f32 v23, v162, v163")
    exec_hi16()
    unpack(20, 64, 65); unpack(21, 66, 67); unpack(22, 160, 161); unpack(23, 162, 163)
    for r in range(4): a(f"v_mul_f32 v{68+r}, {LOG2E|0x80000000:#x}, v{64+r}")
    for r in range(4): a(f"v_exp_f32 v{68+r}, v{68+r}")
    for r in range(4): a(f"v_add_f32 v{68+r}, 1.0, v{68+r}")
    for r in range(4): a(f"v_rcp_f32 v{72+r}, v{68+r}")
    for r in range(4): a(f"v_mul_f32 v{76+r}, v{64+r}, v{72+r}")
    a("v_cvt_pk_bf16_f32 v20, v76, v77"); a("v_cvt_pk_bf16_f32 v21, v78, v79")
    unpack(20, 64, 65); unpack(21, 66, 67)
    for r in range(4): a(f"v_mul_f32 v{64+r}, v{64+r}, v{160+r}")
    a("v_cvt_pk_bf16_f32 v20, v64, v65"); a("v_cvt_pk_bf16_f32 v21, v66, v67")
    a("s_mov_b64 exec, -1")
    a("v_min_u32 v20, -2, v20"); a("v_min_u32 v21, -2, v21")
    a("s_lshl_b32 s62, s4, 9"); a("s_add_u32 s62, s62, %d" % QMB_OFF)
    for rq in range(4):
        a(f"v_mov_b32 v{24+2*rq}, v20"); a(f"v_mov_b32 v{25+2*rq}, v21")
        a(f"v_writelane_b32 v{24+2*rq}, s66, {48 + 4 * ((rq + 1) & 3)}")
    a("s_cmp_eq_u32 s66, 2"); a("s_cbranch_scc1 L_pushL")
    for pol in ("sc1", ""):
        for s in range(8):
            a(f"buffer_store_dwordx2 v[{24+2*(s>>1)}:{25+2*(s>>1)}], v14, {WS_}, s62 offen {pol}")
            if s < 7: a("s_add_u32 s62, s62, %d" % (32 * 512))
        a("s_branch L_atake")
        if pol: a.label("L_pushL")
    a.label("L_await")
    if 'q' in abl: a("s_branch L_atake")
    for _ in range(pre): a("s_sleep 16")
    a(f"s_mov_b32 s63, {SPIN_MAX}")
    a.label("L_aspin")
    a(f"buffer_load_dwordx2 v[20:21], v14, {WS_}, s82 offen sc1")
    a("s_waitcnt vmcnt(0)")
    a("v_max_u32 v22, v20, v21")
    a("v_cmp_eq_u32 vcc, -1, v22")
    a("s_cmp_eq_u64 vcc, 0")
    a("s_cbranch_scc1 L_agotq")
    a("s_sub_u32 s63, s63, 1"); a("s_cmp_eq_u32 s63, 0")
    a("s_cbranch_scc1 L_agotq")
    a(f"s_sleep {psleep}")
    a("s_branch L_aspin")
    a.label("L_agotq")
    a("v_readlane_b32 s66, v20, s67")
    a("s_cmp_eq_u32 s66, 2"); a("s_cselect_b32 s66, 2, 1")
    a.label("L_atake")
    a(f"ds_write_b64 v14, v[20:21] offset:{L_QB}")
    a(f"v_mov_b32 v22, {L_FLAG}"); a("v_mov_b32 v23, s66")
    a("s_waitcnt lgkmcnt(0)")
    a("ds_write_b32 v22, v23")
    stamp(3)
    a("s_setprio 0")
    vm.set(0, 0)
    AK, AV = 160, 148
    kida = [kload(n, AK) for n in range(3)]
    vida = [vload(n, AV) for n in range(3)]
    setup_proj()
    if lpos == 0:
        for l in late: vm.issue(l)
    read_q()
    vm.wait_id(kida[2])
    t_score((0,), [32], AK, True)()
    for f in t_softmax(1, [32]): f()
    vm.wait_id(vida[2])
    for n in range(3): t_pv(n, AV)()
    if 'f' in abl: a("s_branch L_acntok")
    a("s_cmp_ge_u32 s2, 20"); a("s_cbranch_scc1 L_acntok")
    a("v_and_b32 v15, 15, v2"); a("v_and_b32 v16, 16, v2"); a("v_lshl_add_u32 v15, v16, 1, v15"); a("v_lshlrev_b32 v15, 2, v15")
    a(f"s_mov_b32 s63, {SPIN_MAX}")
    a.label("L_cnt")
    a(f"buffer_load_dword v16, v15, {DBG_}, 0 offen sc1")
    a("s_waitcnt vmcnt(0)")
    a("v_and_b32 v17, 7, v16")
    a("v_cmp_ne_u32 vcc, 0, v17")
    a("v_cmp_eq_u32 s[60:61], 0, v16")
    a("s_or_b64 vcc, vcc, s[60:61]")
    a("s_cmp_eq_u64 vcc, 0")
    a("s_cbranch_scc1 L_acntok")
    a("s_sub_u32 s63, s63, 1"); a("s_cmp_eq_u32 s63, 0")
    a("s_cbranch_scc1 L_acntok")
    a("s_sleep 16")
    a("s_branch L_cnt")
    a.label("L_acntok")
    stamp(4)

    a.label("L_tail")
    if 't' in abl:
        a("s_waitcnt vmcnt(0)"); a("s_branch L_done")
    exec_valid()
    for j in range(3): a(f"ds_write_b128 v14, v[{DACC+4*j}:{DACC+3+4*j}] offset:{L_OP+256*j}")
    a("s_mov_b64 exec, -1")
    def mlp_part(wait):
        a("v_and_b32 v16, 0xffff, v10"); a("v_lshl_or_b32 v16, v16, 16, v16")
        a("v_lshrrev_b32 v17, 16, v10"); a("v_lshl_or_b32 v17, v17, 16, v17")
        for r in range(4): a(f"v_mov_b32 v{PD+r}, 0")
        for i in range(2):
            for r in range(4): a(f"v_and_b32 v{28+4*i+r}, v{MSK+r}, v{16+i}")
        a(wait)
        for i in range(2):
            a(f"{MF} v[{PD}:{PD+3}], v[{28+4*i}:{31+4*i}], v[{W2+4*i}:{W2+3+4*i}], v[{PD}:{PD+3}]")
    a("s_cmp_eq_u32 s3, 0")
    a("s_cbranch_scc1 L_w0")
    a(f"s_cmp_eq_u32 s3, {AUX}")
    a("s_cbranch_scc1 L_w7")
    a("s_waitcnt lgkmcnt(0)")
    a("s_barrier")
    if lpos == 1:
        for l in late: a(l)
    if lpos < 2: mlp_part("s_waitcnt vmcnt(0)")
    a("s_branch L_b3b")
    a.label("L_w7")
    if lpos == 0: mlp_part("s_waitcnt vmcnt(0)")
    a("v_lshrrev_b32 v20, 3, v2"); a("v_lshlrev_b32 v20, 8, v20")
    a("v_add_u32 v21, v20, v3")
    a("v_and_b32 v22, 48, v3"); a("v_add_u32 v22, v20, v22")
    a("v_and_b32 v24, 48, v3"); a("v_add_u32 v24, 128, v24")
    a("v_cmp_gt_u32 vcc, 32, v2")
    a("v_cndmask_b32 v23, v24, v3, vcc")
    a("v_bfe_u32 v24, v2, 4, 1"); a("v_lshl_add_u32 v23, v24, 3, v23")
    a(f"s_mov_b32 s63, {SPIN_MAX}")
    a("s_waitcnt lgkmcnt(0)")
    a("s_barrier")
    tstamp(1)
    if lpos == 1:
        for l in late: a(l)
        mlp_part("s_waitcnt vmcnt(0)")
    a.label("L_chk1")
    a(f"buffer_load_dwordx4 v[128:131], v21, {WS_}, s55 offen sc1")
    a(f"buffer_load_dwordx4 v[132:135], v22, {WS_}, s55 offen offset:128 sc1")
    a(f"buffer_load_dwordx2 v[136:137], v20, {WS_}, s55 offen offset:192 sc1")
    a("s_waitcnt vmcnt(0)")
    a("v_max3_u32 v64, v128, v129, v130"); a("v_max3_u32 v64, v64, v131, v132"); a("v_max3_u32 v64, v64, v133, v134")
    a("v_max3_u32 v64, v64, v135, v136"); a("v_max_u32 v64, v64, v137")
    a("v_cmp_eq_u32 vcc, -1, v64")
    a("s_cmp_eq_u64 vcc, 0")
    a("s_cbranch_scc1 L_go1")
    a("s_sub_u32 s63, s63, 1"); a("s_cmp_lg_u32 s63, 0")
    a("s_cbranch_scc1 L_chk1")
    a.label("L_go1")
    tstamp(2)
    a("v_max_f32_dpp v64, v136, v136 row_ror:8 row_mask:0xf bank_mask:0xf")
    a("v_mov_b32 v65, v64"); a("v_permlane16_swap_b32 v64, v65"); a("v_max_f32 v64, v64, v65")
    a("v_mov_b32 v65, v64"); a("v_permlane32_swap_b32 v64, v65"); a("v_max_f32 v64, v64, v65")
    a("v_sub_f32 v64, v136, v64"); a("v_exp_f32 v64, v64")
    a("v_mul_f32 v66, v64, v137")
    for r in range(8): a(f"v_mul_f32 v{128+r}, v64, v{128+r}")
    a("v_add_f32_dpp v66, v66, v66 row_ror:8 row_mask:0xf bank_mask:0xf")
    for r in range(4): a(f"v_permlane32_swap_b32 v{128+r}, v{132+r}")
    a("v_mov_b32 v65, v66"); a("v_permlane16_swap_b32 v66, v65"); a("v_add_f32 v66, v66, v65")
    for r in range(4): a(f"v_add_f32 v{128+r}, v{128+r}, v{132+r}")
    a("v_mov_b32 v65, v66"); a("v_permlane32_swap_b32 v66, v65"); a("v_add_f32 v66, v66, v65")
    a("v_permlane16_swap_b32 v128, v130"); a("v_permlane16_swap_b32 v129, v131")
    a("v_rcp_f32 v66, v66")
    a("v_add_f32 v128, v128, v130"); a("v_add_f32 v129, v129, v131")
    a("v_add_f32_dpp v128, v128, v128 row_ror:8 row_mask:0xf bank_mask:0xf")
    a("v_add_f32_dpp v129, v129, v129 row_ror:8 row_mask:0xf bank_mask:0xf")
    a("v_mul_f32 v128, v128, v66"); a("v_mul_f32 v129, v129, v66")
    a("v_cvt_pk_bf16_f32 v128, v128, v128"); a("v_cvt_pk_bf16_f32 v129, v129, v129")
    a(f"ds_write_b64 v23, v[128:129] offset:{L_OB}")
    a("s_waitcnt lgkmcnt(0)")
    a.label("L_b3b")
    a("s_barrier")
    a("s_cmp_ge_u32 s65, 2048")
    a("s_cbranch_scc1 L_fin")
    if lpos == 2:
        for l in late: a(l)
        mlp_part("s_waitcnt vmcnt(0)")
    for k in range(3): a(f"ds_read_b64 v[{128+2*k}:{129+2*k}], v7 offset:{L_OB+8*k}")
    a("s_waitcnt lgkmcnt(0)")
    for i in range(6):
        for r in range(4): a(f"v_and_b32 v{64+4*i+r}, v{MSK+r}, v{128+i}")
        if i >= 1:
            a(f"{MF} v[{PD}:{PD+3}], v[{64+4*(i-1)}:{67+4*(i-1)}], v[{WO+4*(i-1)}:{WO+3+4*(i-1)}], v[{PD}:{PD+3}]")
    a(f"{MF} v[{PD}:{PD+3}], v[84:87], v[{WO+20}:{WO+23}], v[{PD}:{PD+3}]")
    for r in range(4): a(f"v_mov_b32 v{20+r}, v{PD+r}")
    for r in range(4): a(f"v_permlane32_swap_b32 v{PD+r}, v{20+r}")
    for r in range(4): a(f"v_add_f32_dpp v{24+r}, v{20+r}, v{PD+r} row_ror:8 row_mask:0xf bank_mask:0xf")
    for r in range(4): a(f"v_or_b32 v{24+r}, 1, v{24+r}" if tag else f"v_min_u32 v{24+r}, -2, v{24+r}")
    a("s_mov_b64 exec, 0x00ff00ff")
    a(f"buffer_store_dwordx4 v[24:27], v11, {WS_}, s58 offen sc1")
    a("s_mov_b64 exec, -1")
    tstamp(3)
    a("s_branch L_fin")
    a.label("L_w0")
    a("v_mov_b32 v65, 0")
    a("v_mul_u32_u24 v66, 43, v2"); a("v_lshrrev_b32 v66, 9, v66")
    a("v_mul_u32_u24 v67, 12, v66"); a("v_sub_u32 v67, v2, v67")
    a("v_lshlrev_b32 v66, 11, v66"); a("v_lshl_add_u32 v66, v67, 4, v66")
    a("v_subrev_u32 v67, 48, v2"); a("v_lshlrev_b32 v67, 11, v67"); a("v_add_u32 v67, 192, v67")
    a("v_cmp_gt_u32 vcc, 48, v2")
    a("v_cndmask_b32 v66, v67, v66, vcc")
    a("s_mov_b32 s62, 0"); a("s_mov_b32 s63, 0xffff0000")
    a("s_waitcnt lgkmcnt(0)")
    a("s_barrier")
    tstamp(1)
    for k in range(4): a(f"ds_read_b128 v[{20+4*k}:{23+4*k}], v65 offset:{L_ML+16*k}")
    for w in range(10): a(f"ds_read_b128 v[{148+4*w}:{151+4*w}], v6 offset:{L_OP+768*w}")
    a("s_waitcnt lgkmcnt(0)" if st == "tail" else "s_waitcnt lgkmcnt(9)")
    for w in range(10, 16): a(f"ds_read_b128 v[{148+4*w}:{151+4*w}], v6 offset:{L_OP+768*w}")
    a("v_max3_f32 v68, v20, v22, v24"); a("v_max3_f32 v68, v68, v26, v28")
    a("v_max3_f32 v68, v68, v30, v32"); a("v_max_f32 v68, v68, v34")
    for w in range(8): a(f"v_sub_f32 v{20+2*w}, v{20+2*w}, v68")
    for w in range(8): a(f"v_exp_f32 v{20+2*w}, v{20+2*w}")
    a("v_mul_f32 v69, v20, v21")
    for w in range(1, 8): a(f"v_fmac_f32 v69, v{20+2*w}, v{21+2*w}")
    a("s_waitcnt lgkmcnt(0)")
    for w in range(8):
        a(f"v_pk_add_f32 v[{148+8*w}:{149+8*w}], v[{148+8*w}:{149+8*w}], v[{152+8*w}:{153+8*w}]")
        a(f"v_pk_add_f32 v[{150+8*w}:{151+8*w}], v[{150+8*w}:{151+8*w}], v[{154+8*w}:{155+8*w}]")
    for r in range(4): a(f"v_mul_f32 v{72+r}, v20, v{148+r}")
    for w in range(1, 8):
        for r in range(4): a(f"v_fmac_f32 v{72+r}, v{20+2*w}, v{148+8*w+r}")
    a("v_cndmask_b32 v72, v72, v68, s[62:63]"); a("v_cndmask_b32 v73, v73, v69, s[62:63]")
    a("v_cndmask_b32 v74, v74, v68, s[62:63]"); a("v_cndmask_b32 v75, v75, v69, s[62:63]")
    for r in range(4): a(f"v_min_u32 v{72+r}, -2, v{72+r}")
    a("s_mov_b32 exec_lo, -1"); a("s_mov_b32 exec_hi, 0xfffff")
    a("s_cmp_eq_u32 s66, 2"); a("s_cbranch_scc1 L_h1L")
    a(f"buffer_store_dwordx4 v[72:75], v66, {WS_}, s56 offen sc1")
    a("s_mov_b64 exec, -1")
    a("s_branch L_b3b")
    a.label("L_h1L")
    a(f"buffer_store_dwordx4 v[72:75], v66, {WS_}, s56 offen")
    a("s_mov_b64 exec, -1")
    tstamp(2)
    a("s_branch L_b3b")
    a.label("L_fin")
    tstamp(5); tstamp(6); stamp(6)
    a("s_cmp_ge_u32 s2, 20")
    a("s_cbranch_scc1 L_done")
    a("v_lshrrev_b32 v15, 3, v0"); a("v_mul_u32_u24 v15, 2560, v15")
    a("v_add_u32 v15, v15, v3")
    a("s_lshl_b32 s62, s2, 7"); a("s_add_u32 s62, s62, %d" % MB2_OFF); a("s_add_u32 s61, s62, %d" % (64 * 2560))
    a("v_lshlrev_b32 v16, 2, v2"); a("s_lshl_b32 s60, s2, 6")
    a(f"buffer_load_dword v17, v16, {X_}, s60 offen")
    a(f"s_mov_b32 s63, {SPIN_MAX}")
    def p2(k):
        b = 72 + 8 * k
        a(f"buffer_load_dwordx4 v[{b}:{b+3}], v15, {WS_}, s62 offen sc1")
        a(f"buffer_load_dwordx4 v[{b+4}:{b+7}], v15, {WS_}, s61 offen sc1")
    for k in range(NP2):
        p2(k)
        if k < NP2 - 1: a(f"s_sleep {gap2}")
    a.label("L_poll2")
    for k in range(NP2):
        b = 72 + 8 * k
        a(f"s_waitcnt vmcnt({2*(NP2-1)})")
        if tag:
            a(f"v_and_b32 v18, v{b}, v{b+1}"); a(f"v_and_b32 v19, v{b+2}, v{b+3}"); a(f"v_and_b32 v20, v{b+4}, v{b+5}"); a(f"v_and_b32 v21, v{b+6}, v{b+7}")
            a("v_and_b32 v18, v18, v19"); a("v_and_b32 v20, v20, v21"); a("v_and_b32 v18, v18, v20"); a("v_and_b32 v18, 1, v18")
        else:
            a(f"v_max3_u32 v18, v{b}, v{b+1}, v{b+2}"); a(f"v_max3_u32 v18, v18, v{b+3}, v{b+4}"); a(f"v_max3_u32 v18, v18, v{b+5}, v{b+6}"); a(f"v_max_u32 v18, v18, v{b+7}")
        for r in range(4): a(f"v_add_f32 v{64+r}, v{b+r}, v{b+4+r}")
        a("v_cmp_eq_u32 vcc, 0, v18" if tag else "v_cmp_eq_u32 vcc, -1, v18")
        a("s_cmp_eq_u64 vcc, 0")
        a("s_cbranch_scc1 L_go2")
        p2(k)
    a("s_sub_u32 s63, s63, 1"); a("s_cmp_lg_u32 s63, 0")
    a("s_cbranch_scc1 L_poll2")
    a.label("L_go2")
    tstamp(6)
    a("v_permlane32_swap_b32 v64, v66"); a("v_permlane32_swap_b32 v65, v67")
    a("v_add_f32 v64, v64, v66"); a("v_add_f32 v65, v65, v67")
    a("v_permlane16_swap_b32 v64, v65"); a("v_add_f32 v64, v64, v65")
    a("v_add_f32_dpp v64, v64, v64 row_ror:8 row_mask:0xf bank_mask:0xf")
    a("v_lshrrev_b32 v18, 4, v2"); a("v_lshlrev_b32 v18, 2, v18")
    a("s_lshl_b32 s62, s3, 7")
    a("v_add3_u32 v18, v18, v3, s62")
    a(f"ds_write_b32 v18, v64 offset:{L_FIN}")
    a("s_waitcnt lgkmcnt(0)")
    a("s_barrier")
    a("s_cmp_lg_u32 s3, 0")
    a("s_cbranch_scc1 L_done")
    a("s_mov_b64 exec, 0xffff")
    a("v_lshlrev_b32 v18, 3, v2")
    for w in range(8): a(f"ds_read_b64 v[{160+2*w}:{161+2*w}], v18 offset:{L_FIN+128*w}")
    unpack(17, 64, 65)
    a("s_waitcnt lgkmcnt(0)")
    for w in range(8):
        a(f"v_add_f32 v64, v64, v{160+2*w}"); a(f"v_add_f32 v65, v65, v{161+2*w}")
    a("v_cvt_pk_bf16_f32 v64, v64, v65")
    a(f"buffer_store_dword v64, v16, {OUT_}, s60 offen")
    a("s_mov_b64 exec, -1")
    a.label("L_done")
    if st: a("s_waitcnt vmcnt(0)" if False else "s_nop 0")
    if st == "wave":
        a("s_waitcnt lgkmcnt(0)")
        a("v_mov_b32 v64, s88"); a("v_mov_b32 v65, s89"); a("v_mov_b32 v66, s96"); a("v_mov_b32 v67, s97")
        a("s_lshl_b32 s63, s2, 7"); a("s_lshl_b32 s62, s3, 4"); a("s_add_u32 s63, s63, s62"); a(f"s_add_u32 s63, s63, {STAMP_OFF}")
        a("v_mov_b32 v15, 0"); a("s_mov_b64 exec, 1")
        a(f"buffer_store_dwordx4 v[64:67], v15, {WS_}, s63 offen")
    elif st:
        a("s_memrealtime s[86:87]")
        a("s_cmp_eq_u32 s3, 0"); a("s_cselect_b32 s62, 0, 1")
        a(f"s_cmp_eq_u32 s3, {AUX}"); a("s_cselect_b32 s63, 0, 1")
        a("s_and_b32 s63, s63, s62"); a("s_cmp_eq_u32 s63, 1"); a("s_cbranch_scc1 L_end")
        a("s_waitcnt lgkmcnt(0)")
        for i in range(7):
            a(f"v_mov_b32 v{64+2*i}, s{88+2*i}"); a(f"v_mov_b32 v{65+2*i}, s{89+2*i}")
        a("v_mov_b32 v78, s86"); a("v_mov_b32 v79, s87")
        a("s_lshl_b32 s63, s2, 7"); a("s_lshl_b32 s62, s62, 6"); a("s_add_u32 s63, s63, s62"); a(f"s_add_u32 s63, s63, {STAMP_OFF}")
        a("v_mov_b32 v15, 0"); a("s_mov_b64 exec, 1")
        for i in range(4): a(f"buffer_store_dwordx4 v[{64+4*i}:{67+4*i}], v15, {WS_}, s63 offen offset:{16*i}")
    a.label("L_end")
    a("s_endpgm")
    R('.section .rodata,"a"'); R(".p2align 6"); R(f".amdhsa_kernel {KN}")
    R("  .amdhsa_next_free_vgpr 256"); R("  .amdhsa_next_free_sgpr 102"); R("  .amdhsa_accum_offset 256")
    R("  .amdhsa_group_segment_fixed_size 0"); R("  .amdhsa_kernarg_size 96"); R("  .amdhsa_user_sgpr_count 2")
    R("  .amdhsa_user_sgpr_kernarg_segment_ptr 1"); R("  .amdhsa_system_sgpr_workgroup_id_x 1"); R(".end_amdhsa_kernel")
    txt = a.text()
    if spol != 'nt': txt = txt.replace(" nt\n", " " + spol + "\n")
    open(fname, "w").write(txt)

if __name__ == "__main__":
    E = [4, 8, 11, 14, 17, 20, 24, 27]
    base = dict(entries=E, budget=1, wfirst=False, psleep=24, pre=6)
    gen("k16_c.s", cpol="sc1 nt ", **base)
    gen("k16_tc.s", tag=1, cpol="sc1 nt ", **base)
    gen("k16_tcp.s", tag=1, cpol="sc1 nt ", pubnt=1, **base)
```

```python
import sys
from asmlib import Asm
KN = "parallel_sum__sliding_block_cached__glu_gated_swiglu__decode_kernel"

MBX_OFF, MB2_OFF, QX_OFF, QMB_OFF = 0x80000, 0x100000, 0x200000, 0x60000
STAMP_OFF = 64 << 20
L_P1 = 0
L_QB = 2816
L_HB = L_QB + 384
L_FLAG = 3328
L_OB = 3392
L_ML = 3584
L_OP = 3712
L_FIN = 16256
LDS_SIZE = 17408
OOB = 0x40000000
LOG2E = 0x3fb8aa3b
SCALE = 0x3d93cd3a
SPIN_MAX = 1 << 20
AUX = 7
CLR = 6

K_, V_, WS_, WQ_, WO_, W1_, W3_, W2_, X_, OUT_, DBG_ = [f"s[{i}:{i+3}]" for i in range(8, 52, 4)]
DPP3 = ("quad_perm:[1,0,3,2]", "quad_perm:[2,3,0,1]", "row_half_mirror")
KB, VB = 40, 148
DACC, MSK, AOP, WO, W2, PD = 40, 52, 56, 92, 116, 124
MF = "v_mfma_f32_16x16x32_bf16"

class VM:
    def __init__(self, a):
        self.a = a; self.n = 0; self.done = 0
    def issue(self, s):
        self.a(s); self.n += 1; return self.n - 1
    def wait_id(self, i):
        if i < self.done: return
        self.a(f"s_waitcnt vmcnt({self.n - 1 - i})"); self.done = i + 1
    def throttle(self, T):
        if self.n - self.done > T - 1:
            self.a(f"s_waitcnt vmcnt({T-1})"); self.done = self.n - (T - 1)
    def set(self, n, d):
        self.n = n; self.done = d

def gen(fname, T=4, TL=None, NV=2, budget=2, prio=1, st=None, wfirst=True, abl='', tlb=0, psleep=2, pre=0, cpos=0, cpol='sc1', cnum=5, h1pol='sc1', pupol='sc1', qppol='sc1', xcpos=5, forcex=0, NP2=1, gap2=4, NP1=1, gap1=2, lpos=0, rot=3, fine=0, entries=None, spol='nt', tag=0, xnt=0, pubnt=0, b0pos=10, bulkb0=0, dummy=0):
    TL = T if TL is None else TL
    MB2_OFF = QX_OFF if tag else 0x100000
    a = Asm()
    R = a.raw
    R("; fused decode: layernorm + q-proj + sliding-window attention + out-proj + swiglu MLP")
    R(f"; @launch grid=(256,1,1) block=(512,1,1) lds={LDS_SIZE}")
    R('.amdgcn_target "amdgcn-amd-amdhsa--gfx950"')
    R(".text"); R(f".globl {KN}"); R(".p2align 8"); R(f".type {KN},@function"); R(f"{KN}:")
    def stamp(i, kinds=("main", "wave")):
        if st in kinds: a(f"s_memrealtime s[{88+2*i}:{89+2*i}]")
    def tstamp(i): stamp(i, ("tail",))
    def unpack(src, dlo, dhi):
        a(f"v_lshlrev_b32 v{dlo}, 16, v{src}"); a(f"v_and_b32 v{dhi}, 0xffff0000, v{src}")
    def lohi(src, d):
        a(f"v_and_b32 v{d}, 0xffff, v{src}"); a(f"v_lshlrev_b32 v{d+1}, 16, v{src}")
        a(f"v_lshrrev_b32 v{d+2}, 16, v{src}"); a(f"v_and_b32 v{d+3}, 0xffff0000, v{src}")
    def exec_hi16():
        a("s_mov_b32 exec_lo, 0"); a("s_mov_b32 exec_hi, 0xffff0000")
    def exec_valid():
        a("s_mov_b32 exec_lo, 0x00ff00ff"); a("s_mov_b32 exec_hi, 0xff00ff00")
    def srd(base, ptr, size):
        a(f"s_mov_b32 s{base}, s{ptr}"); a(f"s_mov_b32 s{base+1}, s{ptr+1}")
        a(f"s_mov_b32 s{base+2}, {size}"); a(f"s_mov_b32 s{base+3}, 0x00020000")
    def masks(d, t0, t1):
        a(f"v_and_b32 v{t0}, 1, v2"); a(f"v_lshlrev_b32 v{t0}, 4, v{t0}")
        a(f"v_mov_b32 v{t1}, 0xffff"); a(f"v_lshlrev_b32 v{t1}, v{t0}, v{t1}")
        a(f"v_bfe_u32 v{t0}, v2, 1, 2")
        for r in range(4):
            a(f"v_cmp_eq_u32 vcc, {r}, v{t0}")
            a(f"v_cndmask_b32 v{d+r}, 0, v{t1}, vcc")
    vm = VM(a)
    a("s_cmp_ge_u32 s2, 256")
    a("s_cbranch_scc1 L_end")
    stamp(0, ("main", "wave", "tail"))
    a("s_load_dwordx16 s[52:67], s[0:1], 0")
    a("s_load_dwordx8 s[68:75], s[0:1], 64")
    a("v_lshrrev_b32 v15, 6, v0")
    a("v_and_b32 v2, 63, v0")
    a("v_readfirstlane_b32 s3, v15")
    a("s_and_b32 s4, s2, 31")
    a("s_lshr_b32 s5, s2, 5")
    a("s_lshr_b32 s6, s5, 1")
    a("s_and_b32 s7, s5, 1")
    a("v_lshrrev_b32 v15, 3, v2")
    a("v_and_b32 v3, 7, v2"); a("v_lshlrev_b32 v3, 4, v3")
    a("v_mul_u32_u24 v1, 384, v15"); a("v_add_u32 v1, v1, v3")
    a("v_lshlrev_b32 v6, 4, v2")
    a("s_mul_i32 s76, s4, 12582912"); a("s_mul_i32 s77, s5, %d" % (512 * 384))
    a("s_add_u32 s76, s76, s77"); a("s_add_u32 s76, s76, %d" % (28672 * 384))
    a(f"s_cmp_eq_u32 s3, {AUX}")
    a("s_cbranch_scc1 L_aux")

    SO = 78
    def kload(n, base=KB):
        i, j = divmod(n, 3); r = base + 4 * n
        return vm.issue(f"buffer_load_dwordx4 v[{r}:{r+3}], v1, {K_}, s{SO+i} offen offset:{j*128} nt")
    def vload(n, base=VB):
        i, j = divmod(n, 3); r = base + 4 * n
        return vm.issue(f"buffer_load_dwordx4 v[{r}:{r+3}], v1, {V_}, s{SO+i} offen offset:{j*128} nt")

    def setup_common():
        srd(16, 74, 1610612736); srd(24, 60, 7864320); srd(36, 68, 1966080); srd(44, 70, 1280); srd(48, 72, 256)
        srd(40, 52, 1280)
        a("s_mul_i32 s52, s4, 192"); a("s_mul_i32 s63, s6, 48"); a("s_add_u32 s52, s52, s63"); a("s_mul_i32 s52, s52, 1280")
        a("s_mul_i32 s63, s7, 640"); a("s_add_u32 s52, s52, s63")
        a("s_lshl_b32 s53, s4, 6"); a("s_lshl_b32 s62, s6, 4"); a("s_add_u32 s53, s53, s62"); a("s_mul_i32 s53, s53, 1280")
        a("s_add_u32 s53, s53, s63")
        a("s_cmp_lt_u32 s4, 24"); a("s_cselect_b32 s53, s53, %d" % OOB)
        a("s_sub_u32 s62, s3, 1"); a("s_cmp_lt_u32 s62, 4"); a("s_cselect_b32 s62, s62, 8"); a("s_cmp_eq_u32 s3, 7"); a("s_cselect_b32 s62, 4, s62")
        a("s_lshl_b32 s63, s62, 7"); a("s_cmp_lt_u32 s62, 5"); a("s_cselect_b32 s63, s63, %d" % OOB)
        a("s_add_u32 s52, s52, s63"); a("s_add_u32 s53, s53, s63"); a("s_add_u32 s64, s52, 5120")
        a("s_lshl_b32 s65, s62, 8")
        a("s_lshl_b32 s54, s4, 13"); a("s_add_u32 s54, s54, %d" % MBX_OFF)
        a("s_lshl_b32 s62, s6, 11"); a("s_add_u32 s55, s54, s62")
        a("s_lshl_b32 s62, s5, 8"); a("s_add_u32 s56, s54, s62")
        a("s_mul_i32 s57, s4, 10240"); a("s_add_u32 s57, s57, %d" % QX_OFF)
        a("s_lshl_b32 s58, s4, 2"); a("s_add_u32 s58, s58, s6"); a("s_mul_i32 s58, s58, 2560")
        a("s_mul_i32 s62, s7, 1280"); a("s_add_u32 s58, s58, s62"); a("s_add_u32 s58, s58, %d" % MB2_OFF); a("s_add_u32 s58, s58, s65")
        a("s_mul_i32 s59, s4, 10240"); a("s_mul_i32 s62, s5, 1280"); a("s_add_u32 s59, s59, s62"); a("s_add_u32 s59, s59, %d" % QX_OFF)
    def setup_proj():
        a("v_lshrrev_b32 v15, 3, v2")
        a("v_mul_u32_u24 v4, 7680, v15"); a("v_add_u32 v4, v4, v3")
        a("v_mul_u32_u24 v5, 2560, v15"); a("v_add_u32 v5, v5, v3")
        a("v_lshlrev_b32 v9, 2, v15"); a("s_lshl_b32 s87, s6, 5"); a("v_add_u32 v9, s87, v9")
        a("v_lshlrev_b32 v8, 4, v3")
        a("v_mul_u32_u24 v7, 24, v15")
        a("v_and_b32 v16, 16, v2")
        a("v_lshl_add_u32 v11, v3, 1, v16")
        a("v_lshrrev_b32 v15, 5, v2"); a("v_mul_u32_u24 v15, 768, v15")
        a("s_mul_i32 s87, s3, 1536")
        a("v_add3_u32 v14, v11, v15, s87")

    late = [f"buffer_load_dwordx4 v[{W2+4*i}:{W2+3+4*i}], v5, {W2_}, s53 offen offset:{1280*i} nt" for i in range(2)]
    late += [f"buffer_load_dwordx4 v[{WO+4*i}:{WO+3+4*i}], v4, {WO_}, {'s52' if i < 4 else 's64'} offen offset:{1280*(i%4)} nt" for i in range(6)]

    def read_q():
        for j in range(3):
            a(f"ds_read_b128 v[{20+4*j}:{23+4*j}], v3 offset:{L_QB+128*j}")
        a(f"ds_read_b32 v10, v9 offset:{L_HB}")
    def t_score(groups, sc, kb, first):
        def f():
            if first: a("s_waitcnt lgkmcnt(0)")
            for i in groups: a(f"v_mov_b32 v{sc[i]}, 0")
            for j in range(3):
                for r in range(4):
                    for i in groups:
                        a(f"v_dot2c_f32_bf16 v{sc[i]}, v{kb+12*i+4*j+r}, v{20+4*j+r}")
            for m in DPP3:
                for i in groups:
                    a(f"v_add_f32_dpp v{sc[i]}, v{sc[i]}, v{sc[i]} {m} row_mask:0xf bank_mask:0xf")
            s0 = sc[groups[0]]; s1 = sc[groups[-1]]
            for rnd in range(2):
                a(f"v_cvt_pk_bf16_f32 v15, v{s0}, v{s1}")
                a(f"v_lshlrev_b32 v{s0}, 16, v15")
                if s1 != s0: a(f"v_and_b32 v{s1}, 0xffff0000, v15")
                if rnd == 0:
                    for i in groups: a(f"v_mul_f32 v{sc[i]}, {SCALE:#x}, v{sc[i]}")
        return f
    def t_softmax(G, sc):
        def f1():
            a(f"v_mov_b32 v15, v{sc[0]}")
            rest = list(range(1, G))
            for k in range(0, len(rest), 2): a(f"v_max3_f32 v15, v15, v{sc[rest[k]]}, v{sc[rest[k+1]]}")
            a("v_max_f32_dpp v15, v15, v15 row_ror:8 row_mask:0xf bank_mask:0xf")
            for r in range(DACC, DACC + 12): a(f"v_mov_b32 v{r}, 0")
            a("v_mov_b32 v16, v15"); a("v_permlane16_swap_b32 v15, v16"); a("v_max_f32 v15, v15, v16")
            a("v_mov_b32 v16, v15"); a("v_permlane32_swap_b32 v15, v16"); a("v_max_f32 v15, v15, v16")
            a(f"v_mul_f32 v12, {LOG2E:#x}, v15")
            masks(MSK, 17, 18)
        def f2():
            a(f"s_mov_b32 s62, {LOG2E:#x}")
            for i in range(G): a(f"v_fma_f32 v{sc[i]}, v{sc[i]}, s62, -v12")
            for i in range(G): a(f"v_exp_f32 v{sc[i]}, v{sc[i]}")
            for i in range(G): a(f"v_cvt_pk_bf16_f32 v{sc[i]}, v{sc[i]}, v{sc[i]}")
        def f3():
            for i in range(G):
                for r in range(4): a(f"v_and_b32 v{AOP+4*i+r}, v{MSK+r}, v{sc[i]}")
        def f4():
            a(f"v_and_b32 v13, 0xffff0000, v{sc[0]}")
            for i in range(1, G):
                a(f"v_and_b32 v15, 0xffff0000, v{sc[i]}"); a("v_add_f32 v13, v13, v15")
            a("v_add_f32_dpp v13, v13, v13 row_ror:8 row_mask:0xf bank_mask:0xf")
            a("v_mov_b32 v16, v13"); a("v_permlane16_swap_b32 v13, v16"); a("v_add_f32 v13, v13, v16")
            a("v_mov_b32 v16, v13"); a("v_permlane32_swap_b32 v13, v16"); a("v_add_f32 v13, v13, v16")
            a("s_lshl_b32 s62, s3, 3"); a("v_mov_b32 v16, s62")
            a(f"ds_write_b64 v16, v[12:13] offset:{L_ML}")
        return [f1, f2, f3, f4]
    def t_pv(n, vb):
        def f():
            i, j = divmod(n, 3)
            d = DACC + 4 * j
            a(f"{MF} v[{d}:{d+3}], v[{AOP+4*i}:{AOP+3+4*i}], v[{vb+4*n}:{vb+3+4*n}], v[{d}:{d+3}]")
        return f

    if rot == 2:
        a("s_lshr_b32 s77, s2, 3"); a("s_add_u32 s77, s77, s3"); a("s_add_u32 s77, s77, s2")
    elif rot == 3:
        a("s_lshr_b32 s77, s2, 3"); a("s_add_u32 s77, s77, s2")
    else:
        a("s_mov_b32 s77, 0")
    a("s_mul_i32 s87, s77, 57"); a("s_lshr_b32 s87, s87, 9"); a("s_mul_i32 s87, s87, 9"); a("s_sub_u32 s77, s77, s87")
    a("s_mul_i32 s87, s3, 3072"); a("s_add_u32 s76, s76, s87")
    for i in range(9):
        a(f"s_add_u32 s{SO+i}, s77, {i}"); a(f"s_sub_u32 s87, s{SO+i}, 9"); a(f"s_cmp_ge_u32 s{SO+i}, 9")
        a(f"s_cselect_b32 s{SO+i}, s87, s{SO+i}"); a(f"s_mul_i32 s{SO+i}, s{SO+i}, {7*3072}"); a(f"s_add_u32 s{SO+i}, s{SO+i}, s76")
    if prio:
        a("s_cmp_lt_u32 s3, 4"); a("s_cbranch_scc1 L_noprio"); a(f"s_setprio {prio}"); a.label("L_noprio")
    setup_proj()
    a("s_waitcnt lgkmcnt(0)")
    srd(8, 54, 402653184)
    kid = {}
    if not wfirst:
        for n in range(T): kid[n] = kload(n)
    srd(12, 56, 402653184)
    setup_common()
    if tlb:
        a("s_cmp_lg_u32 s3, 5"); a("s_cbranch_scc1 L_notlb")
        a("s_mov_b64 exec, 1"); a("v_mov_b32 v20, 0")
        a("s_add_u32 s62, s76, %d" % (196608 - 5 * 3072 - 64))
        a(f"buffer_load_dword v21, v20, {V_}, s76 offen nt")
        a(f"buffer_load_dword v22, v20, {V_}, s62 offen nt")
        a(f"buffer_load_dword v23, v20, {K_}, s62 offen nt")
        a(f"buffer_load_dword v24, v20, {WO_}, s52 offen nt")
        a(f"buffer_load_dword v25, v20, {W2_}, s53 offen nt")
        a(f"buffer_load_dword v26, v20, {WS_}, s57 offen nt")
        a(f"buffer_load_dword v27, v20, {OUT_}, 0 offen nt")
        a("s_mov_b64 exec, -1")
        a.label("L_notlb")
    if bulkb0 == 0: a("s_barrier")
    if wfirst:
        for n in range(T): kid[n] = kload(n)
    for n in range(dummy):
        i, j = divmod(n, 3); r = VB + 4 * n
        a(f"s_sub_u32 s87, s{SO+i}, {8192*384}")
        vm.throttle(T); vm.issue(f"buffer_load_dwordx4 v[{r}:{r+3}], v1, {K_}, s87 offen offset:{j*128} nt")
    for n in range(T, 27):
        vm.throttle(T); kid[n] = kload(n)
        if bulkb0 and n == T + bulkb0 - 1: a("s_barrier")
    sc = [32 + i for i in range(8)] + [19]
    groups = ((0, 1), (2, 3), (4, 5), (6, 7), (8,)) if not fine else tuple((i,) for i in range(9))
    def continuation(nv, vid, bud):
        read_q()
        tasks = [(lambda g=g: kid[3 * g[-1] + 2], t_score(g, sc, KB, g[0] == 0), 4) for g in groups]
        tasks += [(lambda: -1, f, 4) for f in t_softmax(9, sc)]
        tasks += [(lambda n=n: vid.get(n, 10**9), t_pv(n, VB), 0.5) for n in range(27)]
        ndone = 0
        for n in range(nv, 35):
            if n >= 27:
                while ndone < len(groups) + 3:
                    t = tasks.pop(0)
                    if t[0]() >= 0: vm.wait_id(t[0]())
                    t[1](); ndone += 1
            if n < 27 + TL - 1: vm.throttle(TL)
            if n < 27: vid[n] = vload(n)
            elif lpos == 0: vm.issue(late[n - 27])
            b = bud * 4
            while b > 0 and tasks and tasks[0][0]() < vm.done:
                t = tasks.pop(0); t[1](); b -= t[2]; ndone += 1
        while tasks:
            req, f, c = tasks.pop(0)
            if req() >= 0: vm.wait_id(req())
            f()
        stamp(4)
        a("s_branch L_tail")
    ent = entries if entries else [NV]
    vid = {}
    saved = []
    a(f"v_mov_b32 v15, {L_FLAG}")
    for n in range(ent[-1]):
        if n + 1 in ent[:-1]: a("ds_read_b32 v16, v15")
        vm.throttle(T); vid[n] = vload(n)
        if n + 1 in ent[:-1]:
            a("s_waitcnt lgkmcnt(0)")
            a("v_readfirstlane_b32 s66, v16")
            a("s_cmp_lg_u32 s66, 0")
            a(f"s_cbranch_scc1 L_cont{n+1}")
            saved.append((n + 1, dict(vid), (vm.n, vm.done)))
    stamp(2)
    a(f"s_mov_b32 s63, {SPIN_MAX}")
    a.label("L_flag")
    a("ds_read_b32 v16, v15")
    a("s_waitcnt lgkmcnt(0)")
    a("v_readfirstlane_b32 s66, v16")
    a("s_cmp_lg_u32 s66, 0")
    a("s_cbranch_scc1 L_flagok")
    a("s_sleep 2")
    a("s_sub_u32 s63, s63, 1")
    a("s_cmp_lg_u32 s63, 0")
    a("s_cbranch_scc1 L_flag")
    a.label("L_flagok")
    stamp(3)
    def bud_for(nv): return budget if nv <= 16 else 2 * budget
    continuation(ent[-1], vid, bud_for(ent[-1]))
    for (nv, v, stt) in saved:
        a.label(f"L_cont{nv}")
        vm.set(*stt)
        stamp(2); stamp(3)
        continuation(nv, v, bud_for(nv))

    a.label("L_aux")
    vm.set(0, 0)
    a("s_setprio 2")
    a(f"v_mov_b32 v16, {L_FLAG}"); a("v_mov_b32 v17, 0")
    a("ds_write_b32 v16, v17")
    a("v_mul_u32_u24 v4, 122880, v15"); a("v_add_u32 v4, v4, v3")
    a("v_mul_u32_u24 v5, 30720, v15"); a("v_add_u32 v5, v5, v3")
    a("v_mul_u32_u24 v7, 20, v15")
    a(f"s_add_u32 s{SO}, s76, {63*3072}")
    a("s_mul_i32 s79, s5, 160")
    a("s_mul_i32 s80, s5, %d" % (80 * 12288)); a("s_mul_i32 s77, s4, 384"); a("s_add_u32 s80, s80, s77")
    a("s_mul_i32 s81, s5, %d" % (80 * 3072)); a("s_lshl_b32 s77, s4, 7"); a("s_add_u32 s81, s81, s77")
    a("s_cmp_lt_u32 s4, 24"); a("s_cselect_b32 s81, s81, %d" % OOB)
    a("s_lshl_b32 s82, s2, 9"); a("s_add_u32 s82, s82, %d" % QMB_OFF)
    a("v_lshlrev_b32 v14, 3, v2")
    a("s_lshl_b32 s83, s4, 13"); a("s_lshl_b32 s77, s5, 8"); a("s_add_u32 s83, s83, s77"); a("s_add_u32 s83, s83, %d" % MBX_OFF)
    a("v_lshrrev_b32 v12, 4, v2"); a("v_lshlrev_b32 v12, 11, v12"); a("v_and_b32 v13, 15, v2"); a("v_lshl_add_u32 v12, v13, 4, v12")
    a("s_lshl_b32 s84, s4, 2"); a("s_add_u32 s84, s84, s6"); a("s_mul_i32 s84, s84, 2560")
    a("s_mul_i32 s77, s7, 1280"); a("s_add_u32 s84, s84, s77"); a("s_add_u32 s84, s84, %d" % MB2_OFF)
    a("s_getreg_b32 s85, hwreg(HW_REG_XCC_ID)"); a("s_and_b32 s85, s85, 15")
    a("s_mul_i32 s77, s85, s85"); a("s_lshl_b32 s77, s77, 12"); a("s_lshl_b32 s85, s85, 4"); a("s_add_u32 s85, s85, s77"); a("s_add_u32 s85, s85, 1")
    masks(8, 16, 17)
    for r in range(52, 56): a(f"v_mov_b32 v{r}, -1")
    a("s_waitcnt lgkmcnt(0)")
    srd(16, 74, 1610612736); srd(48, 72, 256)
    def clears():
        if 'a' in abl: return
        vm.issue(f"buffer_store_dwordx2 v[52:53], v14, {WS_}, s82 offen {cpol}")
        if cnum < 2: return
        vm.issue(f"buffer_store_dwordx4 v[52:55], v12, {WS_}, s83 offen {cpol}")
        if tag: return
        vm.issue(f"buffer_store_dwordx4 v[52:55], v6, {WS_}, s84 offen {cpol}")
        a("s_mov_b64 exec, 0xffff")
        vm.issue(f"buffer_store_dwordx4 v[52:55], v6, {WS_}, s84 offen offset:1024 {cpol}")
        a("s_mov_b64 exec, -1")
    if cpos == 0: clears()
    srd(40, 52, 1280); srd(20, 58, 7864320)
    ix0 = vm.issue(f"buffer_load_dwordx4 v[32:35], v6, {X_}, 0 offen")
    ix1 = vm.issue(f"buffer_load_dwordx4 v[36:39], v6, {X_}, 0 offen offset:1024")
    vm.issue(f"buffer_load_dwordx4 v[16:19], v7, {X_}, s79 offen")
    ixo = vm.issue(f"buffer_load_dword v15, v7, {X_}, s79 offen offset:16")
    srd(28, 64, 1966080); srd(32, 66, 1966080)
    iw = {}
    for i in range(10):
        b = 56 + 20 * i
        for j in range(3):
            vm.issue(f"buffer_load_dwordx4 v[{b+4*j}:{b+3+4*j}], v4, {WQ_}, s80 offen offset:{128*j} nt")
        vm.issue(f"buffer_load_dwordx4 v[{b+12}:{b+15}], v5, {W1_}, s81 offen nt")
        iw[i] = vm.issue(f"buffer_load_dwordx4 v[{b+16}:{b+19}], v5, {W3_}, s81 offen nt")
        if i < 9:
            a("s_add_u32 s80, s80, 12288"); a("s_add_u32 s81, s81, 3072")
        if i + 1 == b0pos: a("s_barrier")
    if cpos == 1: clears()
    srd(8, 54, 402653184); srd(12, 56, 402653184)
    setup_common()
    a("s_and_b32 s62, s4, 16"); a("s_add_u32 s62, s62, s4"); a("s_lshl_b32 s62, s62, 2"); a("v_mov_b32 v12, s62")
    a("v_mov_b32 v13, s85")
    vm.wait_id(ixo)
    for k in range(4): unpack(16 + k, 20 + 2 * k, 21 + 2 * k)
    unpack(15, 28, 29)
    for r in range(8): unpack(32 + r, 40 + 2 * r, 41 + 2 * r)
    def wave_sum(v, sdst):
        for m in DPP3 + ("row_mirror",):
            a(f"v_add_f32_dpp v{v}, v{v}, v{v} {m} row_mask:0xf bank_mask:0xf")
        for k in range(4): a(f"v_readlane_b32 s{sdst+k}, v{v}, {16*k}")
        a(f"v_mov_b32 v{v}, s{sdst}")
        for k in range(1, 4): a(f"v_add_f32 v{v}, s{sdst+k}, v{v}")
    a("v_add_f32 v15, v40, v41")
    for r in range(42, 56): a(f"v_add_f32 v15, v15, v{r}")
    wave_sum(15, 60)
    a("v_mul_f32 v15, 0x3acccccd, v15")
    a("v_mov_b32 v16, 0")
    for r in range(40, 48):
        a(f"v_sub_f32 v17, v{r}, v15"); a("v_fmac_f32 v16, v17, v17")
    a("s_mov_b64 exec, 0xffff")
    for r in range(48, 56):
        a(f"v_sub_f32 v17, v{r}, v15"); a("v_fmac_f32 v16, v17, v17")
    a("s_mov_b64 exec, -1")
    wave_sum(16, 60)
    a("v_mul_f32 v16, 0x3acccccd, v16")
    a("v_cvt_pk_bf16_f32 v17, v15, v16")
    a("v_lshlrev_b32 v15, 16, v17")
    a("v_and_b32 v16, 0xffff0000, v17")
    a("v_add_f32 v16, 0x3727c5ac, v16")
    a("v_cvt_pk_bf16_f32 v16, v16, v16")
    a("v_lshlrev_b32 v16, 16, v16")
    a("v_sqrt_f32 v16, v16")
    a("v_cvt_pk_bf16_f32 v16, v16, v16")
    a("v_lshlrev_b32 v16, 16, v16")
    a("v_rcp_f32 v17, v16")
    for i in range(10): a(f"v_sub_f32 v{20+i}, v{20+i}, v15")
    for i in range(0, 10, 2):
        a(f"v_cvt_pk_bf16_f32 v18, v{20+i}, v{21+i}"); unpack(18, 20 + i, 21 + i)
    for i in range(10):
        a(f"v_mul_f32 v18, v{20+i}, v17")
        a(f"v_fma_f32 v19, -v18, v16, v{20+i}")
        a(f"v_fma_f32 v{20+i}, v19, v17, v18")
    for i in range(10): a(f"v_cvt_pk_bf16_f32 v{20+i}, v{20+i}, v{20+i}")
    for r in range(32, 52): a(f"v_mov_b32 v{r}, 0")
    a("v_lshrrev_b32 v15, 5, v2"); a("v_mul_u32_u24 v15, 1280, v15")
    a("v_and_b32 v16, 16, v2"); a("v_lshl_add_u32 v16, v3, 1, v16"); a("v_add_u32 v15, v15, v16")
    a("v_lshlrev_b32 v14, 3, v2")
    for i in range(10):
        for r in range(4): a(f"v_and_b32 v{52+r}, v{8+r}, v{20+i}")
        vm.wait_id(iw[i])
        b = 56 + 20 * i
        for c in range(5):
            a(f"{MF} v[{32+4*c}:{35+4*c}], v[52:55], v[{b+4*c}:{b+3+4*c}], v[{32+4*c}:{35+4*c}]")
    stamp(1)
    exec_valid()
    for c in range(5): a(f"ds_write_b128 v15, v[{32+4*c}:{35+4*c}] offset:{L_P1+256*c}")
    a("s_mov_b64 exec, -1")
    a("s_waitcnt lgkmcnt(0)")
    a(f"ds_read_b128 v[64:67], v6 offset:{L_P1}")
    a(f"ds_read_b128 v[68:71], v6 offset:{L_P1+1280}")
    a(f"ds_read_b128 v[72:75], v6 offset:{L_P1+256}")
    a(f"ds_read_b128 v[76:79], v6 offset:{L_P1+1280+256}")
    a("s_waitcnt lgkmcnt(0)")
    for r in range(4):
        a(f"v_add_f32 v{64+r}, v{64+r}, v{68+r}"); a(f"v_add_f32 v{72+r}, v{72+r}, v{76+r}")
    for r in range(4):
        a(f"v_and_b32 v{64+r}, -2, v{64+r}"); a(f"v_and_b32 v{72+r}, -2, v{72+r}")
    if 'b' in abl: a("s_branch L_atake")
    a(f"buffer_store_dwordx4 v[64:67], v6, {WS_}, s59 offen sc1" + (" nt " if pubnt else ""))
    exec_hi16()
    a(f"buffer_store_dwordx4 v[72:75], v6, {WS_}, s59 offen offset:256 sc1" + (" nt " if pubnt else ""))
    a("s_mov_b64 exec, -1")
    a("s_mov_b64 exec, 1")
    a("s_waitcnt vmcnt(0)")
    if 'n' in abl: pass
    elif 'r' in abl: a(f"buffer_atomic_add v13, v12, {DBG_}, 0 offen")
    elif 'w' in abl: a(f"buffer_atomic_add v13, v12, {WS_}, s82 offen sc0")
    else: a(f"buffer_atomic_add v13, v12, {DBG_}, 0 offen sc0")
    a("s_waitcnt vmcnt(0)")
    a("v_readfirstlane_b32 s62, v13")
    a("s_mov_b64 exec, -1")
    stamp(5)
    if 'c' in abl: a("s_branch L_atake")
    if st == "main":
        a("s_and_b32 s92, s62, 7"); a("s_mov_b32 s93, 0")
    a("s_mul_i32 s63, s85, 7"); a("s_cmp_eq_u32 s62, s63"); a("s_cselect_b32 s66, 2, 1")
    if forcex: a("s_mov_b32 s66, 1")
    a("s_add_u32 s67, s6, 1"); a("s_and_b32 s67, s67, 3"); a("s_lshl_b32 s67, s67, 2"); a("s_add_u32 s67, s67, 48")
    a("s_and_b32 s62, s62, 7"); a("s_cmp_eq_u32 s62, 7")
    a("s_cbranch_scc0 L_await")
    a("s_add_u32 s60, s57, 3840"); a("s_add_u32 s61, s57, 7680")
    if 'g' not in abl:
        for s in range(8):
            so = ("s57", "s60", "s61")[s // 3]
            a(f"buffer_load_dwordx4 v[{96+4*s}:{99+4*s}], v6, {WS_}, {so} offen offset:{(s%3)*1280} sc1")
        exec_hi16()
        for s in range(8):
            so = ("s57", "s60", "s61")[s // 3]
            a(f"buffer_load_dwordx4 v[{160+4*s}:{163+4*s}], v6, {WS_}, {so} offen offset:{(s%3)*1280+256} sc1")
        a("s_mov_b64 exec, -1")
        a("s_waitcnt vmcnt(0)")
    a.label("L_agot")
    for s in range(1, 8):
        for r in range(4):
            a(f"v_add_f32 v{96+r}, v{96+r}, v{96+4*s+r}")
            a(f"v_add_f32 v{160+r}, v{160+r}, v{160+4*s+r}")
    a("v_cvt_pk_bf16_f32 v20, v96, v97"); a("v_cvt_pk_bf16_f32 v21, v98, v99")
    a("v_cvt_pk_bf16_f32 v22, v160, v161"); a("v_cvt_pk_bf16_f32 v23, v162, v163")
    exec_hi16()
    unpack(20, 64, 65); unpack(21, 66, 67); unpack(22, 160, 161); unpack(23, 162, 163)
    for r in range(4): a(f"v_mul_f32 v{68+r}, {LOG2E|0x80000000:#x}, v{64+r}")
    for r in range(4): a(f"v_exp_f32 v{68+r}, v{68+r}")
    for r in range(4): a(f"v_add_f32 v{68+r}, 1.0, v{68+r}")
    for r in range(4): a(f"v_rcp_f32 v{72+r}, v{68+r}")
    for r in range(4): a(f"v_mul_f32 v{76+r}, v{64+r}, v{72+r}")
    a("v_cvt_pk_bf16_f32 v20, v76, v77"); a("v_cvt_pk_bf16_f32 v21, v78, v79")
    unpack(20, 64, 65); unpack(21, 66, 67)
    for r in range(4): a(f"v_mul_f32 v{64+r}, v{64+r}, v{160+r}")
    a("v_cvt_pk_bf16_f32 v20, v64, v65"); a("v_cvt_pk_bf16_f32 v21, v66, v67")
    a("s_mov_b64 exec, -1")
    a("v_min_u32 v20, -2, v20"); a("v_min_u32 v21, -2, v21")
    a("s_lshl_b32 s62, s4, 9"); a("s_add_u32 s62, s62, %d" % QMB_OFF)
    for rq in range(4):
        a(f"v_mov_b32 v{24+2*rq}, v20"); a(f"v_mov_b32 v{25+2*rq}, v21")
        a(f"v_writelane_b32 v{24+2*rq}, s66, {48 + 4 * ((rq + 1) & 3)}")
    a("s_cmp_eq_u32 s66, 2"); a("s_cbranch_scc1 L_pushL")
    for pol in ("sc1", ""):
        for s in range(8):
            a(f"buffer_store_dwordx2 v[{24+2*(s>>1)}:{25+2*(s>>1)}], v14, {WS_}, s62 offen {pol}")
            if s < 7: a("s_add_u32 s62, s62, %d" % (32 * 512))
        a("s_branch L_atake")
        if pol: a.label("L_pushL")
    a.label("L_await")
    if 'q' in abl: a("s_branch L_atake")
    if pre: a(f"s_sleep {16*pre}")
    a(f"s_mov_b32 s63, {SPIN_MAX}")
    a.label("L_aspin")
    a(f"buffer_load_dwordx2 v[20:21], v14, {WS_}, s82 offen sc1")
    a("s_waitcnt vmcnt(0)")
    a("v_max_u32 v22, v20, v21")
    a("v_cmp_eq_u32 vcc, -1, v22")
    a("s_cmp_eq_u64 vcc, 0")
    a("s_cbranch_scc1 L_agotq")
    a("s_sub_u32 s63, s63, 1"); a("s_cmp_eq_u32 s63, 0")
    a("s_cbranch_scc1 L_agotq")
    a(f"s_sleep {psleep}")
    a("s_branch L_aspin")
    a.label("L_agotq")
    a("v_readlane_b32 s66, v20, s67")
    a("s_cmp_eq_u32 s66, 2"); a("s_cselect_b32 s66, 2, 1")
    a.label("L_atake")
    a(f"ds_write_b64 v14, v[20:21] offset:{L_QB}")
    a(f"v_mov_b32 v22, {L_FLAG}"); a("v_mov_b32 v23, s66")
    a("s_waitcnt lgkmcnt(0)")
    a("ds_write_b32 v22, v23")
    stamp(3)
    a("s_setprio 0")
    vm.set(0, 0)
    AK, AV = 160, 148
    kida = [kload(n, AK) for n in range(3)]
    vida = [vload(n, AV) for n in range(3)]
    setup_proj()
    if lpos == 0:
        for l in late: vm.issue(l)
    read_q()
    vm.wait_id(kida[2])
    t_score((0,), [32], AK, True)()
    for f in t_softmax(1, [32]): f()
    vm.wait_id(vida[2])
    for n in range(3): t_pv(n, AV)()
    if 'f' in abl: a("s_branch L_acntok")
    a("s_cmp_ge_u32 s2, 20"); a("s_cbranch_scc1 L_acntok")
    a("v_and_b32 v15, 15, v2"); a("v_and_b32 v16, 16, v2"); a("v_lshl_add_u32 v15, v16, 1, v15"); a("v_lshlrev_b32 v15, 2, v15")
    a(f"s_mov_b32 s63, {SPIN_MAX}")
    a.label("L_cnt")
    a(f"buffer_load_dword v16, v15, {DBG_}, 0 offen sc1")
    a("s_waitcnt vmcnt(0)")
    a("v_and_b32 v17, 7, v16")
    a("v_cmp_ne_u32 vcc, 0, v17")
    a("v_cmp_eq_u32 s[60:61], 0, v16")
    a("s_or_b64 vcc, vcc, s[60:61]")
    a("s_cmp_eq_u64 vcc, 0")
    a("s_cbranch_scc1 L_acntok")
    a("s_sub_u32 s63, s63, 1"); a("s_cmp_eq_u32 s63, 0")
    a("s_cbranch_scc1 L_acntok")
    a("s_sleep 16")
    a("s_branch L_cnt")
    a.label("L_acntok")
    stamp(4)

    a.label("L_tail")
    if 't' in abl:
        a("s_waitcnt vmcnt(0)"); a("s_branch L_done")
    exec_valid()
    for j in range(3): a(f"ds_write_b128 v14, v[{DACC+4*j}:{DACC+3+4*j}] offset:{L_OP+256*j}")
    a("s_mov_b64 exec, -1")
    def mlp_part(wait):
        a("v_and_b32 v16, 0xffff, v10"); a("v_lshl_or_b32 v16, v16, 16, v16")
        a("v_lshrrev_b32 v17, 16, v10"); a("v_lshl_or_b32 v17, v17, 16, v17")
        for r in range(4): a(f"v_mov_b32 v{PD+r}, 0")
        for i in range(2):
            for r in range(4): a(f"v_and_b32 v{28+4*i+r}, v{MSK+r}, v{16+i}")
        a(wait)
        for i in range(2):
            a(f"{MF} v[{PD}:{PD+3}], v[{28+4*i}:{31+4*i}], v[{W2+4*i}:{W2+3+4*i}], v[{PD}:{PD+3}]")
    a("s_cmp_eq_u32 s3, 0")
    a("s_cbranch_scc1 L_w0")
    a(f"s_cmp_eq_u32 s3, {AUX}")
    a("s_cbranch_scc1 L_w7")
    a("s_waitcnt lgkmcnt(0)")
    a("s_barrier")
    if lpos == 1:
        for l in late: a(l)
    if lpos < 2: mlp_part("s_waitcnt vmcnt(0)")
    a("s_branch L_b3b")
    a.label("L_w7")
    if lpos == 0: mlp_part("s_waitcnt vmcnt(0)")
    a("v_lshrrev_b32 v20, 3, v2"); a("v_lshlrev_b32 v20, 8, v20")
    a("v_add_u32 v21, v20, v3")
    a("v_and_b32 v22, 48, v3"); a("v_add_u32 v22, v20, v22")
    a("v_and_b32 v24, 48, v3"); a("v_add_u32 v24, 128, v24")
    a("v_cmp_gt_u32 vcc, 32, v2")
    a("v_cndmask_b32 v23, v24, v3, vcc")
    a("v_bfe_u32 v24, v2, 4, 1"); a("v_lshl_add_u32 v23, v24, 3, v23")
    a(f"s_mov_b32 s63, {SPIN_MAX}")
    a("s_waitcnt lgkmcnt(0)")
    a("s_barrier")
    tstamp(1)
    if lpos == 1:
        for l in late: a(l)
        mlp_part("s_waitcnt vmcnt(0)")
    a.label("L_chk1")
    a(f"buffer_load_dwordx4 v[128:131], v21, {WS_}, s55 offen sc1")
    a(f"buffer_load_dwordx4 v[132:135], v22, {WS_}, s55 offen offset:128 sc1")
    a(f"buffer_load_dwordx2 v[136:137], v20, {WS_}, s55 offen offset:192 sc1")
    a("s_waitcnt vmcnt(0)")
    a("v_max3_u32 v64, v128, v129, v130"); a("v_max3_u32 v64, v64, v131, v132"); a("v_max3_u32 v64, v64, v133, v134")
    a("v_max3_u32 v64, v64, v135, v136"); a("v_max_u32 v64, v64, v137")
    a("v_cmp_eq_u32 vcc, -1, v64")
    a("s_cmp_eq_u64 vcc, 0")
    a("s_cbranch_scc1 L_go1")
    a("s_sub_u32 s63, s63, 1"); a("s_cmp_lg_u32 s63, 0")
    a("s_cbranch_scc1 L_chk1")
    a.label("L_go1")
    tstamp(2)
    a("v_max_f32_dpp v64, v136, v136 row_ror:8 row_mask:0xf bank_mask:0xf")
    a("v_mov_b32 v65, v64"); a("v_permlane16_swap_b32 v64, v65"); a("v_max_f32 v64, v64, v65")
    a("v_mov_b32 v65, v64"); a("v_permlane32_swap_b32 v64, v65"); a("v_max_f32 v64, v64, v65")
    a("v_sub_f32 v64, v136, v64"); a("v_exp_f32 v64, v64")
    a("v_mul_f32 v66, v64, v137")
    for r in range(8): a(f"v_mul_f32 v{128+r}, v64, v{128+r}")
    a("v_add_f32_dpp v66, v66, v66 row_ror:8 row_mask:0xf bank_mask:0xf")
    for r in range(4): a(f"v_permlane32_swap_b32 v{128+r}, v{132+r}")
    a("v_mov_b32 v65, v66"); a("v_permlane16_swap_b32 v66, v65"); a("v_add_f32 v66, v66, v65")
    for r in range(4): a(f"v_add_f32 v{128+r}, v{128+r}, v{132+r}")
    a("v_mov_b32 v65, v66"); a("v_permlane32_swap_b32 v66, v65"); a("v_add_f32 v66, v66, v65")
    a("v_permlane16_swap_b32 v128, v130"); a("v_permlane16_swap_b32 v129, v131")
    a("v_rcp_f32 v66, v66")
    a("v_add_f32 v128, v128, v130"); a("v_add_f32 v129, v129, v131")
    a("v_add_f32_dpp v128, v128, v128 row_ror:8 row_mask:0xf bank_mask:0xf")
    a("v_add_f32_dpp v129, v129, v129 row_ror:8 row_mask:0xf bank_mask:0xf")
    a("v_mul_f32 v128, v128, v66"); a("v_mul_f32 v129, v129, v66")
    a("v_cvt_pk_bf16_f32 v128, v128, v128"); a("v_cvt_pk_bf16_f32 v129, v129, v129")
    a(f"ds_write_b64 v23, v[128:129] offset:{L_OB}")
    a("s_waitcnt lgkmcnt(0)")
    a.label("L_b3b")
    a("s_barrier")
    a("s_cmp_ge_u32 s65, 2048")
    a("s_cbranch_scc1 L_fin")
    if lpos == 2:
        for l in late: a(l)
        mlp_part("s_waitcnt vmcnt(0)")
    for k in range(3): a(f"ds_read_b64 v[{128+2*k}:{129+2*k}], v7 offset:{L_OB+8*k}")
    a("s_waitcnt lgkmcnt(0)")
    for i in range(6):
        for r in range(4): a(f"v_and_b32 v{64+4*i+r}, v{MSK+r}, v{128+i}")
        if i >= 1:
            a(f"{MF} v[{PD}:{PD+3}], v[{64+4*(i-1)}:{67+4*(i-1)}], v[{WO+4*(i-1)}:{WO+3+4*(i-1)}], v[{PD}:{PD+3}]")
    a(f"{MF} v[{PD}:{PD+3}], v[84:87], v[{WO+20}:{WO+23}], v[{PD}:{PD+3}]")
    for r in range(4): a(f"v_mov_b32 v{20+r}, v{PD+r}")
    for r in range(4): a(f"v_permlane32_swap_b32 v{PD+r}, v{20+r}")
    for r in range(4): a(f"v_add_f32_dpp v{24+r}, v{20+r}, v{PD+r} row_ror:8 row_mask:0xf bank_mask:0xf")
    for r in range(4): a(f"v_or_b32 v{24+r}, 1, v{24+r}" if tag else f"v_min_u32 v{24+r}, -2, v{24+r}")
    a("s_mov_b64 exec, 0x00ff00ff")
    a(f"buffer_store_dwordx4 v[24:27], v11, {WS_}, s58 offen sc1")
    a("s_mov_b64 exec, -1")
    tstamp(3)
    a("s_branch L_fin")
    a.label("L_w0")
    a("v_mov_b32 v65, 0")
    a("v_mul_u32_u24 v66, 43, v2"); a("v_lshrrev_b32 v66, 9, v66")
    a("v_mul_u32_u24 v67, 12, v66"); a("v_sub_u32 v67, v2, v67")
    a("v_lshlrev_b32 v66, 11, v66"); a("v_lshl_add_u32 v66, v67, 4, v66")
    a("v_subrev_u32 v67, 48, v2"); a("v_lshlrev_b32 v67, 11, v67"); a("v_add_u32 v67, 192, v67")
    a("v_cmp_gt_u32 vcc, 48, v2")
    a("v_cndmask_b32 v66, v67, v66, vcc")
    a("s_mov_b32 s62, 0"); a("s_mov_b32 s63, 0xffff0000")
    a("s_waitcnt lgkmcnt(0)")
    a("s_barrier")
    tstamp(1)
    for k in range(4): a(f"ds_read_b128 v[{20+4*k}:{23+4*k}], v65 offset:{L_ML+16*k}")
    for w in range(10): a(f"ds_read_b128 v[{148+4*w}:{151+4*w}], v6 offset:{L_OP+768*w}")
    a("s_waitcnt lgkmcnt(0)" if st == "tail" else "s_waitcnt lgkmcnt(9)")
    for w in range(10, 16): a(f"ds_read_b128 v[{148+4*w}:{151+4*w}], v6 offset:{L_OP+768*w}")
    a("v_max3_f32 v68, v20, v22, v24"); a("v_max3_f32 v68, v68, v26, v28")
    a("v_max3_f32 v68, v68, v30, v32"); a("v_max_f32 v68, v68, v34")
    for w in range(8): a(f"v_sub_f32 v{20+2*w}, v{20+2*w}, v68")
    for w in range(8): a(f"v_exp_f32 v{20+2*w}, v{20+2*w}")
    a("v_mul_f32 v69, v20, v21")
    for w in range(1, 8): a(f"v_fmac_f32 v69, v{20+2*w}, v{21+2*w}")
    a("s_waitcnt lgkmcnt(0)")
    for w in range(8):
        a(f"v_pk_add_f32 v[{148+8*w}:{149+8*w}], v[{148+8*w}:{149+8*w}], v[{152+8*w}:{153+8*w}]")
        a(f"v_pk_add_f32 v[{150+8*w}:{151+8*w}], v[{150+8*w}:{151+8*w}], v[{154+8*w}:{155+8*w}]")
    for r in range(4): a(f"v_mul_f32 v{72+r}, v20, v{148+r}")
    for w in range(1, 8):
        for r in range(4): a(f"v_fmac_f32 v{72+r}, v{20+2*w}, v{148+8*w+r}")
    a("v_cndmask_b32 v72, v72, v68, s[62:63]"); a("v_cndmask_b32 v73, v73, v69, s[62:63]")
    a("v_cndmask_b32 v74, v74, v68, s[62:63]"); a("v_cndmask_b32 v75, v75, v69, s[62:63]")
    for r in range(4): a(f"v_min_u32 v{72+r}, -2, v{72+r}")
    a("s_mov_b32 exec_lo, -1"); a("s_mov_b32 exec_hi, 0xfffff")
    a("s_cmp_eq_u32 s66, 2"); a("s_cbranch_scc1 L_h1L")
    a(f"buffer_store_dwordx4 v[72:75], v66, {WS_}, s56 offen sc1")
    a("s_mov_b64 exec, -1")
    a("s_branch L_b3b")
    a.label("L_h1L")
    a(f"buffer_store_dwordx4 v[72:75], v66, {WS_}, s56 offen")
    a("s_mov_b64 exec, -1")
    tstamp(2)
    a("s_branch L_b3b")
    a.label("L_fin")
    tstamp(5); tstamp(6); stamp(6)
    a("s_cmp_ge_u32 s2, 20")
    a("s_cbranch_scc1 L_done")
    a("v_lshrrev_b32 v15, 3, v0"); a("v_mul_u32_u24 v15, 2560, v15")
    a("v_add_u32 v15, v15, v3")
    a("s_lshl_b32 s62, s2, 7"); a("s_add_u32 s62, s62, %d" % MB2_OFF); a("s_add_u32 s61, s62, %d" % (64 * 2560))
    a("v_lshlrev_b32 v16, 2, v2"); a("s_lshl_b32 s60, s2, 6")
    a(f"buffer_load_dword v17, v16, {X_}, s60 offen")
    a(f"s_mov_b32 s63, {SPIN_MAX}")
    def p2(k):
        b = 72 + 8 * k
        a(f"buffer_load_dwordx4 v[{b}:{b+3}], v15, {WS_}, s62 offen sc1")
        a(f"buffer_load_dwordx4 v[{b+4}:{b+7}], v15, {WS_}, s61 offen sc1")
    for k in range(NP2):
        p2(k)
        if k < NP2 - 1: a(f"s_sleep {gap2}")
    a.label("L_poll2")
    for k in range(NP2):
        b = 72 + 8 * k
        a(f"s_waitcnt vmcnt({2*(NP2-1)})")
        if tag:
            a(f"v_and_b32 v18, v{b}, v{b+1}"); a(f"v_and_b32 v19, v{b+2}, v{b+3}"); a(f"v_and_b32 v20, v{b+4}, v{b+5}"); a(f"v_and_b32 v21, v{b+6}, v{b+7}")
            a("v_and_b32 v18, v18, v19"); a("v_and_b32 v20, v20, v21"); a("v_and_b32 v18, v18, v20"); a("v_and_b32 v18, 1, v18")
        else:
            a(f"v_max3_u32 v18, v{b}, v{b+1}, v{b+2}"); a(f"v_max3_u32 v18, v18, v{b+3}, v{b+4}"); a(f"v_max3_u32 v18, v18, v{b+5}, v{b+6}"); a(f"v_max_u32 v18, v18, v{b+7}")
        for r in range(4): a(f"v_add_f32 v{64+r}, v{b+r}, v{b+4+r}")
        a("v_cmp_eq_u32 vcc, 0, v18" if tag else "v_cmp_eq_u32 vcc, -1, v18")
        a("s_cmp_eq_u64 vcc, 0")
        a("s_cbranch_scc1 L_go2")
        p2(k)
    a("s_sub_u32 s63, s63, 1"); a("s_cmp_lg_u32 s63, 0")
    a("s_cbranch_scc1 L_poll2")
    a.label("L_go2")
    tstamp(6)
    a("v_permlane32_swap_b32 v64, v66"); a("v_permlane32_swap_b32 v65, v67")
    a("v_add_f32 v64, v64, v66"); a("v_add_f32 v65, v65, v67")
    a("v_permlane16_swap_b32 v64, v65"); a("v_add_f32 v64, v64, v65")
    a("v_add_f32_dpp v64, v64, v64 row_ror:8 row_mask:0xf bank_mask:0xf")
    a("v_lshrrev_b32 v18, 4, v2"); a("v_lshlrev_b32 v18, 2, v18")
    a("s_lshl_b32 s62, s3, 7")
    a("v_add3_u32 v18, v18, v3, s62")
    a(f"ds_write_b32 v18, v64 offset:{L_FIN}")
    a("s_waitcnt lgkmcnt(0)")
    a("s_barrier")
    a("s_cmp_lg_u32 s3, 0")
    a("s_cbranch_scc1 L_done")
    a("s_mov_b64 exec, 0xffff")
    a("v_lshlrev_b32 v18, 3, v2")
    for w in range(8): a(f"ds_read_b64 v[{160+2*w}:{161+2*w}], v18 offset:{L_FIN+128*w}")
    unpack(17, 64, 65)
    a("s_waitcnt lgkmcnt(0)")
    for w in range(8):
        a(f"v_add_f32 v64, v64, v{160+2*w}"); a(f"v_add_f32 v65, v65, v{161+2*w}")
    a("v_cvt_pk_bf16_f32 v64, v64, v65")
    a(f"buffer_store_dword v64, v16, {OUT_}, s60 offen")
    a("s_mov_b64 exec, -1")
    a.label("L_done")
    if st: a("s_waitcnt vmcnt(0)" if False else "s_nop 0")
    if st == "wave":
        a("s_waitcnt lgkmcnt(0)")
        a("v_mov_b32 v64, s88"); a("v_mov_b32 v65, s89"); a("v_mov_b32 v66, s96"); a("v_mov_b32 v67, s97")
        a("s_lshl_b32 s63, s2, 7"); a("s_lshl_b32 s62, s3, 4"); a("s_add_u32 s63, s63, s62"); a(f"s_add_u32 s63, s63, {STAMP_OFF}")
        a("v_mov_b32 v15, 0"); a("s_mov_b64 exec, 1")
        a(f"buffer_store_dwordx4 v[64:67], v15, {WS_}, s63 offen")
    elif st:
        a("s_memrealtime s[86:87]")
        a("s_cmp_eq_u32 s3, 0"); a("s_cselect_b32 s62, 0, 1")
        a(f"s_cmp_eq_u32 s3, {AUX}"); a("s_cselect_b32 s63, 0, 1")
        a("s_and_b32 s63, s63, s62"); a("s_cmp_eq_u32 s63, 1"); a("s_cbranch_scc1 L_end")
        a("s_waitcnt lgkmcnt(0)")
        for i in range(7):
            a(f"v_mov_b32 v{64+2*i}, s{88+2*i}"); a(f"v_mov_b32 v{65+2*i}, s{89+2*i}")
        a("v_mov_b32 v78, s86"); a("v_mov_b32 v79, s87")
        a("s_lshl_b32 s63, s2, 7"); a("s_lshl_b32 s62, s62, 6"); a("s_add_u32 s63, s63, s62"); a(f"s_add_u32 s63, s63, {STAMP_OFF}")
        a("v_mov_b32 v15, 0"); a("s_mov_b64 exec, 1")
        for i in range(4): a(f"buffer_store_dwordx4 v[{64+4*i}:{67+4*i}], v15, {WS_}, s63 offen offset:{16*i}")
    a.label("L_end")
    a("s_endpgm")
    R('.section .rodata,"a"'); R(".p2align 6"); R(f".amdhsa_kernel {KN}")
    R("  .amdhsa_next_free_vgpr 256"); R("  .amdhsa_next_free_sgpr 102"); R("  .amdhsa_accum_offset 256")
    R("  .amdhsa_group_segment_fixed_size 0"); R("  .amdhsa_kernarg_size 96"); R("  .amdhsa_user_sgpr_count 2")
    R("  .amdhsa_user_sgpr_kernarg_segment_ptr 1"); R("  .amdhsa_system_sgpr_workgroup_id_x 1"); R(".end_amdhsa_kernel")
    txt = a.text()
    if spol != 'nt': txt = txt.replace(" nt\n", " " + spol + "\n")
    open(fname, "w").write(txt)

if __name__ == "__main__":
    E = [4, 8, 11, 14, 17, 20, 24, 27]
    base = dict(entries=E, budget=1, wfirst=False, psleep=24, pre=6, tag=1, cpol="sc1 nt ")
    gen("k17.s", **base)
    gen("k17_d14.s", dummy=14, **base)
    gen("k17_d27.s", dummy=27, **base)
```

```python
import sys
from asmlib import Asm
KN = "parallel_sum__sliding_block_cached__glu_gated_swiglu__decode_kernel"

MBX_OFF, MB2_OFF, QX_OFF, QMB_OFF = 0x80000, 0x100000, 0x200000, 0x60000
STAMP_OFF = 64 << 20
L_P1 = 0
L_QB = 2816
L_HB = L_QB + 384
L_FLAG = 3328
L_OB = 3392
L_ML = 3584
L_OP = 3712
L_FIN = 16256
LDS_SIZE = 17408
OOB = 0x40000000
LOG2E = 0x3fb8aa3b
SCALE = 0x3d93cd3a
SPIN_MAX = 1 << 20
AUX = 7
CLR = 6

K_, V_, WS_, WQ_, WO_, W1_, W3_, W2_, X_, OUT_, DBG_ = [f"s[{i}:{i+3}]" for i in range(8, 52, 4)]
DPP3 = ("quad_perm:[1,0,3,2]", "quad_perm:[2,3,0,1]", "row_half_mirror")
KB, VB = 40, 148
DACC, MSK, AOP, WO, W2, PD = 40, 52, 56, 92, 116, 124
MF = "v_mfma_f32_16x16x32_bf16"

class VM:
    def __init__(self, a):
        self.a = a; self.n = 0; self.done = 0
    def issue(self, s):
        self.a(s); self.n += 1; return self.n - 1
    def wait_id(self, i):
        if i < self.done: return
        self.a(f"s_waitcnt vmcnt({self.n - 1 - i})"); self.done = i + 1
    def throttle(self, T):
        if self.n - self.done > T - 1:
            self.a(f"s_waitcnt vmcnt({T-1})"); self.done = self.n - (T - 1)
    def set(self, n, d):
        self.n = n; self.done = d

def gen(fname, T=4, TL=None, NV=2, budget=2, prio=1, st=None, wfirst=True, abl='', tlb=0, psleep=2, pre=0, cpos=0, cpol='sc1', cnum=5, h1pol='sc1', pupol='sc1', qppol='sc1', xcpos=5, forcex=0, NP2=1, gap2=4, NP1=1, gap1=2, lpos=0, rot=3, fine=0, entries=None, spol='nt', tag=0, xnt=0, pubnt=0, b0pos=10, bulkb0=0, direct=0):
    TL = T if TL is None else TL
    MB2_OFF = QX_OFF if tag else 0x100000
    a = Asm()
    R = a.raw
    R("; fused decode: layernorm + q-proj + sliding-window attention + out-proj + swiglu MLP")
    R(f"; @launch grid=(256,1,1) block=(512,1,1) lds={LDS_SIZE}")
    R('.amdgcn_target "amdgcn-amd-amdhsa--gfx950"')
    R(".text"); R(f".globl {KN}"); R(".p2align 8"); R(f".type {KN},@function"); R(f"{KN}:")
    def stamp(i, kinds=("main", "wave")):
        if st in kinds: a(f"s_memrealtime s[{88+2*i}:{89+2*i}]")
    def tstamp(i): stamp(i, ("tail",))
    def unpack(src, dlo, dhi):
        a(f"v_lshlrev_b32 v{dlo}, 16, v{src}"); a(f"v_and_b32 v{dhi}, 0xffff0000, v{src}")
    def lohi(src, d):
        a(f"v_and_b32 v{d}, 0xffff, v{src}"); a(f"v_lshlrev_b32 v{d+1}, 16, v{src}")
        a(f"v_lshrrev_b32 v{d+2}, 16, v{src}"); a(f"v_and_b32 v{d+3}, 0xffff0000, v{src}")
    def exec_hi16():
        a("s_mov_b32 exec_lo, 0"); a("s_mov_b32 exec_hi, 0xffff0000")
    def exec_valid():
        a("s_mov_b32 exec_lo, 0x00ff00ff"); a("s_mov_b32 exec_hi, 0xff00ff00")
    def srd(base, ptr, size):
        a(f"s_mov_b32 s{base}, s{ptr}"); a(f"s_mov_b32 s{base+1}, s{ptr+1}")
        a(f"s_mov_b32 s{base+2}, {size}"); a(f"s_mov_b32 s{base+3}, 0x00020000")
    def masks(d, t0, t1):
        a(f"v_and_b32 v{t0}, 1, v2"); a(f"v_lshlrev_b32 v{t0}, 4, v{t0}")
        a(f"v_mov_b32 v{t1}, 0xffff"); a(f"v_lshlrev_b32 v{t1}, v{t0}, v{t1}")
        a(f"v_bfe_u32 v{t0}, v2, 1, 2")
        for r in range(4):
            a(f"v_cmp_eq_u32 vcc, {r}, v{t0}")
            a(f"v_cndmask_b32 v{d+r}, 0, v{t1}, vcc")
    vm = VM(a)
    a("s_cmp_ge_u32 s2, 256")
    a("s_cbranch_scc1 L_end")
    stamp(0, ("main", "wave", "tail"))
    a("s_load_dwordx16 s[52:67], s[0:1], 0")
    a("s_load_dwordx8 s[68:75], s[0:1], 64")
    a("v_lshrrev_b32 v15, 6, v0")
    a("v_and_b32 v2, 63, v0")
    a("v_readfirstlane_b32 s3, v15")
    a("s_and_b32 s4, s2, 31")
    a("s_lshr_b32 s5, s2, 5")
    a("s_lshr_b32 s6, s5, 1")
    a("s_and_b32 s7, s5, 1")
    a("v_lshrrev_b32 v15, 3, v2")
    a("v_and_b32 v3, 7, v2"); a("v_lshlrev_b32 v3, 4, v3")
    a("v_mul_u32_u24 v1, 384, v15"); a("v_add_u32 v1, v1, v3")
    a("v_lshlrev_b32 v6, 4, v2")
    a("s_mul_i32 s76, s4, 12582912"); a("s_mul_i32 s77, s5, %d" % (512 * 384))
    a("s_add_u32 s76, s76, s77"); a("s_add_u32 s76, s76, %d" % (28672 * 384))
    a(f"s_cmp_eq_u32 s3, {AUX}")
    a("s_cbranch_scc1 L_aux")

    SO = 78
    def kload(n, base=KB):
        i, j = divmod(n, 3); r = base + 4 * n
        return vm.issue(f"buffer_load_dwordx4 v[{r}:{r+3}], v1, {K_}, s{SO+i} offen offset:{j*128} nt")
    def vload(n, base=VB):
        i, j = divmod(n, 3); r = base + 4 * n
        return vm.issue(f"buffer_load_dwordx4 v[{r}:{r+3}], v1, {V_}, s{SO+i} offen offset:{j*128} nt")

    def setup_common():
        srd(16, 74, 1610612736); srd(24, 60, 7864320); srd(36, 68, 1966080); srd(44, 70, 1280); srd(48, 72, 256)
        srd(40, 52, 1280)
        a("s_mul_i32 s52, s4, 192"); a("s_mul_i32 s63, s6, 48"); a("s_add_u32 s52, s52, s63"); a("s_mul_i32 s52, s52, 1280")
        a("s_mul_i32 s63, s7, 640"); a("s_add_u32 s52, s52, s63")
        a("s_lshl_b32 s53, s4, 6"); a("s_lshl_b32 s62, s6, 4"); a("s_add_u32 s53, s53, s62"); a("s_mul_i32 s53, s53, 1280")
        a("s_add_u32 s53, s53, s63")
        a("s_cmp_lt_u32 s4, 24"); a("s_cselect_b32 s53, s53, %d" % OOB)
        a("s_sub_u32 s62, s3, 1"); a("s_cmp_lt_u32 s62, 4"); a("s_cselect_b32 s62, s62, 8"); a("s_cmp_eq_u32 s3, 7"); a("s_cselect_b32 s62, 4, s62")
        a("s_lshl_b32 s63, s62, 7"); a("s_cmp_lt_u32 s62, 5"); a("s_cselect_b32 s63, s63, %d" % OOB)
        a("s_add_u32 s52, s52, s63"); a("s_add_u32 s53, s53, s63"); a("s_add_u32 s64, s52, 5120")
        a("s_lshl_b32 s65, s62, 8")
        a("s_lshl_b32 s54, s4, 13"); a("s_add_u32 s54, s54, %d" % MBX_OFF)
        a("s_lshl_b32 s62, s6, 11"); a("s_add_u32 s55, s54, s62")
        a("s_lshl_b32 s62, s5, 8"); a("s_add_u32 s56, s54, s62")
        a("s_mul_i32 s57, s4, 10240"); a("s_add_u32 s57, s57, %d" % QX_OFF)
        a("s_lshl_b32 s58, s4, 2"); a("s_add_u32 s58, s58, s6"); a("s_mul_i32 s58, s58, 2560")
        a("s_mul_i32 s62, s7, 1280"); a("s_add_u32 s58, s58, s62"); a("s_add_u32 s58, s58, %d" % MB2_OFF); a("s_add_u32 s58, s58, s65")
        a("s_mul_i32 s59, s4, 10240"); a("s_mul_i32 s62, s5, 1280"); a("s_add_u32 s59, s59, s62"); a("s_add_u32 s59, s59, %d" % QX_OFF)
    def setup_proj():
        a("v_lshrrev_b32 v15, 3, v2")
        a("v_mul_u32_u24 v4, 7680, v15"); a("v_add_u32 v4, v4, v3")
        a("v_mul_u32_u24 v5, 2560, v15"); a("v_add_u32 v5, v5, v3")
        a("v_lshlrev_b32 v9, 2, v15"); a("s_lshl_b32 s87, s6, 5"); a("v_add_u32 v9, s87, v9")
        a("v_lshlrev_b32 v8, 4, v3")
        a("v_mul_u32_u24 v7, 24, v15")
        if direct: a("v_add_u32 v7, v7, v8")
        a("v_and_b32 v16, 16, v2")
        a("v_lshl_add_u32 v11, v3, 1, v16")
        a("v_lshrrev_b32 v15, 5, v2"); a("v_mul_u32_u24 v15, 768, v15")
        a("s_mul_i32 s87, s3, 1536")
        a("v_add3_u32 v14, v11, v15, s87")

    late = [f"buffer_load_dwordx4 v[{W2+4*i}:{W2+3+4*i}], v5, {W2_}, s53 offen offset:{1280*i} nt" for i in range(2)]
    late += [f"buffer_load_dwordx4 v[{WO+4*i}:{WO+3+4*i}], v4, {WO_}, {'s52' if i < 4 else 's64'} offen offset:{1280*(i%4)} nt" for i in range(6)]

    def read_q():
        for j in range(3):
            a(f"ds_read_b128 v[{20+4*j}:{23+4*j}], v3 offset:{L_QB+128*j}")
        a(f"ds_read_b32 v10, v9 offset:{L_HB}")
    def t_score(groups, sc, kb, first):
        def f():
            if first: a("s_waitcnt lgkmcnt(0)")
            for i in groups: a(f"v_mov_b32 v{sc[i]}, 0")
            for j in range(3):
                for r in range(4):
                    for i in groups:
                        a(f"v_dot2c_f32_bf16 v{sc[i]}, v{kb+12*i+4*j+r}, v{20+4*j+r}")
            for m in DPP3:
                for i in groups:
                    a(f"v_add_f32_dpp v{sc[i]}, v{sc[i]}, v{sc[i]} {m} row_mask:0xf bank_mask:0xf")
            s0 = sc[groups[0]]; s1 = sc[groups[-1]]
            for rnd in range(2):
                a(f"v_cvt_pk_bf16_f32 v15, v{s0}, v{s1}")
                a(f"v_lshlrev_b32 v{s0}, 16, v15")
                if s1 != s0: a(f"v_and_b32 v{s1}, 0xffff0000, v15")
                if rnd == 0:
                    for i in groups: a(f"v_mul_f32 v{sc[i]}, {SCALE:#x}, v{sc[i]}")
        return f
    def t_softmax(G, sc):
        def f1():
            a(f"v_mov_b32 v15, v{sc[0]}")
            rest = list(range(1, G))
            for k in range(0, len(rest), 2): a(f"v_max3_f32 v15, v15, v{sc[rest[k]]}, v{sc[rest[k+1]]}")
            a("v_max_f32_dpp v15, v15, v15 row_ror:8 row_mask:0xf bank_mask:0xf")
            for r in range(DACC, DACC + 12): a(f"v_mov_b32 v{r}, 0")
            a("v_mov_b32 v16, v15"); a("v_permlane16_swap_b32 v15, v16"); a("v_max_f32 v15, v15, v16")
            a("v_mov_b32 v16, v15"); a("v_permlane32_swap_b32 v15, v16"); a("v_max_f32 v15, v15, v16")
            a(f"v_mul_f32 v12, {LOG2E:#x}, v15")
            masks(MSK, 17, 18)
        def f2():
            a(f"s_mov_b32 s62, {LOG2E:#x}")
            for i in range(G): a(f"v_fma_f32 v{sc[i]}, v{sc[i]}, s62, -v12")
            for i in range(G): a(f"v_exp_f32 v{sc[i]}, v{sc[i]}")
            for i in range(G): a(f"v_cvt_pk_bf16_f32 v{sc[i]}, v{sc[i]}, v{sc[i]}")
        def f3():
            for i in range(G):
                for r in range(4): a(f"v_and_b32 v{AOP+4*i+r}, v{MSK+r}, v{sc[i]}")
        def f4():
            a(f"v_and_b32 v13, 0xffff0000, v{sc[0]}")
            for i in range(1, G):
                a(f"v_and_b32 v15, 0xffff0000, v{sc[i]}"); a("v_add_f32 v13, v13, v15")
            a("v_add_f32_dpp v13, v13, v13 row_ror:8 row_mask:0xf bank_mask:0xf")
            a("v_mov_b32 v16, v13"); a("v_permlane16_swap_b32 v13, v16"); a("v_add_f32 v13, v13, v16")
            a("v_mov_b32 v16, v13"); a("v_permlane32_swap_b32 v13, v16"); a("v_add_f32 v13, v13, v16")
            a("s_lshl_b32 s62, s3, 3"); a("v_mov_b32 v16, s62")
            a(f"ds_write_b64 v16, v[12:13] offset:{L_ML}")
        return [f1, f2, f3, f4]
    def t_pv(n, vb):
        def f():
            i, j = divmod(n, 3)
            d = DACC + 4 * j
            a(f"{MF} v[{d}:{d+3}], v[{AOP+4*i}:{AOP+3+4*i}], v[{vb+4*n}:{vb+3+4*n}], v[{d}:{d+3}]")
        return f

    if rot == 2:
        a("s_lshr_b32 s77, s2, 3"); a("s_add_u32 s77, s77, s3"); a("s_add_u32 s77, s77, s2")
    elif rot == 3:
        a("s_lshr_b32 s77, s2, 3"); a("s_add_u32 s77, s77, s2")
    else:
        a("s_mov_b32 s77, 0")
    a("s_mul_i32 s87, s77, 57"); a("s_lshr_b32 s87, s87, 9"); a("s_mul_i32 s87, s87, 9"); a("s_sub_u32 s77, s77, s87")
    a("s_mul_i32 s87, s3, 3072"); a("s_add_u32 s76, s76, s87")
    for i in range(9):
        a(f"s_add_u32 s{SO+i}, s77, {i}"); a(f"s_sub_u32 s87, s{SO+i}, 9"); a(f"s_cmp_ge_u32 s{SO+i}, 9")
        a(f"s_cselect_b32 s{SO+i}, s87, s{SO+i}"); a(f"s_mul_i32 s{SO+i}, s{SO+i}, {7*3072}"); a(f"s_add_u32 s{SO+i}, s{SO+i}, s76")
    if prio:
        a("s_cmp_lt_u32 s3, 4"); a("s_cbranch_scc1 L_noprio"); a(f"s_setprio {prio}"); a.label("L_noprio")
    setup_proj()
    a("s_waitcnt lgkmcnt(0)")
    srd(8, 54, 402653184)
    kid = {}
    if not wfirst:
        for n in range(T): kid[n] = kload(n)
    srd(12, 56, 402653184)
    setup_common()
    if tlb:
        a("s_cmp_lg_u32 s3, 5"); a("s_cbranch_scc1 L_notlb")
        a("s_mov_b64 exec, 1"); a("v_mov_b32 v20, 0")
        a("s_add_u32 s62, s76, %d" % (196608 - 5 * 3072 - 64))
        a(f"buffer_load_dword v21, v20, {V_}, s76 offen nt")
        a(f"buffer_load_dword v22, v20, {V_}, s62 offen nt")
        a(f"buffer_load_dword v23, v20, {K_}, s62 offen nt")
        a(f"buffer_load_dword v24, v20, {WO_}, s52 offen nt")
        a(f"buffer_load_dword v25, v20, {W2_}, s53 offen nt")
        a(f"buffer_load_dword v26, v20, {WS_}, s57 offen nt")
        a(f"buffer_load_dword v27, v20, {OUT_}, 0 offen nt")
        a("s_mov_b64 exec, -1")
        a.label("L_notlb")
    if bulkb0 == 0: a("s_barrier")
    if wfirst:
        for n in range(T): kid[n] = kload(n)
    for n in range(T, 27):
        vm.throttle(T); kid[n] = kload(n)
        if bulkb0 and n == T + bulkb0 - 1: a("s_barrier")
    sc = [32 + i for i in range(8)] + [19]
    groups = ((0, 1), (2, 3), (4, 5), (6, 7), (8,)) if not fine else tuple((i,) for i in range(9))
    def continuation(nv, vid, bud):
        read_q()
        tasks = [(lambda g=g: kid[3 * g[-1] + 2], t_score(g, sc, KB, g[0] == 0), 4) for g in groups]
        tasks += [(lambda: -1, f, 4) for f in t_softmax(9, sc)]
        tasks += [(lambda n=n: vid.get(n, 10**9), t_pv(n, VB), 0.5) for n in range(27)]
        ndone = 0
        for n in range(nv, 35):
            if n >= 27:
                while ndone < len(groups) + 3:
                    t = tasks.pop(0)
                    if t[0]() >= 0: vm.wait_id(t[0]())
                    t[1](); ndone += 1
            if n < 27 + TL - 1: vm.throttle(TL)
            if n < 27: vid[n] = vload(n)
            elif lpos == 0: vm.issue(late[n - 27])
            b = bud * 4
            while b > 0 and tasks and tasks[0][0]() < vm.done:
                t = tasks.pop(0); t[1](); b -= t[2]; ndone += 1
        while tasks:
            req, f, c = tasks.pop(0)
            if req() >= 0: vm.wait_id(req())
            f()
        stamp(4)
        a("s_branch L_tail")
    ent = entries if entries else [NV]
    vid = {}
    saved = []
    a(f"v_mov_b32 v15, {L_FLAG}")
    for n in range(ent[-1]):
        if n + 1 in ent[:-1]: a("ds_read_b32 v16, v15")
        vm.throttle(T); vid[n] = vload(n)
        if n + 1 in ent[:-1]:
            a("s_waitcnt lgkmcnt(0)")
            a("v_readfirstlane_b32 s66, v16")
            a("s_cmp_lg_u32 s66, 0")
            a(f"s_cbranch_scc1 L_cont{n+1}")
            saved.append((n + 1, dict(vid), (vm.n, vm.done)))
    stamp(2)
    a(f"s_mov_b32 s63, {SPIN_MAX}")
    a.label("L_flag")
    a("ds_read_b32 v16, v15")
    a("s_waitcnt lgkmcnt(0)")
    a("v_readfirstlane_b32 s66, v16")
    a("s_cmp_lg_u32 s66, 0")
    a("s_cbranch_scc1 L_flagok")
    a("s_sleep 2")
    a("s_sub_u32 s63, s63, 1")
    a("s_cmp_lg_u32 s63, 0")
    a("s_cbranch_scc1 L_flag")
    a.label("L_flagok")
    stamp(3)
    def bud_for(nv): return budget if nv <= 16 else 2 * budget
    continuation(ent[-1], vid, bud_for(ent[-1]))
    for (nv, v, stt) in saved:
        a.label(f"L_cont{nv}")
        vm.set(*stt)
        stamp(2); stamp(3)
        continuation(nv, v, bud_for(nv))

    a.label("L_aux")
    vm.set(0, 0)
    a("s_setprio 2")
    a(f"v_mov_b32 v16, {L_FLAG}"); a("v_mov_b32 v17, 0")
    a("ds_write_b32 v16, v17")
    a("v_mul_u32_u24 v4, 122880, v15"); a("v_add_u32 v4, v4, v3")
    a("v_mul_u32_u24 v5, 30720, v15"); a("v_add_u32 v5, v5, v3")
    a("v_mul_u32_u24 v7, 20, v15")
    a(f"s_add_u32 s{SO}, s76, {63*3072}")
    a("s_mul_i32 s79, s5, 160")
    a("s_mul_i32 s80, s5, %d" % (80 * 12288)); a("s_mul_i32 s77, s4, 384"); a("s_add_u32 s80, s80, s77")
    a("s_mul_i32 s81, s5, %d" % (80 * 3072)); a("s_lshl_b32 s77, s4, 7"); a("s_add_u32 s81, s81, s77")
    a("s_cmp_lt_u32 s4, 24"); a("s_cselect_b32 s81, s81, %d" % OOB)
    a("s_lshl_b32 s82, s2, 9"); a("s_add_u32 s82, s82, %d" % QMB_OFF)
    a("v_lshlrev_b32 v14, 3, v2")
    a("s_lshl_b32 s83, s4, 13"); a("s_lshl_b32 s77, s5, 8"); a("s_add_u32 s83, s83, s77"); a("s_add_u32 s83, s83, %d" % MBX_OFF)
    a("v_lshrrev_b32 v12, 4, v2"); a("v_lshlrev_b32 v12, 11, v12"); a("v_and_b32 v13, 15, v2"); a("v_lshl_add_u32 v12, v13, 4, v12")
    a("s_lshl_b32 s84, s4, 2"); a("s_add_u32 s84, s84, s6"); a("s_mul_i32 s84, s84, 2560")
    a("s_mul_i32 s77, s7, 1280"); a("s_add_u32 s84, s84, s77"); a("s_add_u32 s84, s84, %d" % MB2_OFF)
    a("s_getreg_b32 s85, hwreg(HW_REG_XCC_ID)"); a("s_and_b32 s85, s85, 15")
    a("s_mul_i32 s77, s85, s85"); a("s_lshl_b32 s77, s77, 12"); a("s_lshl_b32 s85, s85, 4"); a("s_add_u32 s85, s85, s77"); a("s_add_u32 s85, s85, 1")
    masks(8, 16, 17)
    for r in range(52, 56): a(f"v_mov_b32 v{r}, -1")
    a("s_waitcnt lgkmcnt(0)")
    srd(16, 74, 1610612736); srd(48, 72, 256)
    def clears():
        if 'a' in abl: return
        vm.issue(f"buffer_store_dwordx2 v[52:53], v14, {WS_}, s82 offen {cpol}")
        if cnum < 2: return
        vm.issue(f"buffer_store_dwordx4 v[52:55], v12, {WS_}, s83 offen {cpol}")
        if tag: return
        vm.issue(f"buffer_store_dwordx4 v[52:55], v6, {WS_}, s84 offen {cpol}")
        a("s_mov_b64 exec, 0xffff")
        vm.issue(f"buffer_store_dwordx4 v[52:55], v6, {WS_}, s84 offen offset:1024 {cpol}")
        a("s_mov_b64 exec, -1")
    if cpos == 0: clears()
    srd(40, 52, 1280); srd(20, 58, 7864320)
    ix0 = vm.issue(f"buffer_load_dwordx4 v[32:35], v6, {X_}, 0 offen")
    ix1 = vm.issue(f"buffer_load_dwordx4 v[36:39], v6, {X_}, 0 offen offset:1024")
    vm.issue(f"buffer_load_dwordx4 v[16:19], v7, {X_}, s79 offen")
    ixo = vm.issue(f"buffer_load_dword v15, v7, {X_}, s79 offen offset:16")
    srd(28, 64, 1966080); srd(32, 66, 1966080)
    iw = {}
    for i in range(10):
        b = 56 + 20 * i
        for j in range(3):
            vm.issue(f"buffer_load_dwordx4 v[{b+4*j}:{b+3+4*j}], v4, {WQ_}, s80 offen offset:{128*j} nt")
        vm.issue(f"buffer_load_dwordx4 v[{b+12}:{b+15}], v5, {W1_}, s81 offen nt")
        iw[i] = vm.issue(f"buffer_load_dwordx4 v[{b+16}:{b+19}], v5, {W3_}, s81 offen nt")
        if i < 9:
            a("s_add_u32 s80, s80, 12288"); a("s_add_u32 s81, s81, 3072")
        if i + 1 == b0pos: a("s_barrier")
    if cpos == 1: clears()
    srd(8, 54, 402653184); srd(12, 56, 402653184)
    setup_common()
    a("s_and_b32 s62, s4, 16"); a("s_add_u32 s62, s62, s4"); a("s_lshl_b32 s62, s62, 2"); a("v_mov_b32 v12, s62")
    a("v_mov_b32 v13, s85")
    vm.wait_id(ixo)
    for k in range(4): unpack(16 + k, 20 + 2 * k, 21 + 2 * k)
    unpack(15, 28, 29)
    for r in range(8): unpack(32 + r, 40 + 2 * r, 41 + 2 * r)
    def wave_sum(v, sdst):
        for m in DPP3 + ("row_mirror",):
            a(f"v_add_f32_dpp v{v}, v{v}, v{v} {m} row_mask:0xf bank_mask:0xf")
        for k in range(4): a(f"v_readlane_b32 s{sdst+k}, v{v}, {16*k}")
        a(f"v_mov_b32 v{v}, s{sdst}")
        for k in range(1, 4): a(f"v_add_f32 v{v}, s{sdst+k}, v{v}")
    a("v_add_f32 v15, v40, v41")
    for r in range(42, 56): a(f"v_add_f32 v15, v15, v{r}")
    wave_sum(15, 60)
    a("v_mul_f32 v15, 0x3acccccd, v15")
    a("v_mov_b32 v16, 0")
    for r in range(40, 48):
        a(f"v_sub_f32 v17, v{r}, v15"); a("v_fmac_f32 v16, v17, v17")
    a("s_mov_b64 exec, 0xffff")
    for r in range(48, 56):
        a(f"v_sub_f32 v17, v{r}, v15"); a("v_fmac_f32 v16, v17, v17")
    a("s_mov_b64 exec, -1")
    wave_sum(16, 60)
    a("v_mul_f32 v16, 0x3acccccd, v16")
    a("v_cvt_pk_bf16_f32 v17, v15, v16")
    a("v_lshlrev_b32 v15, 16, v17")
    a("v_and_b32 v16, 0xffff0000, v17")
    a("v_add_f32 v16, 0x3727c5ac, v16")
    a("v_cvt_pk_bf16_f32 v16, v16, v16")
    a("v_lshlrev_b32 v16, 16, v16")
    a("v_sqrt_f32 v16, v16")
    a("v_cvt_pk_bf16_f32 v16, v16, v16")
    a("v_lshlrev_b32 v16, 16, v16")
    a("v_rcp_f32 v17, v16")
    for i in range(10): a(f"v_sub_f32 v{20+i}, v{20+i}, v15")
    for i in range(0, 10, 2):
        a(f"v_cvt_pk_bf16_f32 v18, v{20+i}, v{21+i}"); unpack(18, 20 + i, 21 + i)
    for i in range(10):
        a(f"v_mul_f32 v18, v{20+i}, v17")
        a(f"v_fma_f32 v19, -v18, v16, v{20+i}")
        a(f"v_fma_f32 v{20+i}, v19, v17, v18")
    for i in range(10): a(f"v_cvt_pk_bf16_f32 v{20+i}, v{20+i}, v{20+i}")
    for r in range(32, 52): a(f"v_mov_b32 v{r}, 0")
    a("v_lshrrev_b32 v15, 5, v2"); a("v_mul_u32_u24 v15, 1280, v15")
    a("v_and_b32 v16, 16, v2"); a("v_lshl_add_u32 v16, v3, 1, v16"); a("v_add_u32 v15, v15, v16")
    a("v_lshlrev_b32 v14, 3, v2")
    for i in range(10):
        for r in range(4): a(f"v_and_b32 v{52+r}, v{8+r}, v{20+i}")
        vm.wait_id(iw[i])
        b = 56 + 20 * i
        for c in range(5):
            a(f"{MF} v[{32+4*c}:{35+4*c}], v[52:55], v[{b+4*c}:{b+3+4*c}], v[{32+4*c}:{35+4*c}]")
    stamp(1)
    exec_valid()
    for c in range(5): a(f"ds_write_b128 v15, v[{32+4*c}:{35+4*c}] offset:{L_P1+256*c}")
    a("s_mov_b64 exec, -1")
    a("s_waitcnt lgkmcnt(0)")
    a(f"ds_read_b128 v[64:67], v6 offset:{L_P1}")
    a(f"ds_read_b128 v[68:71], v6 offset:{L_P1+1280}")
    a(f"ds_read_b128 v[72:75], v6 offset:{L_P1+256}")
    a(f"ds_read_b128 v[76:79], v6 offset:{L_P1+1280+256}")
    a("s_waitcnt lgkmcnt(0)")
    for r in range(4):
        a(f"v_add_f32 v{64+r}, v{64+r}, v{68+r}"); a(f"v_add_f32 v{72+r}, v{72+r}, v{76+r}")
    for r in range(4):
        a(f"v_and_b32 v{64+r}, -2, v{64+r}"); a(f"v_and_b32 v{72+r}, -2, v{72+r}")
    if 'b' in abl: a("s_branch L_atake")
    a(f"buffer_store_dwordx4 v[64:67], v6, {WS_}, s59 offen sc1" + (" nt " if pubnt else ""))
    exec_hi16()
    a(f"buffer_store_dwordx4 v[72:75], v6, {WS_}, s59 offen offset:256 sc1" + (" nt " if pubnt else ""))
    a("s_mov_b64 exec, -1")
    a("s_mov_b64 exec, 1")
    a("s_waitcnt vmcnt(0)")
    if 'n' in abl: pass
    elif 'r' in abl: a(f"buffer_atomic_add v13, v12, {DBG_}, 0 offen")
    elif 'w' in abl: a(f"buffer_atomic_add v13, v12, {WS_}, s82 offen sc0")
    else: a(f"buffer_atomic_add v13, v12, {DBG_}, 0 offen sc0")
    a("s_waitcnt vmcnt(0)")
    a("v_readfirstlane_b32 s62, v13")
    a("s_mov_b64 exec, -1")
    stamp(5)
    if 'c' in abl: a("s_branch L_atake")
    if st == "main":
        a("s_and_b32 s92, s62, 7"); a("s_mov_b32 s93, 0")
    a("s_mul_i32 s63, s85, 7"); a("s_cmp_eq_u32 s62, s63"); a("s_cselect_b32 s66, 2, 1")
    if forcex: a("s_mov_b32 s66, 1")
    a("s_add_u32 s67, s6, 1"); a("s_and_b32 s67, s67, 3"); a("s_lshl_b32 s67, s67, 2"); a("s_add_u32 s67, s67, 48")
    a("s_and_b32 s62, s62, 7"); a("s_cmp_eq_u32 s62, 7")
    a("s_cbranch_scc0 L_await")
    a("s_add_u32 s60, s57, 3840"); a("s_add_u32 s61, s57, 7680")
    if 'g' not in abl:
        for s in range(8):
            so = ("s57", "s60", "s61")[s // 3]
            a(f"buffer_load_dwordx4 v[{96+4*s}:{99+4*s}], v6, {WS_}, {so} offen offset:{(s%3)*1280} sc1")
        exec_hi16()
        for s in range(8):
            so = ("s57", "s60", "s61")[s // 3]
            a(f"buffer_load_dwordx4 v[{160+4*s}:{163+4*s}], v6, {WS_}, {so} offen offset:{(s%3)*1280+256} sc1")
        a("s_mov_b64 exec, -1")
        a("s_waitcnt vmcnt(0)")
    a.label("L_agot")
    for s in range(1, 8):
        for r in range(4):
            a(f"v_add_f32 v{96+r}, v{96+r}, v{96+4*s+r}")
            a(f"v_add_f32 v{160+r}, v{160+r}, v{160+4*s+r}")
    a("v_cvt_pk_bf16_f32 v20, v96, v97"); a("v_cvt_pk_bf16_f32 v21, v98, v99")
    a("v_cvt_pk_bf16_f32 v22, v160, v161"); a("v_cvt_pk_bf16_f32 v23, v162, v163")
    exec_hi16()
    unpack(20, 64, 65); unpack(21, 66, 67); unpack(22, 160, 161); unpack(23, 162, 163)
    for r in range(4): a(f"v_mul_f32 v{68+r}, {LOG2E|0x80000000:#x}, v{64+r}")
    for r in range(4): a(f"v_exp_f32 v{68+r}, v{68+r}")
    for r in range(4): a(f"v_add_f32 v{68+r}, 1.0, v{68+r}")
    for r in range(4): a(f"v_rcp_f32 v{72+r}, v{68+r}")
    for r in range(4): a(f"v_mul_f32 v{76+r}, v{64+r}, v{72+r}")
    a("v_cvt_pk_bf16_f32 v20, v76, v77"); a("v_cvt_pk_bf16_f32 v21, v78, v79")
    unpack(20, 64, 65); unpack(21, 66, 67)
    for r in range(4): a(f"v_mul_f32 v{64+r}, v{64+r}, v{160+r}")
    a("v_cvt_pk_bf16_f32 v20, v64, v65"); a("v_cvt_pk_bf16_f32 v21, v66, v67")
    a("s_mov_b64 exec, -1")
    a("v_min_u32 v20, -2, v20"); a("v_min_u32 v21, -2, v21")
    a("s_lshl_b32 s62, s4, 9"); a("s_add_u32 s62, s62, %d" % QMB_OFF)
    for rq in range(4):
        a(f"v_mov_b32 v{24+2*rq}, v20"); a(f"v_mov_b32 v{25+2*rq}, v21")
        a(f"v_writelane_b32 v{24+2*rq}, s66, {48 + 4 * ((rq + 1) & 3)}")
    a("s_cmp_eq_u32 s66, 2"); a("s_cbranch_scc1 L_pushL")
    for pol in ("sc1", ""):
        for s in range(8):
            a(f"buffer_store_dwordx2 v[{24+2*(s>>1)}:{25+2*(s>>1)}], v14, {WS_}, s62 offen {pol}")
            if s < 7: a("s_add_u32 s62, s62, %d" % (32 * 512))
        a("s_branch L_atake")
        if pol: a.label("L_pushL")
    a.label("L_await")
    if 'q' in abl: a("s_branch L_atake")
    if pre: a(f"s_sleep {16*pre}")
    a(f"s_mov_b32 s63, {SPIN_MAX}")
    a.label("L_aspin")
    a(f"buffer_load_dwordx2 v[20:21], v14, {WS_}, s82 offen sc1")
    a("s_waitcnt vmcnt(0)")
    a("v_max_u32 v22, v20, v21")
    a("v_cmp_eq_u32 vcc, -1, v22")
    a("s_cmp_eq_u64 vcc, 0")
    a("s_cbranch_scc1 L_agotq")
    a("s_sub_u32 s63, s63, 1"); a("s_cmp_eq_u32 s63, 0")
    a("s_cbranch_scc1 L_agotq")
    a(f"s_sleep {psleep}")
    a("s_branch L_aspin")
    a.label("L_agotq")
    a("v_readlane_b32 s66, v20, s67")
    a("s_cmp_eq_u32 s66, 2"); a("s_cselect_b32 s66, 2, 1")
    a.label("L_atake")
    a(f"ds_write_b64 v14, v[20:21] offset:{L_QB}")
    a(f"v_mov_b32 v22, {L_FLAG}"); a("v_mov_b32 v23, s66")
    a("s_waitcnt lgkmcnt(0)")
    a("ds_write_b32 v22, v23")
    stamp(3)
    a("s_setprio 0")
    vm.set(0, 0)
    AK, AV = 160, 148
    kida = [kload(n, AK) for n in range(3)]
    vida = [vload(n, AV) for n in range(3)]
    setup_proj()
    if lpos == 0:
        for l in late: vm.issue(l)
    read_q()
    vm.wait_id(kida[2])
    t_score((0,), [32], AK, True)()
    for f in t_softmax(1, [32]): f()
    vm.wait_id(vida[2])
    for n in range(3): t_pv(n, AV)()
    if 'f' in abl: a("s_branch L_acntok")
    a("s_cmp_ge_u32 s2, 20"); a("s_cbranch_scc1 L_acntok")
    a("v_and_b32 v15, 15, v2"); a("v_and_b32 v16, 16, v2"); a("v_lshl_add_u32 v15, v16, 1, v15"); a("v_lshlrev_b32 v15, 2, v15")
    a(f"s_mov_b32 s63, {SPIN_MAX}")
    a.label("L_cnt")
    a(f"buffer_load_dword v16, v15, {DBG_}, 0 offen sc1")
    a("s_waitcnt vmcnt(0)")
    a("v_and_b32 v17, 7, v16")
    a("v_cmp_ne_u32 vcc, 0, v17")
    a("v_cmp_eq_u32 s[60:61], 0, v16")
    a("s_or_b64 vcc, vcc, s[60:61]")
    a("s_cmp_eq_u64 vcc, 0")
    a("s_cbranch_scc1 L_acntok")
    a("s_sub_u32 s63, s63, 1"); a("s_cmp_eq_u32 s63, 0")
    a("s_cbranch_scc1 L_acntok")
    a("s_sleep 16")
    a("s_branch L_cnt")
    a.label("L_acntok")
    stamp(4)

    a.label("L_tail")
    if 't' in abl:
        a("s_waitcnt vmcnt(0)"); a("s_branch L_done")
    exec_valid()
    for j in range(3): a(f"ds_write_b128 v14, v[{DACC+4*j}:{DACC+3+4*j}] offset:{L_OP+256*j}")
    a("s_mov_b64 exec, -1")
    def mlp_part(wait):
        a("v_and_b32 v16, 0xffff, v10"); a("v_lshl_or_b32 v16, v16, 16, v16")
        a("v_lshrrev_b32 v17, 16, v10"); a("v_lshl_or_b32 v17, v17, 16, v17")
        for r in range(4): a(f"v_mov_b32 v{PD+r}, 0")
        for i in range(2):
            for r in range(4): a(f"v_and_b32 v{28+4*i+r}, v{MSK+r}, v{16+i}")
        a(wait)
        for i in range(2):
            a(f"{MF} v[{PD}:{PD+3}], v[{28+4*i}:{31+4*i}], v[{W2+4*i}:{W2+3+4*i}], v[{PD}:{PD+3}]")
    a("s_cmp_eq_u32 s3, 0")
    a("s_cbranch_scc1 L_w0")
    if direct:
        a("s_waitcnt lgkmcnt(0)")
        a("s_barrier")
        tstamp(1)
        a("s_cmp_ge_u32 s65, 2048")
        a("s_cbranch_scc1 L_fin")
        def polls1():
            a(f"buffer_load_dwordx4 v[128:131], v7, {WS_}, s55 offen sc1")
            a(f"buffer_load_dwordx2 v[132:133], v7, {WS_}, s55 offen offset:16 sc1")
            a(f"buffer_load_dwordx2 v[134:135], v8, {WS_}, s55 offen offset:192 sc1")
        polls1()
        a(f"s_mov_b32 s63, {SPIN_MAX}")
        mlp_part("s_waitcnt vmcnt(3)")
        a.label("L_chk1")
        a("s_waitcnt vmcnt(0)")
        a("v_max3_u32 v64, v128, v129, v130"); a("v_max3_u32 v64, v64, v131, v132"); a("v_max3_u32 v64, v64, v133, v134")
        a("v_max_u32 v64, v64, v135")
        a("v_cmp_eq_u32 vcc, -1, v64")
        a("s_cmp_eq_u64 vcc, 0")
        a("s_cbranch_scc1 L_go1")
        a("s_sub_u32 s63, s63, 1"); a("s_cmp_eq_u32 s63, 0")
        a("s_cbranch_scc1 L_go1")
        if direct > 1: a(f"s_sleep {direct-1}")
        polls1()
        a("s_branch L_chk1")
        a.label("L_go1")
        tstamp(2)
        a(f"v_max_f32_dpp v64, v134, v134 {DPP3[0]} row_mask:0xf bank_mask:0xf")
        for m in DPP3[1:]: a(f"v_max_f32_dpp v64, v64, v64 {m} row_mask:0xf bank_mask:0xf")
        a("v_sub_f32 v64, v134, v64"); a("v_exp_f32 v64, v64")
        a("v_mul_f32 v134, v64, v135")
        for r in range(6): a(f"v_mul_f32 v{128+r}, v64, v{128+r}")
        for m in DPP3:
            for r in range(7): a(f"v_add_f32_dpp v{128+r}, v{128+r}, v{128+r} {m} row_mask:0xf bank_mask:0xf")
        a("v_rcp_f32 v134, v134")
        for r in range(6): a(f"v_mul_f32 v{128+r}, v{128+r}, v134")
        for r in range(6): a(f"v_cvt_pk_bf16_f32 v{128+r}, v{128+r}, v{128+r}")
    else:
        a(f"s_cmp_eq_u32 s3, {AUX}")
        a("s_cbranch_scc1 L_w7")
        a("s_waitcnt lgkmcnt(0)")
        a("s_barrier")
        if lpos == 1:
            for l in late: a(l)
        if lpos < 2: mlp_part("s_waitcnt vmcnt(0)")
        a("s_branch L_b3b")
        a.label("L_w7")
        if lpos == 0: mlp_part("s_waitcnt vmcnt(0)")
        a("v_lshrrev_b32 v20, 3, v2"); a("v_lshlrev_b32 v20, 8, v20")
        a("v_add_u32 v21, v20, v3")
        a("v_and_b32 v22, 48, v3"); a("v_add_u32 v22, v20, v22")
        a("v_and_b32 v24, 48, v3"); a("v_add_u32 v24, 128, v24")
        a("v_cmp_gt_u32 vcc, 32, v2")
        a("v_cndmask_b32 v23, v24, v3, vcc")
        a("v_bfe_u32 v24, v2, 4, 1"); a("v_lshl_add_u32 v23, v24, 3, v23")
        a(f"s_mov_b32 s63, {SPIN_MAX}")
        a("s_waitcnt lgkmcnt(0)")
        a("s_barrier")
        tstamp(1)
        if lpos == 1:
            for l in late: a(l)
            mlp_part("s_waitcnt vmcnt(0)")
        a.label("L_chk1")
        a(f"buffer_load_dwordx4 v[128:131], v21, {WS_}, s55 offen sc1")
        a(f"buffer_load_dwordx4 v[132:135], v22, {WS_}, s55 offen offset:128 sc1")
        a(f"buffer_load_dwordx2 v[136:137], v20, {WS_}, s55 offen offset:192 sc1")
        a("s_waitcnt vmcnt(0)")
        a("v_max3_u32 v64, v128, v129, v130"); a("v_max3_u32 v64, v64, v131, v132"); a("v_max3_u32 v64, v64, v133, v134")
        a("v_max3_u32 v64, v64, v135, v136"); a("v_max_u32 v64, v64, v137")
        a("v_cmp_eq_u32 vcc, -1, v64")
        a("s_cmp_eq_u64 vcc, 0")
        a("s_cbranch_scc1 L_go1")
        a("s_sub_u32 s63, s63, 1"); a("s_cmp_lg_u32 s63, 0")
        a("s_cbranch_scc1 L_chk1")
        a.label("L_go1")
        tstamp(2)
        a("v_max_f32_dpp v64, v136, v136 row_ror:8 row_mask:0xf bank_mask:0xf")
        a("v_mov_b32 v65, v64"); a("v_permlane16_swap_b32 v64, v65"); a("v_max_f32 v64, v64, v65")
        a("v_mov_b32 v65, v64"); a("v_permlane32_swap_b32 v64, v65"); a("v_max_f32 v64, v64, v65")
        a("v_sub_f32 v64, v136, v64"); a("v_exp_f32 v64, v64")
        a("v_mul_f32 v66, v64, v137")
        for r in range(8): a(f"v_mul_f32 v{128+r}, v64, v{128+r}")
        a("v_add_f32_dpp v66, v66, v66 row_ror:8 row_mask:0xf bank_mask:0xf")
        for r in range(4): a(f"v_permlane32_swap_b32 v{128+r}, v{132+r}")
        a("v_mov_b32 v65, v66"); a("v_permlane16_swap_b32 v66, v65"); a("v_add_f32 v66, v66, v65")
        for r in range(4): a(f"v_add_f32 v{128+r}, v{128+r}, v{132+r}")
        a("v_mov_b32 v65, v66"); a("v_permlane32_swap_b32 v66, v65"); a("v_add_f32 v66, v66, v65")
        a("v_permlane16_swap_b32 v128, v130"); a("v_permlane16_swap_b32 v129, v131")
        a("v_rcp_f32 v66, v66")
        a("v_add_f32 v128, v128, v130"); a("v_add_f32 v129, v129, v131")
        a("v_add_f32_dpp v128, v128, v128 row_ror:8 row_mask:0xf bank_mask:0xf")
        a("v_add_f32_dpp v129, v129, v129 row_ror:8 row_mask:0xf bank_mask:0xf")
        a("v_mul_f32 v128, v128, v66"); a("v_mul_f32 v129, v129, v66")
        a("v_cvt_pk_bf16_f32 v128, v128, v128"); a("v_cvt_pk_bf16_f32 v129, v129, v129")
        a(f"ds_write_b64 v23, v[128:129] offset:{L_OB}")
        a("s_waitcnt lgkmcnt(0)")
        a.label("L_b3b")
        a("s_barrier")
        a("s_cmp_ge_u32 s65, 2048")
        a("s_cbranch_scc1 L_fin")
        if lpos == 2:
            for l in late: a(l)
            mlp_part("s_waitcnt vmcnt(0)")
        for k in range(3): a(f"ds_read_b64 v[{128+2*k}:{129+2*k}], v7 offset:{L_OB+8*k}")
        a("s_waitcnt lgkmcnt(0)")
    for i in range(6):
        for r in range(4): a(f"v_and_b32 v{64+4*i+r}, v{MSK+r}, v{128+i}")
        if i >= 1:
            a(f"{MF} v[{PD}:{PD+3}], v[{64+4*(i-1)}:{67+4*(i-1)}], v[{WO+4*(i-1)}:{WO+3+4*(i-1)}], v[{PD}:{PD+3}]")
    a(f"{MF} v[{PD}:{PD+3}], v[84:87], v[{WO+20}:{WO+23}], v[{PD}:{PD+3}]")
    for r in range(4): a(f"v_mov_b32 v{20+r}, v{PD+r}")
    for r in range(4): a(f"v_permlane32_swap_b32 v{PD+r}, v{20+r}")
    for r in range(4): a(f"v_add_f32_dpp v{24+r}, v{20+r}, v{PD+r} row_ror:8 row_mask:0xf bank_mask:0xf")
    for r in range(4): a(f"v_or_b32 v{24+r}, 1, v{24+r}" if tag else f"v_min_u32 v{24+r}, -2, v{24+r}")
    a("s_mov_b64 exec, 0x00ff00ff")
    a(f"buffer_store_dwordx4 v[24:27], v11, {WS_}, s58 offen sc1")
    a("s_mov_b64 exec, -1")
    tstamp(3)
    a("s_branch L_fin")
    a.label("L_w0")
    a("v_mov_b32 v65, 0")
    a("v_mul_u32_u24 v66, 43, v2"); a("v_lshrrev_b32 v66, 9, v66")
    a("v_mul_u32_u24 v67, 12, v66"); a("v_sub_u32 v67, v2, v67")
    a("v_lshlrev_b32 v66, 11, v66"); a("v_lshl_add_u32 v66, v67, 4, v66")
    a("v_subrev_u32 v67, 48, v2"); a("v_lshlrev_b32 v67, 11, v67"); a("v_add_u32 v67, 192, v67")
    a("v_cmp_gt_u32 vcc, 48, v2")
    a("v_cndmask_b32 v66, v67, v66, vcc")
    a("s_mov_b32 s62, 0"); a("s_mov_b32 s63, 0xffff0000")
    a("s_waitcnt lgkmcnt(0)")
    a("s_barrier")
    tstamp(1)
    for k in range(4): a(f"ds_read_b128 v[{20+4*k}:{23+4*k}], v65 offset:{L_ML+16*k}")
    for w in range(10): a(f"ds_read_b128 v[{148+4*w}:{151+4*w}], v6 offset:{L_OP+768*w}")
    a("s_waitcnt lgkmcnt(0)" if st == "tail" else "s_waitcnt lgkmcnt(9)")
    for w in range(10, 16): a(f"ds_read_b128 v[{148+4*w}:{151+4*w}], v6 offset:{L_OP+768*w}")
    a("v_max3_f32 v68, v20, v22, v24"); a("v_max3_f32 v68, v68, v26, v28")
    a("v_max3_f32 v68, v68, v30, v32"); a("v_max_f32 v68, v68, v34")
    for w in range(8): a(f"v_sub_f32 v{20+2*w}, v{20+2*w}, v68")
    for w in range(8): a(f"v_exp_f32 v{20+2*w}, v{20+2*w}")
    a("v_mul_f32 v69, v20, v21")
    for w in range(1, 8): a(f"v_fmac_f32 v69, v{20+2*w}, v{21+2*w}")
    a("s_waitcnt lgkmcnt(0)")
    for w in range(8):
        a(f"v_pk_add_f32 v[{148+8*w}:{149+8*w}], v[{148+8*w}:{149+8*w}], v[{152+8*w}:{153+8*w}]")
        a(f"v_pk_add_f32 v[{150+8*w}:{151+8*w}], v[{150+8*w}:{151+8*w}], v[{154+8*w}:{155+8*w}]")
    for r in range(4): a(f"v_mul_f32 v{72+r}, v20, v{148+r}")
    for w in range(1, 8):
        for r in range(4): a(f"v_fmac_f32 v{72+r}, v{20+2*w}, v{148+8*w+r}")
    a("v_cndmask_b32 v72, v72, v68, s[62:63]"); a("v_cndmask_b32 v73, v73, v69, s[62:63]")
    a("v_cndmask_b32 v74, v74, v68, s[62:63]"); a("v_cndmask_b32 v75, v75, v69, s[62:63]")
    for r in range(4): a(f"v_min_u32 v{72+r}, -2, v{72+r}")
    a("s_mov_b32 exec_lo, -1"); a("s_mov_b32 exec_hi, 0xfffff")
    a("s_cmp_eq_u32 s66, 2"); a("s_cbranch_scc1 L_h1L")
    a(f"buffer_store_dwordx4 v[72:75], v66, {WS_}, s56 offen sc1")
    a("s_mov_b64 exec, -1")
    a("s_branch L_fin" if direct else "s_branch L_b3b")
    a.label("L_h1L")
    a(f"buffer_store_dwordx4 v[72:75], v66, {WS_}, s56 offen")
    a("s_mov_b64 exec, -1")
    tstamp(2)
    if not direct: a("s_branch L_b3b")
    a.label("L_fin")
    tstamp(5); tstamp(6); stamp(6)
    a("s_cmp_ge_u32 s2, 20")
    a("s_cbranch_scc1 L_done")
    if direct: a("s_barrier")
    a("v_lshrrev_b32 v15, 3, v0"); a("v_mul_u32_u24 v15, 2560, v15")
    a("v_add_u32 v15, v15, v3")
    a("s_lshl_b32 s62, s2, 7"); a("s_add_u32 s62, s62, %d" % MB2_OFF); a("s_add_u32 s61, s62, %d" % (64 * 2560))
    a("v_lshlrev_b32 v16, 2, v2"); a("s_lshl_b32 s60, s2, 6")
    a(f"buffer_load_dword v17, v16, {X_}, s60 offen")
    a(f"s_mov_b32 s63, {SPIN_MAX}")
    def p2(k):
        b = 72 + 8 * k
        a(f"buffer_load_dwordx4 v[{b}:{b+3}], v15, {WS_}, s62 offen sc1")
        a(f"buffer_load_dwordx4 v[{b+4}:{b+7}], v15, {WS_}, s61 offen sc1")
    for k in range(NP2):
        p2(k)
        if k < NP2 - 1: a(f"s_sleep {gap2}")
    a.label("L_poll2")
    for k in range(NP2):
        b = 72 + 8 * k
        a(f"s_waitcnt vmcnt({2*(NP2-1)})")
        if tag:
            a(f"v_and_b32 v18, v{b}, v{b+1}"); a(f"v_and_b32 v19, v{b+2}, v{b+3}"); a(f"v_and_b32 v20, v{b+4}, v{b+5}"); a(f"v_and_b32 v21, v{b+6}, v{b+7}")
            a("v_and_b32 v18, v18, v19"); a("v_and_b32 v20, v20, v21"); a("v_and_b32 v18, v18, v20"); a("v_and_b32 v18, 1, v18")
        else:
            a(f"v_max3_u32 v18, v{b}, v{b+1}, v{b+2}"); a(f"v_max3_u32 v18, v18, v{b+3}, v{b+4}"); a(f"v_max3_u32 v18, v18, v{b+5}, v{b+6}"); a(f"v_max_u32 v18, v18, v{b+7}")
        for r in range(4): a(f"v_add_f32 v{64+r}, v{b+r}, v{b+4+r}")
        a("v_cmp_eq_u32 vcc, 0, v18" if tag else "v_cmp_eq_u32 vcc, -1, v18")
        a("s_cmp_eq_u64 vcc, 0")
        a("s_cbranch_scc1 L_go2")
        p2(k)
    a("s_sub_u32 s63, s63, 1"); a("s_cmp_lg_u32 s63, 0")
    a("s_cbranch_scc1 L_poll2")
    a.label("L_go2")
    tstamp(6)
    a("v_permlane32_swap_b32 v64, v66"); a("v_permlane32_swap_b32 v65, v67")
    a("v_add_f32 v64, v64, v66"); a("v_add_f32 v65, v65, v67")
    a("v_permlane16_swap_b32 v64, v65"); a("v_add_f32 v64, v64, v65")
    a("v_add_f32_dpp v64, v64, v64 row_ror:8 row_mask:0xf bank_mask:0xf")
    a("v_lshrrev_b32 v18, 4, v2"); a("v_lshlrev_b32 v18, 2, v18")
    a("s_lshl_b32 s62, s3, 7")
    a("v_add3_u32 v18, v18, v3, s62")
    a(f"ds_write_b32 v18, v64 offset:{L_FIN}")
    a("s_waitcnt lgkmcnt(0)")
    a("s_barrier")
    a("s_cmp_lg_u32 s3, 0")
    a("s_cbranch_scc1 L_done")
    a("s_mov_b64 exec, 0xffff")
    a("v_lshlrev_b32 v18, 3, v2")
    for w in range(8): a(f"ds_read_b64 v[{160+2*w}:{161+2*w}], v18 offset:{L_FIN+128*w}")
    unpack(17, 64, 65)
    a("s_waitcnt lgkmcnt(0)")
    for w in range(8):
        a(f"v_add_f32 v64, v64, v{160+2*w}"); a(f"v_add_f32 v65, v65, v{161+2*w}")
    a("v_cvt_pk_bf16_f32 v64, v64, v65")
    a(f"buffer_store_dword v64, v16, {OUT_}, s60 offen")
    a("s_mov_b64 exec, -1")
    a.label("L_done")
    if st: a("s_waitcnt vmcnt(0)" if False else "s_nop 0")
    if st == "wave":
        a("s_waitcnt lgkmcnt(0)")
        a("v_mov_b32 v64, s88"); a("v_mov_b32 v65, s89"); a("v_mov_b32 v66, s96"); a("v_mov_b32 v67, s97")
        a("s_lshl_b32 s63, s2, 7"); a("s_lshl_b32 s62, s3, 4"); a("s_add_u32 s63, s63, s62"); a(f"s_add_u32 s63, s63, {STAMP_OFF}")
        a("v_mov_b32 v15, 0"); a("s_mov_b64 exec, 1")
        a(f"buffer_store_dwordx4 v[64:67], v15, {WS_}, s63 offen")
    elif st:
        a("s_memrealtime s[86:87]")
        a("s_cmp_eq_u32 s3, 0"); a("s_cselect_b32 s62, 0, 1")
        a(f"s_cmp_eq_u32 s3, {AUX}"); a("s_cselect_b32 s63, 0, 1")
        a("s_and_b32 s63, s63, s62"); a("s_cmp_eq_u32 s63, 1"); a("s_cbranch_scc1 L_end")
        a("s_waitcnt lgkmcnt(0)")
        for i in range(7):
            a(f"v_mov_b32 v{64+2*i}, s{88+2*i}"); a(f"v_mov_b32 v{65+2*i}, s{89+2*i}")
        a("v_mov_b32 v78, s86"); a("v_mov_b32 v79, s87")
        a("s_lshl_b32 s63, s2, 7"); a("s_lshl_b32 s62, s62, 6"); a("s_add_u32 s63, s63, s62"); a(f"s_add_u32 s63, s63, {STAMP_OFF}")
        a("v_mov_b32 v15, 0"); a("s_mov_b64 exec, 1")
        for i in range(4): a(f"buffer_store_dwordx4 v[{64+4*i}:{67+4*i}], v15, {WS_}, s63 offen offset:{16*i}")
    a.label("L_end")
    a("s_endpgm")
    R('.section .rodata,"a"'); R(".p2align 6"); R(f".amdhsa_kernel {KN}")
    R("  .amdhsa_next_free_vgpr 256"); R("  .amdhsa_next_free_sgpr 102"); R("  .amdhsa_accum_offset 256")
    R("  .amdhsa_group_segment_fixed_size 0"); R("  .amdhsa_kernarg_size 96"); R("  .amdhsa_user_sgpr_count 2")
    R("  .amdhsa_user_sgpr_kernarg_segment_ptr 1"); R("  .amdhsa_system_sgpr_workgroup_id_x 1"); R(".end_amdhsa_kernel")
    txt = a.text()
    if spol != 'nt': txt = txt.replace(" nt\n", " " + spol + "\n")
    open(fname, "w").write(txt)

if __name__ == "__main__":
    E = [4, 8, 11, 14, 17, 20, 24, 27]
    base = dict(entries=E, budget=1, wfirst=False, psleep=24, pre=6, tag=1, cpol="sc1 nt ")
    gen("k18_0.s", **base)
    gen("k18_1.s", direct=1, **base)
    gen("k18_3.s", direct=3, **base)
    gen("k18_1_ts.s", st="tail", direct=1, **base)
    gen("k18_0_ts.s", st="tail", **base)
```
